```python
import torch

def _softmax(x, axis=-1):
    return torch.softmax(x, dim=axis)
def _gelu(x):
    return torch.nn.functional.gelu(x, approximate="tanh")
def _silu(x):
    return torch.nn.functional.silu(x)
def _sigmoid(x):
    return torch.sigmoid(x)
def _layernorm(x, axis=-1, eps=1e-5):
    m = x.mean(dim=axis, keepdim=True)
    v = x.var(dim=axis, keepdim=True, unbiased=False)
    return (x - m) / torch.sqrt(v + eps)
def _scatter_add(tgt, idx, src, axis=0):
    return tgt.clone().index_add_(axis, idx, src)
def _segment_sum(src, seg, n):
    out = torch.zeros((n,) + src.shape[1:], dtype=src.dtype)
    return out.index_add_(0, seg, src)
def _pad(x, pw):
    flat = tuple(v for pair in reversed(pw) for v in pair)
    return torch.nn.functional.pad(x, flat)

kernel_name = 'sequential_preLN__mha_block__dense_activation_mish__prompt'

def setup_inputs():

    _w = (lambda a: (lambda t: t.to(torch.bfloat16) if t.is_floating_point() else t)(torch.as_tensor(a)))
    def _A_setup():
        B, S, D, H = 1, 2048, 512, 32
        return {
            "x": _w((lambda *s: torch.randn(*s, dtype=torch.bfloat16) * 0.05)(B, S, D)),
            "wqkv": _w((lambda *s: torch.randn(*s, dtype=torch.bfloat16) * 0.05)(D, 3 * D)),
            "wo": _w((lambda *s: torch.randn(*s, dtype=torch.bfloat16) * 0.05)(D, D)),
        }
    _A_in = _A_setup()

    def _B_setup():
        B, S, D, F = 1, 2048, 512, 1376
        return {
            "x": _w((lambda *s: torch.randn(*s, dtype=torch.bfloat16) * 0.05)(B, S, D)),
            "w1": _w((lambda *s: torch.randn(*s, dtype=torch.bfloat16) * 0.8)(D, F) * (D ** -0.5)),
            "b1": _w((lambda *s: torch.randn(*s, dtype=torch.bfloat16) * 0.8)(F)),
            "w2": _w((lambda *s: torch.randn(*s, dtype=torch.bfloat16) * 0.2)(F, D) * (F ** -0.5)),
        }
    _B_in = _B_setup()

    return {
        "A_x": _A_in["x"],
        "A_wqkv": _A_in["wqkv"],
        "A_wo": _A_in["wo"],
        "B_x": _B_in["x"],
        "B_w1": _B_in["w1"],
        "B_b1": _B_in["b1"],
        "B_w2": _B_in["w2"],
    }

def reference(A_x, A_wqkv, A_wo, B_x, B_w1, B_b1, B_w2):
    def _A_ref(x, wqkv, wo):
        B, S, D = x.shape
        H = 32
        Dh = D // H
        qkv = (lambda x, *d: x.permute(*d))((x @ wqkv).reshape(B, S, 3, H, Dh), 2, 0, 3, 1, 4)
        q, k, v = qkv[0], qkv[1], qkv[2]
        scores = torch.einsum("bhqd,bhkd->bhqk", q, k) * (Dh ** -0.5)
        p = _softmax(scores, axis=-1)
        o = torch.einsum("bhqk,bhkd->bhqd", p, v)
        return (lambda x, *d: x.permute(*d))(o, 0, 2, 1, 3).reshape(B, S, D) @ wo

    def _B_ref(x, w1, b1, w2):
        h = torch.einsum("bsd,df->bsf", x, w1) + b1
        sp = torch.log1p(torch.exp(-torch.abs(h))) + torch.where(h > 0, h, torch.zeros_like(h))
        act = h * torch.tanh(sp)
        return torch.einsum("bsf,fd->bsd", act, w2)

    x = A_x
    h = x + _A_ref(_layernorm(x, axis=-1), A_wqkv, A_wo)
    h2 = h + _B_ref(_layernorm(h, axis=-1), B_w1, B_b1, B_w2)
    return h2
```

```python
class Asm:
    def __init__(self):
        self.lines = []
        self.nlabel = 0
    def __call__(self, s):
        for l in s.strip("\n").split("\n"):
            self.lines.append("  " + l.strip())
    def label(self, name):
        self.lines.append(name + ":")
    def newlabel(self, base):
        self.nlabel += 1
        return f"{base}_{self.nlabel}"
    def comment(self, s):
        self.lines.append("  ; " + s)
    def text(self):
        return "\n".join(self.lines) + "\n"

def vr(a, n):
    return f"v[{a}:{a+n-1}]" if n > 1 else f"v{a}"
def sr(a, n):
    return f"s[{a}:{a+n-1}]" if n > 1 else f"s{a}"

def kernel_wrap(name, body, nvgpr, nsgpr=100):
    nv = (nvgpr + 7) // 8 * 8
    acc = (nvgpr + 3) // 4 * 4
    return f""".text
.globl {name}
.p2align 8
.type {name},@function
{name}:
{body}
.section .rodata,"a"
.p2align 6
.amdhsa_kernel {name}
  .amdhsa_next_free_vgpr {nvgpr}
  .amdhsa_next_free_sgpr {nsgpr}
  .amdhsa_accum_offset {acc}
  .amdhsa_group_segment_fixed_size 0
  .amdhsa_kernarg_size 80
  .amdhsa_user_sgpr_count 2
  .amdhsa_user_sgpr_kernarg_segment_ptr 1
  .amdhsa_system_sgpr_workgroup_id_x 1
.end_amdhsa_kernel
"""

KA = dict(x=0, wqkv=8, wo=16, bx=24, w1=32, b1=40, w2=48, out=56, dbg=64, ws=72)
MB = 1 << 20
WS_QF, WS_KF, WS_VV, WS_OF, WS_HF, WS_AF = 0, 2*MB, 4*MB, 6*MB, 8*MB, 10*MB
AF_KS = 90

def srd(a, dst, ptr, nbytes, add=0):
    if add:
        a(f"s_add_u32 s{dst}, s{ptr}, {add}")
        a(f"s_addc_u32 s{dst+1}, s{ptr+1}, 0")
    else:
        a(f"s_mov_b32 s{dst}, s{ptr}")
        a(f"s_mov_b32 s{dst+1}, s{ptr+1}")
    a(f"s_mov_b32 s{dst+2}, {nbytes}")
    a(f"s_mov_b32 s{dst+3}, 0x00020000")
```

```python
from dsl import *

def attn():
    name = "k2_attn_kernel"
    a = Asm()
    ONES = 131072; SCR = ONES + 4608
    Q, KF, VF, P, S, O, NM = 8, [12, 16], [20, 28], [36, 44], [52, 68], 84, 100
    T0 = 116
    a("s_cmp_ge_u32 s2, 256")
    a(f"s_cbranch_scc1 L_{name}_end")
    a("s_load_dwordx2 s[30:31], s[0:1], %d" % KA['ws'])
    a("s_and_b32 s23, s2, 7")
    a("s_lshr_b32 s38, s2, 3")
    a("s_and_b32 s38, s38, 3")
    a("s_lshl_b32 s38, s38, 3")
    a("s_add_u32 s23, s23, s38")
    a("s_lshr_b32 s24, s2, 5")
    a("v_and_b32 v1, 63, v0")
    a("v_lshrrev_b32 v2, 6, v0")
    a("s_nop 0")
    a("v_readfirstlane_b32 s20, v2")
    a("s_nop 3")
    a("s_and_b32 s21, s20, 7")
    a("s_lshr_b32 s22, s20, 3")
    a("v_lshlrev_b32 v4, 4, v1")
    a("s_lshr_b32 s38, s20, 1")
    a("s_and_b32 s38, s38, 1")
    a("s_lshl_b32 s38, s38, 5")
    a("s_lshr_b32 s39, s20, 2")
    a("s_add_u32 s38, s38, s39")
    a("s_lshl_b32 s38, s38, 10")
    a("s_and_b32 s39, s20, 1")
    a("s_lshl_b32 s25, s39, 16")
    a("s_add_u32 s25, s25, s38")
    a("s_lshl_b32 s26, s39, 21")
    a("s_add_u32 s26, s26, s38")
    a("s_lshl_b32 s39, s23, 16")
    a("s_add_u32 s26, s26, s39")
    a("s_lshl_b32 s27, s24, 3")
    a("s_add_u32 s27, s27, s21")
    a("s_lshl_b32 s28, s27, 10")
    a("s_add_u32 s28, s28, s39")
    a("s_waitcnt lgkmcnt(0)")
    srd(a, 4, 30, 4*MB, add=WS_KF)
    srd(a, 8, 30, 2*MB, add=WS_QF)
    srd(a, 12, 30, 2*MB, add=WS_OF)
    a(f"buffer_load_dwordx4 {vr(Q,4)}, v4, s[8:11], s28 offen")
    for r in range(8):
        a(f"s_add_u32 m0, s25, {r*4096}")
        a(f"s_add_u32 s38, s26, {r*4096}")
        a("buffer_load_dwordx4 v4, s[4:7], s38 offen lds")
    a("v_mov_b32 v5, 0x3f803f80")
    a("v_lshlrev_b32 v6, 2, v0")
    a(f"v_add_u32 v6, {ONES}, v6")
    a("ds_write_b32 v6, v5")
    a("ds_write_b32 v6, v5 offset:512")
    a("s_lshl_b32 s29, s22, 15")
    a("v_add_u32 v2, s29, v4")
    a("v_lshrrev_b32 v5, 5, v1")
    a("v_and_b32 v6, 15, v1")
    a("v_lshlrev_b32 v6, 3, v6")
    a("v_lshlrev_b32 v3, 7, v5")
    a("v_add_u32 v3, v3, v6")
    a("v_xor_b32 v7, 128, v3")
    a(f"v_add_u32 v7, {ONES}, v7")
    a("s_add_u32 s38, s29, 65536")
    a("v_add_u32 v3, s38, v3")
    a("v_and_b32 v6, 16, v1")
    a("v_cmp_ne_u32 vcc, 0, v6")
    a("s_nop 1")
    a("v_cndmask_b32 v3, v3, v7, vcc")
    a("v_mov_b32 v6, 4096")
    a("v_cndmask_b32 v7, v6, 0, vcc")
    a("v_mov_b32 v5, v3")
    a("v_mov_b32 v6, v2")
    a("s_mov_b32 s33, 0")
    a("s_waitcnt vmcnt(6) lgkmcnt(0)")
    a("s_barrier")
    a(f"ds_read_b128 {vr(KF[0],4)}, v2")
    a("s_waitcnt lgkmcnt(0)")
    a(f"v_mfma_f32_32x32x16_bf16 {vr(S[0],16)}, {vr(KF[0],4)}, {vr(Q,4)}, 0")
    a("s_nop 15")
    a("s_nop 3")
    def maxtree(dst, src, init):
        first = True
        if init:
            a(f"v_max3_f32 v{dst}, v{src}, v{src+1}, v{src+2}")
            rest = list(range(src+3, src+16))
        else:
            rest = list(range(src, src+16))
        while len(rest) >= 2:
            a(f"v_max3_f32 v{dst}, v{dst}, v{rest[0]}, v{rest[1]}"); rest = rest[2:]
        if rest: a(f"v_max_f32 v{dst}, v{dst}, v{rest[0]}")
    maxtree(T0, S[0], True)
    a.label("L_attn_setmax")
    a(f"v_mov_b32 v{T0+1}, v{T0}")
    a("s_nop 1")
    a(f"v_permlane32_swap_b32 v{T0}, v{T0+1}")
    a("s_nop 1")
    a(f"v_max_f32 v{T0}, v{T0}, v{T0+1}")
    for r in range(16): a(f"v_sub_f32 v{NM+r}, 0, v{T0}")
    for r in range(16): a(f"v_mov_b32 v{O+r}, 0")
    for r in range(8):
        a(f"v_mov_b32 v{P[1]+r}, 0")
        a(f"v_mov_b32 v{VF[1]+r}, 0")
    a("v_mov_b32 v2, v6")
    a("v_mov_b32 v3, v5")
    a(f"ds_read_b128 {vr(KF[0],4)}, v2")
    a(f"ds_read_b128 {vr(KF[1],4)}, v2 offset:1024")
    a("s_waitcnt lgkmcnt(1)")
    a(f"v_mfma_f32_32x32x16_bf16 {vr(S[0],16)}, {vr(KF[0],4)}, {vr(Q,4)}, {vr(NM,16)}")
    a("s_nop 7")
    a("s_mov_b32 s32, 0")
    a.label("L_attn_loop")
    a("s_cmp_eq_u32 s32, 1")
    a("s_cbranch_scc0 L_attn_nosync")
    a("s_cmp_eq_u32 s33, 0")
    a("s_cbranch_scc0 L_attn_nosync")
    a("s_waitcnt vmcnt(0)")
    a("s_barrier")
    a.label("L_attn_nosync")
    for u in range(4):
        p = u & 1
        a("s_waitcnt lgkmcnt(0)")
        a(f"v_mfma_f32_32x32x16_bf16 {vr(S[p^1],16)}, {vr(KF[p^1],4)}, {vr(Q,4)}, {vr(NM,16)}")
        a(f"ds_read_b128 {vr(KF[p],4)}, v2 offset:{(u+2)*1024}")
        for r in range(4):
            a(f"ds_read_b64_tr_b16 {vr(VF[p]+2*r,2)}, v3 offset:{u*1024 + r*256}")
        s = S[p]
        for i in range(8):
            a(f"v_exp_f32 v{s+2*i}, v{s+2*i}")
            a(f"v_exp_f32 v{s+2*i+1}, v{s+2*i+1}")
            if i > 0: a(f"v_cvt_pk_bf16_f32 v{P[p]+i-1}, v{s+2*i-2}, v{s+2*i-1}")
            if i == 2: a(f"v_mfma_f32_32x32x16_bf16 {vr(O,16)}, {vr(VF[p^1],4)}, {vr(P[p^1],4)}, {vr(O,16)}")
            if i == 5: a(f"v_mfma_f32_32x32x16_bf16 {vr(O,16)}, {vr(VF[p^1]+4,4)}, {vr(P[p^1]+4,4)}, {vr(O,16)}")
        a("s_nop 0")
        a(f"v_cvt_pk_bf16_f32 v{P[p]+7}, v{s+14}, v{s+15}")
    a("v_add_u32 v2, 4096, v2")
    a("v_add_u32 v3, v3, v7")
    a("s_add_u32 s32, s32, 1")
    a("s_cmp_lt_u32 s32, 8")
    a("s_cbranch_scc1 L_attn_loop")
    a("s_waitcnt lgkmcnt(0)")
    a(f"v_mfma_f32_32x32x16_bf16 {vr(O,16)}, {vr(VF[1],4)}, {vr(P[1],4)}, {vr(O,16)}")
    a(f"v_mfma_f32_32x32x16_bf16 {vr(O,16)}, {vr(VF[1]+4,4)}, {vr(P[1]+4,4)}, {vr(O,16)}")
    a("s_nop 15")
    a("s_nop 3")
    a("s_cmp_eq_u32 s33, 0")
    a("s_cbranch_scc0 L_attn_done")
    a("s_mov_b32 s34, 0x5f800000")
    a(f"v_cmp_nle_f32 s[36:37], v{O+8}, s34")
    a("v_mov_b32 v%d, 0x207" % (T0+1))
    for r in range(8):
        a(f"v_cmp_class_f32 vcc, v{O+r}, v{T0+1}")
        a("s_or_b64 s[36:37], s[36:37], vcc")
    a("s_cmp_eq_u64 s[36:37], 0")
    a("s_cbranch_scc1 L_attn_done")
    a("s_mov_b32 s33, 1")
    a("s_waitcnt vmcnt(0)")
    a("v_mov_b32 v2, v6")
    a(f"v_mov_b32 v{T0}, 0xff800000")
    a("s_mov_b32 s32, 0")
    a.label("L_attn_maxloop")
    a(f"ds_read_b128 {vr(KF[0],4)}, v2")
    a("s_waitcnt lgkmcnt(0)")
    a(f"v_mfma_f32_32x32x16_bf16 {vr(S[0],16)}, {vr(KF[0],4)}, {vr(Q,4)}, 0")
    a("s_nop 15")
    a("s_nop 3")
    maxtree(T0, S[0], False)
    a("v_add_u32 v2, 1024, v2")
    a("s_add_u32 s32, s32, 1")
    a("s_cmp_lt_u32 s32, 32")
    a("s_cbranch_scc1 L_attn_maxloop")
    a("s_branch L_attn_setmax")
    a.label("L_attn_done")
    a("s_mul_i32 s38, s21, 2560")
    a(f"s_add_u32 s38, s38, {SCR}")
    a("v_lshlrev_b32 v2, 2, v1")
    a("v_add_u32 v2, s38, v2")
    a("s_cmp_eq_u32 s22, 0")
    a("s_cbranch_scc1 L_attn_h0")
    for r in range(9): a(f"ds_write_b32 v2, v{O+r} offset:{r*256}")
    a(f"ds_write_b32 v2, v{T0} offset:{9*256}")
    a("s_waitcnt lgkmcnt(0)")
    a("s_barrier")
    a(f"s_branch L_{name}_end")
    a.label("L_attn_h0")
    a("s_barrier")
    for r in range(10): a(f"ds_read_b32 v{S[0]+r}, v2 offset:{r*256}")
    a("s_waitcnt lgkmcnt(0)")
    m1 = S[0] + 9
    a(f"v_max_f32 v{T0+1}, v{T0}, v{m1}")
    a(f"v_sub_f32 v{T0+2}, v{T0}, v{T0+1}")
    a(f"v_sub_f32 v{T0+3}, v{m1}, v{T0+1}")
    a(f"v_exp_f32 v{T0+2}, v{T0+2}")
    a(f"v_exp_f32 v{T0+3}, v{T0+3}")
    a("s_nop 0")
    for r in range(9):
        a(f"v_mul_f32 v{O+r}, v{O+r}, v{T0+2}")
        a(f"v_fma_f32 v{O+r}, v{S[0]+r}, v{T0+3}, v{O+r}")
    a(f"v_rcp_f32 v{T0+4}, v{O+8}")
    a("s_nop 0")
    for r in range(8): a(f"v_mul_f32 v{O+r}, v{O+r}, v{T0+4}")
    for j in range(4): a(f"v_cvt_pk_bf16_f32 v{P[0]+j}, v{O+2*j}, v{O+2*j+1}")
    a("s_lshl_b32 s38, s27, 5")
    a("s_add_u32 s38, s38, s23")
    a("s_lshl_b32 s38, s38, 10")
    a(f"buffer_store_dwordx4 {vr(P[0],4)}, v4, s[12:15], s38 offen")
    a.label(f"L_{name}_end")
    a("s_endpgm")
    return name, kernel_wrap(name, a.text(), 128, 64), SCR + 8*2560
```

```python
from dsl import *

def gemm64(mode):
    op = mode == "oproj"
    name = "k3_oproj_kernel" if op else "k5_ffn2_kernel"
    nks = 32 if op else 86
    nchunk = (nks + 7) // 8
    nslot = 4 if op else 5
    kspitch = 32 if op else AF_KS
    a = Asm()
    a("s_cmp_ge_u32 s2, 256")
    a(f"s_cbranch_scc1 L_{name}_end")
    a("s_load_dwordx2 s[30:31], s[0:1], %d" % KA['ws'])
    a("s_load_dwordx2 s[32:33], s[0:1], %d" % (KA['wo'] if op else KA['w2']))
    a("s_load_dwordx2 s[34:35], s[0:1], %d" % (KA['x'] if op else KA['out']))
    a("s_and_b32 s3, s2, 7")
    a("s_lshr_b32 s38, s2, 3")
    a("s_lshl_b32 s23, s3, 2")
    a("s_and_b32 s39, s38, 3")
    a("s_add_u32 s23, s23, s39")
    a("s_lshr_b32 s24, s38, 2")
    a("v_and_b32 v1, 63, v0")
    a("v_lshrrev_b32 v2, 6, v0")
    a("s_nop 0")
    a("v_readfirstlane_b32 s20, v2")
    a("s_nop 3")
    a("s_and_b32 s21, s20, 1")
    a("s_lshr_b32 s22, s20, 2")
    a("s_lshr_b32 s25, s20, 1")
    a("s_and_b32 s25, s25, 1")
    a("v_and_b32 v2, 31, v1")
    a("v_lshrrev_b32 v3, 5, v1")
    a("s_lshl_b32 s38, s23, 1")
    a(f"s_mul_i32 s38, s38, {kspitch}")
    a("s_add_u32 s38, s38, s20")
    a("s_lshl_b32 s38, s38, 10")
    a("v_lshlrev_b32 v4, 4, v1")
    a("v_add_u32 v10, s38, v4")
    a(f"v_add_u32 v11, {kspitch*1024}, v10")
    a("v_lshrrev_b32 v5, 3, v1")
    a("s_lshl_b32 s38, s20, 4")
    a("v_add_u32 v5, s38, v5")
    a("v_lshlrev_b32 v5, 10, v5")
    a("v_lshrrev_b32 v6, 4, v1")
    a("v_and_b32 v6, 1, v6")
    a("v_lshlrev_b32 v6, 2, v6")
    a("v_and_b32 v7, 7, v1")
    a("v_xor_b32 v6, v6, v7")
    a("v_lshlrev_b32 v6, 4, v6")
    a("v_add_u32 v5, v5, v6")
    a("s_lshl_b32 s38, s24, 7")
    a("v_add_u32 v12, s38, v5")
    a("s_lshl_b32 s40, s23, 1")
    a("s_add_u32 s40, s40, s21")
    a("s_lshl_b32 s41, s24, 2")
    a("s_lshl_b32 s38, s25, 1")
    a("s_add_u32 s41, s41, s38")
    a("s_add_u32 s41, s41, s22")
    a("s_lshl_b32 s42, s40, 5")
    a("s_add_u32 s42, s42, s41")
    a("s_lshl_b32 s42, s42, 10")
    a("s_lshl_b32 s43, s40, 15")
    a("s_lshl_b32 s38, s41, 5")
    a("s_add_u32 s43, s43, s38")
    a("v_lshlrev_b32 v8, 10, v2")
    a("s_waitcnt lgkmcnt(0)")
    if op:
        srd(a, 4, 30, 2*MB, add=WS_OF)
        srd(a, 12, 30, 2*MB, add=WS_HF)
        srd(a, 16, 34, 2*MB)
    else:
        srd(a, 4, 30, 64*AF_KS*1024, add=WS_AF)
        srd(a, 12, 34, 2*MB)
        srd(a, 16, 30, 2*MB, add=WS_HF)
    srd(a, 8, 32, nks*16*1024)
    RES = 28
    if op:
        a("v_lshlrev_b32 v9, 3, v3")
        a("v_add_u32 v9, v9, v8")
        a(f"buffer_load_dwordx2 v[{RES}:{RES+1}], v9, s[16:19], s43 offen")
        a(f"buffer_load_dwordx2 v[{RES+2}:{RES+3}], v9, s[16:19], s43 offen offset:16")
    else:
        a(f"buffer_load_dwordx4 v[{RES}:{RES+3}], v4, s[16:19], s42 offen")
    a("s_lshl_b32 s26, s20, 11")
    def dma(c):
        slot = c % nslot
        for i in range(2):
            a(f"s_add_u32 m0, s26, {slot*32768 + i*1024}")
            a(f"s_movk_i32 s38, {c*8192}" if c*8192 < 32768 else f"s_mov_b32 s38, {c*8192}")
            a(f"buffer_load_dwordx4 v{10+i}, s[4:7], s38 offen lds")
        for i in range(2):
            a(f"s_add_u32 m0, s26, {slot*32768 + 16384 + i*1024}")
            a(f"s_mov_b32 s38, {c*131072 + i*8192}")
            a(f"buffer_load_dwordx4 v12, s[8:11], s38 offen lds")
    for c in range(min(nslot, nchunk)): dma(c)
    a("s_lshl_b32 s38, s22, 13")
    a("s_lshl_b32 s39, s21, 10")
    a("s_add_u32 s38, s38, s39")
    a("v_add_u32 v17, s38, v4")
    a("v_and_b32 v5, 15, v1")
    a("v_lshrrev_b32 v6, 2, v5")
    a(f"v_lshlrev_b32 v7, {3 if op else 2}, v3")
    a("v_add_u32 v6, v6, v7")
    a("s_lshl_b32 s38, s22, 6")
    a("v_add_u32 v6, s38, v6")
    a("v_lshlrev_b32 v6, 7, v6")
    a("v_lshrrev_b32 v7, 4, v1")
    a("v_and_b32 v7, 1, v7")
    a("v_xor_b32 v7, s22, v7")
    a("v_lshlrev_b32 v7, 1, v7")
    a("v_bfe_u32 v9, v5, 1, 1")
    a("v_add_u32 v7, v7, v9")
    a("s_lshl_b32 s38, s25, 2")
    a("v_add_u32 v7, s38, v7")
    a("v_lshrrev_b32 v9, 3, v5")
    a("v_lshlrev_b32 v9, 2, v9")
    a("v_xor_b32 v7, v7, v9")
    a("v_lshlrev_b32 v7, 4, v7")
    a("v_add_u32 v6, v6, v7")
    a("v_and_b32 v7, 1, v5")
    a("v_lshlrev_b32 v7, 3, v7")
    a("v_add_u32 v6, v6, v7")
    a("v_add_u32 v21, 16384, v6")
    a("v_add_u32 v18, 0x10000, v17")
    a("v_add_u32 v22, 0x10000, v21")
    a("v_add_u32 v19, 0x20000, v17")
    a("v_add_u32 v23, 0x20000, v21")
    halfrow = 4 if op else 8
    ACC = 48
    for r in range(ACC, ACC+16): a(f"v_mov_b32 v{r}, 0")
    AF = [32, 36]; WF = [40, 44]
    def reads(c, s, buf):
        slot = c % nslot
        hi = slot // 2; off = (slot % 2) * 32768
        a(f"ds_read_b128 {vr(AF[buf],4)}, v{17+hi} offset:{off + s*2048}")
        for hf in range(2):
            a(f"ds_read_b64_tr_b16 {vr(WF[buf]+2*hf,2)}, v{21+hi} offset:{off + (16*s + halfrow*hf)*128}")
    def compute(buf):
        a(f"v_mfma_f32_32x32x16_bf16 {vr(ACC,16)}, {vr(WF[buf],4)}, {vr(AF[buf],4)}, {vr(ACC,16)}")
    for c in range(nchunk):
        younger = min(c + nslot - (2 if c >= 1 else 1), nchunk - 1) - c if not op else nchunk - 1 - c
        a(f"s_waitcnt vmcnt({4*younger})")
        a("s_barrier")
        if (not op) and c >= 1 and c + 4 < nchunk: dma(c + 4)
        last = (c == nchunk - 1) and (nks % 8 != 0)
        ns0 = 4
        reads(c, 0, 0)
        for s in range(4):
            if last and s == 2:
                a("s_waitcnt lgkmcnt(0)")
                a("s_cmp_eq_u32 s22, 1")
                a(f"s_cbranch_scc1 L_{name}_kdone")
            if s < 3:
                reads(c, s+1, (s+1) & 1)
                a("s_waitcnt lgkmcnt(3)")
            else:
                a("s_waitcnt lgkmcnt(0)")
            compute(s & 1)
    a.label(f"L_{name}_kdone")
    a("s_barrier")
    a("s_lshl_b32 s38, s20, 11")
    a("v_add_u32 v5, s38, v4")
    a("s_nop 7")
    a("s_nop 3")
    for q in range(2):
        a(f"ds_write_b128 v5, {vr(ACC+8+4*q,4)} offset:{q*1024}")
    a("s_waitcnt lgkmcnt(0)")
    a("s_barrier")
    a("s_xor_b32 s39, s20, 4")
    a("s_lshl_b32 s38, s39, 11")
    a("v_add_u32 v5, s38, v4")
    for q in range(2):
        a(f"ds_read_b128 {vr(32+4*q,4)}, v5 offset:{q*1024}")
    a("s_waitcnt vmcnt(0) lgkmcnt(0)")
    for j in range(8):
        src = RES + (j >> 1)
        if j & 1: a(f"v_and_b32 v{40+j}, 0xffff0000, v{src}")
        else:     a(f"v_lshlrev_b32 v{40+j}, 16, v{src}")
        a(f"v_add_f32 v{ACC+j}, v{ACC+j}, v{32+j}")
        a(f"v_add_f32 v{ACC+j}, v{ACC+j}, v{40+j}")
    for j in range(4):
        a(f"v_cvt_pk_bf16_f32 v{32+j}, v{ACC+2*j}, v{ACC+2*j+1}")
    if op:
        a(f"buffer_store_dwordx4 v[32:35], v4, s[12:15], s42 offen")
    else:
        a("v_lshlrev_b32 v9, 4, v3")
        a("v_add_u32 v9, v9, v8")
        a("v_permlane32_swap_b32 v32, v34")
        a("v_permlane32_swap_b32 v33, v35")
        a("s_nop 1")
        a(f"buffer_store_dwordx4 v[32:35], v9, s[12:15], s43 offen")
    a.label(f"L_{name}_end")
    a("s_endpgm")
    return name, kernel_wrap(name, a.text(), 64, 64), nslot * 32768
```

```python
from dsl import *

def gemm96(mode):
    qkv = mode == "qkv"
    name = "k1_qkv_kernel" if qkv else "k4_ffn1_kernel"
    NW = 1536 if qkv else 1376
    pitchW = NW * 2
    a = Asm()
    ACT0 = 98304
    a("s_cmp_ge_u32 s2, 256")
    a(f"s_cbranch_scc1 L_{name}_end")
    a("s_load_dwordx2 s[30:31], s[0:1], %d" % (KA['x'] if qkv else KA['ws']))
    a("s_load_dwordx2 s[32:33], s[0:1], %d" % (KA['wqkv'] if qkv else KA['w1']))
    a("s_load_dwordx2 s[34:35], s[0:1], %d" % KA['ws'])
    a("s_load_dwordx2 s[36:37], s[0:1], %d" % KA['b1'])
    a("s_and_b32 s3, s2, 7")
    a("s_lshr_b32 s38, s2, 3")
    a("s_lshr_b32 s23, s3, 1")
    a("s_lshl_b32 s23, s23, 2")
    a("s_and_b32 s39, s38, 3")
    a("s_add_u32 s23, s23, s39")
    a("s_and_b32 s24, s3, 1")
    a("s_lshl_b32 s24, s24, 3")
    a("s_lshr_b32 s39, s38, 2")
    a("s_add_u32 s24, s24, s39")
    if not qkv:
        a("s_cmp_ge_u32 s24, 15")
        a(f"s_cbranch_scc1 L_{name}_end")
    a("v_and_b32 v1, 63, v0")
    a("v_lshrrev_b32 v2, 6, v0")
    a("s_nop 0")
    a("v_readfirstlane_b32 s20, v2")
    a("s_nop 3")
    a("s_and_b32 s21, s20, 3")
    a("s_lshr_b32 s22, s20, 2")
    a("v_and_b32 v2, 31, v1")
    a("v_lshrrev_b32 v3, 5, v1")
    a("s_mul_i32 s38, s20, 192")
    for i in range(3):
        a(f"v_add_u32 v4, s38, v1")
        if i: a(f"v_add_u32 v4, {64*i}, v4")
        a("v_mul_u32_u24 v5, 43691, v4")
        a("v_lshrrev_b32 v5, 19, v5")
        a("v_mul_u32_u24 v6, 12, v5")
        a("v_sub_u32 v6, v4, v6")
        a("v_lshlrev_b32 v6, 4, v6")
        a("s_mul_i32 s39, s24, 192")
        a("v_add_u32 v6, s39, v6")
        if not qkv:
            a(f"v_min_u32 v6, {pitchW-16}, v6")
        a(f"v_mul_u32_u24 v5, {pitchW}, v5")
        a(f"v_add_u32 v{14+i}, v5, v6")
    if qkv:
        for i in range(4):
            a("v_lshrrev_b32 v4, 4, v1")
            a(f"v_add_u32 v4, {4*i}, v4")
            a("v_and_b32 v5, 15, v1")
            a("v_xor_b32 v5, v5, v4")
            a("v_lshlrev_b32 v5, 4, v5")
            a("s_lshl_b32 s38, s23, 7")
            a("s_lshl_b32 s39, s20, 4")
            a("s_add_u32 s38, s38, s39")
            a("v_add_u32 v4, s38, v4")
            a("v_lshlrev_b32 v4, 10, v4")
            a(f"v_add_u32 v{10+i}, v4, v5")
    else:
        a("s_lshl_b32 s38, s23, 2")
        a("s_lshr_b32 s39, s20, 1")
        a("s_add_u32 s38, s38, s39")
        a("s_lshl_b32 s38, s38, 5")
        a("s_and_b32 s39, s20, 1")
        a("s_lshl_b32 s39, s39, 2")
        a("s_add_u32 s38, s38, s39")
        a("s_lshl_b32 s38, s38, 10")
        a("v_lshlrev_b32 v10, 4, v1")
        a("v_add_u32 v10, s38, v10")
    a("s_waitcnt lgkmcnt(0)")
    if qkv:
        srd(a, 4, 30, 2048*1024)
        srd(a, 12, 34, 6*MB)
    else:
        srd(a, 4, 30, 2*MB, add=WS_HF)
        srd(a, 12, 34, 64*AF_KS*1024, add=WS_AF)
        srd(a, 16, 36, 1376*2)
    srd(a, 8, 32, 512*pitchW)
    a("s_lshl_b32 s25, s20, 12")
    a(f"s_add_u32 s25, s25, {ACT0}")
    a("s_mul_i32 s26, s20, 3072")
    def dma_act(c):
        slot = c & 1
        for i in range(4):
            if qkv:
                a(f"s_add_u32 m0, s25, {slot*32768 + i*1024}")
                a(f"s_movk_i32 s38, {c*256}")
                a(f"buffer_load_dwordx4 v{10+i}, s[4:7], s38 offen lds")
            else:
                if i == 0:
                    a(f"s_add_u32 m0, s25, {slot*32768}")
                    a(f"s_movk_i32 s38, {c*8192}")
                a(f"buffer_load_dwordx4 v10, s[4:7], s38 offen offset:{i*1024} lds")
    def dma_w(c):
        for i in range(3):
            a(f"s_add_u32 m0, s26, {c*24576 + i*1024}")
            a(f"s_mov_b32 s38, {c*128*pitchW}")
            a(f"buffer_load_dwordx4 v{14+i}, s[8:11], s38 offen lds")
    if not qkv:
        a("s_mul_i32 s38, s24, 192")
        a("s_lshl_b32 s39, s22, 5")
        a("s_add_u32 s38, s38, s39")
        a("v_lshlrev_b32 v4, 3, v3")
        a("v_add_u32 v4, s38, v4")
        for b in range(3):
            for q in range(2):
                a(f"buffer_load_dwordx2 v[{28+4*b+2*q}:{29+4*b+2*q}], v4, s[16:19], 0 offen offset:{64*b+16*q}")
    dma_act(0); dma_w(0); dma_act(1); dma_w(1); dma_w(2); dma_w(3)
    if qkv:
        a("s_lshl_b32 s38, s21, 13")
        a(f"s_add_u32 s38, s38, {ACT0}")
        a("v_lshlrev_b32 v4, 8, v2")
        a("v_add_u32 v4, s38, v4")
        a("v_and_b32 v5, 15, v2")
        a("v_xor_b32 v5, v5, v3")
        a("s_lshl_b32 s39, s22, 3")
        a("v_xor_b32 v5, s39, v5")
        for s in range(4):
            a(f"v_xor_b32 v6, {2*s}, v5")
            a("v_lshlrev_b32 v6, 4, v6")
            a(f"v_add_u32 v{17+s}, v4, v6")
    else:
        a("s_lshl_b32 s38, s21, 13")
        a("s_lshl_b32 s39, s22, 12")
        a("s_add_u32 s38, s38, s39")
        a(f"s_add_u32 s38, s38, {ACT0}")
        a("v_lshlrev_b32 v17, 4, v1")
        a("v_add_u32 v17, s38, v17")
    a("v_and_b32 v4, 15, v1")
    a("v_lshrrev_b32 v5, 2, v4")
    a(f"v_lshlrev_b32 v6, {3 if qkv else 2}, v3")
    a("v_add_u32 v5, v5, v6")
    a("s_lshl_b32 s38, s22, 6")
    a("v_add_u32 v5, s38, v5")
    a("v_mul_u32_u24 v5, 192, v5")
    a("v_lshrrev_b32 v6, 4, v1")
    a("v_and_b32 v6, 1, v6")
    a("v_xor_b32 v6, s22, v6")
    a("v_lshlrev_b32 v6, 5, v6")
    a("v_add_u32 v5, v5, v6")
    a("v_and_b32 v6, 3, v4")
    a("v_lshlrev_b32 v6, 3, v6")
    a("v_add_u32 v21, v5, v6")
    halfrow = 4 if qkv else 8
    a("v_mov_b32 v27, 0x3f803f80")
    for r in range(22, 27): a(f"v_mov_b32 v{r}, 0")
    for r in range(72, 120): a(f"v_mov_b32 v{r}, 0")
    AF = [40, 44]; WF = [48, 60]; ACC = 72
    def reads(c, s, buf):
        slot = c & 1
        if qkv:
            a(f"ds_read_b128 {vr(AF[buf],4)}, v{17+s} offset:{slot*32768}")
        else:
            a(f"ds_read_b128 {vr(AF[buf],4)}, v17 offset:{slot*32768 + s*1024}")
        for b in range(3):
            for hf in range(2):
                off = ((c & 1)*128 + 16*s + halfrow*hf) * 192 + b*64
                a(f"ds_read_b64_tr_b16 {vr(WF[buf]+4*b+2*hf,2)}, v21 offset:{off}")
    def compute(buf):
        for b in range(3):
            a(f"v_mfma_f32_32x32x16_bf16 {vr(ACC+16*b,16)}, {vr(WF[buf]+4*b,4)}, {vr(AF[buf],4)}, {vr(ACC+16*b,16)}")
            for j in range(4):
                a(f"v_dot2_f32_bf16 v{24+b}, v{WF[buf]+4*b+j}, v27, v{24+b}")
            if b < 2:
                for j in (2*b, 2*b+1):
                    a(f"v_dot2_f32_bf16 v22, v{AF[buf]+j}, v27, v22")
                    a(f"v_dot2_f32_bf16 v23, v{AF[buf]+j}, v{AF[buf]+j}, v23")
    waits = [13, 6, 0, 0]
    for c in range(4):
        a(f"s_waitcnt vmcnt({waits[c]})")
        a("s_barrier")
        if c in (1, 2): dma_act(c + 1)
        if c == 2: a(f"v_add_u32 v21, {256*192}, v21")
        reads(c, 0, 0)
        for s in range(4):
            if s < 3:
                reads(c, s+1, (s+1) & 1)
                a("s_waitcnt lgkmcnt(7)")
            else:
                a("s_waitcnt lgkmcnt(0)")
            compute(s & 1)
    EX, ST, CS = 0, 49152, 53248
    for r in range(22, 27): a(f"v_mov_b32 v{r+18}, v{r}")
    a("s_nop 1")
    for r in range(22, 27): a(f"v_permlane32_swap_b32 v{r}, v{r+18}")
    a("s_nop 1")
    for r in range(22, 27): a(f"v_add_f32 v{r}, v{r}, v{r+18}")
    a("s_barrier")
    a("s_mul_i32 s38, s20, 6144")
    a("v_lshlrev_b32 v4, 4, v1")
    a("v_add_u32 v5, s38, v4")
    a("s_nop 7")
    for b in range(3):
        for q in range(2):
            a(f"ds_write_b128 v5, {vr(ACC+16*b+8+4*q,4)} offset:{EX + (2*b+q)*1024}")
    a("s_lshl_b32 s38, s20, 9")
    a("v_lshlrev_b32 v6, 3, v1")
    a("v_add_u32 v7, s38, v6")
    a(f"ds_write_b64 v7, v[22:23] offset:{ST}")
    a("s_lshl_b32 s38, s22, 4")
    a("v_xor_b32 v8, s38, v2")
    a("v_lshlrev_b32 v8, 2, v8")
    a("s_mul_i32 s38, s22, 384")
    a("v_add_u32 v8, s38, v8")
    for b in range(3):
        a(f"ds_write_b32 v8, v{24+b} offset:{CS + b*128}")
    a("s_waitcnt lgkmcnt(0)")
    a("s_barrier")
    a("s_xor_b32 s39, s20, 4")
    a("s_mul_i32 s38, s39, 6144")
    a("v_add_u32 v5, s38, v4")
    PX = 120
    for i in range(6):
        a(f"ds_read_b128 {vr(PX+4*i,4)}, v5 offset:{EX + i*1024}")
    a("s_lshl_b32 s38, s39, 9")
    a("v_add_u32 v7, s38, v6")
    a(f"ds_read_b64 v[40:41], v7 offset:{ST}")
    a("s_lshl_b32 s38, s22, 6")
    a("v_lshlrev_b32 v8, 4, v3")
    a("v_add_u32 v8, s38, v8")
    CSR = 144
    for k2 in range(2):
        for b in range(3):
            for q in range(2):
                a(f"ds_read_b128 {vr(CSR+24*k2+8*b+4*q,4)}, v8 offset:{CS + k2*384 + b*128 + q*32}")
    a("s_waitcnt lgkmcnt(0)")
    a("v_add_f32 v22, v22, v40")
    a("v_add_f32 v23, v23, v41")
    a("v_mul_f32 v22, 0x3b000000, v22")
    a("v_mul_f32 v23, 0x3b000000, v23")
    a("v_fma_f32 v23, -v22, v22, v23")
    a("v_max_f32 v23, 0, v23")
    a("v_add_f32 v23, 0x3727c5ac, v23")
    a("v_rsq_f32 v23, v23")
    a("s_nop 0")
    a("v_mul_f32 v22, v22, v23")
    for i in range(24):
        a(f"v_add_f32 v{CSR+i}, v{CSR+i}, v{CSR+24+i}")
    a("s_lshl_b32 s40, s23, 2")
    a("s_add_u32 s40, s40, s21")
    a("v_lshlrev_b32 v9, 5, v2")
    a("v_lshlrev_b32 v10, 4, v3")
    a("v_add_u32 v9, v9, v10")
    for b in range(3):
        A0 = ACC + 16*b
        a("s_mul_i32 s41, s24, 6")
        a("s_add_u32 s41, s41, s22")
        if b: a(f"s_add_u32 s41, s41, {2*b}")
        if qkv:
            a("s_lshl_b32 s42, s41, 16")
            a("s_lshl_b32 s43, s40, 10")
            a("s_add_u32 s42, s42, s43")
            a("s_cmp_lt_u32 s41, 32")
            a("s_cselect_b32 s44, 0x3eb8aa3b, 1.0")
            a("v_mul_f32 v11, s44, v23")
            a("v_mul_f32 v12, s44, v22")
            a("s_cmp_ge_u32 s41, 64")
            a("s_cselect_b64 vcc, -1, 0")
            a("v_cndmask_b32 v13, v4, v9, vcc")
            for j in range(8):
                a(f"v_add_f32 v{A0+j}, v{A0+j}, v{PX+8*b+j}")
                a(f"v_mul_f32 v{A0+j}, v11, v{A0+j}")
                a(f"v_fma_f32 v{A0+j}, -v12, v{CSR+8*b+j}, v{A0+j}")
            for j in range(4):
                a(f"v_cvt_pk_bf16_f32 v{PX+8*b+j}, v{A0+2*j}, v{A0+2*j+1}")
            a(f"buffer_store_dwordx4 {vr(PX+8*b,4)}, v13, s[12:15], s42 offen")
        else:
            a(f"s_mul_i32 s42, s40, {AF_KS}")
            a("s_add_u32 s42, s42, s41")
            a("s_lshl_b32 s42, s42, 10")
            for j in range(8):
                x = A0 + j; t1 = A0 + 8 + j
                bsrc = 28 + 4*b + (j >> 1)
                if j & 1: a(f"v_and_b32 v{t1}, 0xffff0000, v{bsrc}")
                else:     a(f"v_lshlrev_b32 v{t1}, 16, v{bsrc}")
                a(f"v_fma_f32 v{t1}, -v22, v{CSR+8*b+j}, v{t1}")
                a(f"v_add_f32 v{x}, v{x}, v{PX+8*b+j}")
                a(f"v_fma_f32 v{x}, v23, v{x}, v{t1}")
                a(f"v_min_f32 v{t1}, 0x41f00000, v{x}")
                a(f"v_mul_f32 v{t1}, 0x3fb8aa3b, v{t1}")
            for j in range(8):
                a(f"v_exp_f32 v{A0+8+j}, v{A0+8+j}")
            for j in range(8):
                t1 = A0 + 8 + j; t2 = CSR + 8*b + j
                a(f"v_add_f32 v{t2}, 2.0, v{t1}")
                a(f"v_mul_f32 v{t1}, v{t1}, v{t2}")
                a(f"v_add_f32 v{t2}, 2.0, v{t1}")
            for j in range(8):
                a(f"v_rcp_f32 v{CSR+8*b+j}, v{CSR+8*b+j}")
            for j in range(8):
                a(f"v_mul_f32 v{A0+j}, v{A0+j}, v{A0+8+j}")
            for j in range(8):
                a(f"v_mul_f32 v{A0+j}, v{A0+j}, v{CSR+8*b+j}")
            for j in range(4):
                a(f"v_cvt_pk_bf16_f32 v{PX+8*b+j}, v{A0+2*j}, v{A0+2*j+1}")
            a(f"buffer_store_dwordx4 {vr(PX+8*b,4)}, v4, s[12:15], s42 offen")
    a.label(f"L_{name}_end")
    a("s_endpgm")
    return name, kernel_wrap(name, a.text(), 192, 64), 163840
```

```python
import sys
from dsl import *
import k_gemm96, k_gemm64, k_attn, k_gemm96b
if int(os.environ.get('G96B', '1')): k_gemm96 = k_gemm96b
import importlib
hdr = open("sequential_preLN__mha_block__dense_activation_mish__prompt.s.ref").read().split("; Override launch")[0]
ks = [(k_gemm96.gemm96("qkv"), 512), (k_attn.attn(), 1024), (k_gemm64.gemm64("oproj"), 512), (k_gemm96.gemm96("ffn1"), 512), (k_gemm64.gemm64("ffn2"), 512)]
out = hdr
for (name, text, lds), threads in ks:
    out += f"; @launch kernel={name} grid=(256,1,1) block=({threads},1,1) lds={lds}\n"
out += '.amdgcn_target "amdgcn-amd-amdhsa--gfx950"\n'
for (name, text, lds), threads in ks:
    out += text
dst = sys.argv[1] if len(sys.argv) > 1 else "sequential_preLN__mha_block__dense_activation_mish__prompt.s"
open(dst, "w").write(out)
print("wrote", dst, len(out))
```

```python
import os
class Asm:
    def __init__(self):
        self.lines = []
        self.nlabel = 0
    def __call__(self, s):
        for l in s.strip("\n").split("\n"):
            self.lines.append("  " + l.strip())
    def label(self, name):
        self.lines.append(name + ":")
    def newlabel(self, base):
        self.nlabel += 1
        return f"{base}_{self.nlabel}"
    def comment(self, s):
        self.lines.append("  ; " + s)
    def text(self):
        return "\n".join(self.lines) + "\n"

def vr(a, n):
    return f"v[{a}:{a+n-1}]" if n > 1 else f"v{a}"
def sr(a, n):
    return f"s[{a}:{a+n-1}]" if n > 1 else f"s{a}"

def kernel_wrap(name, body, nvgpr, nsgpr=100):
    nv = (nvgpr + 7) // 8 * 8
    acc = (nvgpr + 3) // 4 * 4
    return f""".text
.globl {name}
.p2align 8
.type {name},@function
{name}:
{body}
.section .rodata,"a"
.p2align 6
.amdhsa_kernel {name}
  .amdhsa_next_free_vgpr {nvgpr}
  .amdhsa_next_free_sgpr {nsgpr}
  .amdhsa_accum_offset {acc}
  .amdhsa_group_segment_fixed_size 0
  .amdhsa_kernarg_size 80
  .amdhsa_user_sgpr_count 2
  .amdhsa_user_sgpr_kernarg_segment_ptr 1
  .amdhsa_system_sgpr_workgroup_id_x 1
.end_amdhsa_kernel
"""

KA = dict(x=0, wqkv=8, wo=16, bx=24, w1=32, b1=40, w2=48, out=56, dbg=64, ws=72)
MB = 1 << 20
WS_QF, WS_KF, WS_VV, WS_OF, WS_HF, WS_AF = 0, 2*MB, 4*MB, 6*MB, 8*MB, 10*MB
WS_ST = 16*MB
KS3 = int(os.environ.get('KS3', '1'))
AF_KS = 90

def srd(a, dst, ptr, nbytes, add=0):
    if add:
        a(f"s_add_u32 s{dst}, s{ptr}, {add}")
        a(f"s_addc_u32 s{dst+1}, s{ptr+1}, 0")
    else:
        a(f"s_mov_b32 s{dst}, s{ptr}")
        a(f"s_mov_b32 s{dst+1}, s{ptr+1}")
    a(f"s_mov_b32 s{dst+2}, {nbytes}")
    a(f"s_mov_b32 s{dst+3}, 0x00020000")

import os
TICK = int(os.environ.get("TICK", "0"))
class Ticks:
    def __init__(self, a, kid):
        self.a, self.kid, self.n = a, kid, 0
    def tick(self):
        if not TICK: return
        i = self.n; self.n += 1
        assert i < 16
        self.a(f"s_memtime s[{64+2*i}:{65+2*i}]")
        if i == 0: self.a("s_memrealtime s[60:61]")
    def dump(self, wave_sgpr):
        if not TICK: return
        a = self.a
        a("s_memrealtime s[58:59]")
        a("s_load_dwordx2 s[96:97], s[0:1], %d" % KA['ws'])
        a("s_waitcnt lgkmcnt(0)")
        a(f"s_add_u32 s96, s96, {64*MB}")
        a("s_addc_u32 s97, s97, 0")
        a(f"s_mov_b32 s98, {16*MB}")
        a("s_mov_b32 s99, 0x00020000")
        a(f"s_add_u32 s62, s2, {self.kid*256}")
        a("s_lshl_b32 s62, s62, 4")
        a(f"s_add_u32 s62, s62, s{wave_sgpr}")
        a("s_lshl_b32 s62, s62, 7")
        a("v_mov_b32 v0, 0")
        a("v_mov_b32 v1, s60")
        a("buffer_store_dword v1, v0, s[96:99], s62 offen offset:120")
        a("v_mov_b32 v1, s58")
        a("buffer_store_dword v1, v0, s[96:99], s62 offen offset:124")
        for i in range(self.n):
            a(f"v_mov_b32 v1, s{64+2*i}")
            a(f"buffer_store_dword v1, v0, s[96:99], s62 offen offset:{4*i}")

STF = os.environ.get("STF", " sc1")
```

```python
from dsl import *

PF = int(os.environ.get("PF", "1"))
def attn():
    name = "k2_attn_kernel"
    a = Asm()
    tk = Ticks(a, 1)
    ONES = 131072; SCR = ONES + 4608
    Q, KF, VF, P, S, O, NM = 8, [12, 16], [20, 28], [36, 44], [52, 68], 84, 100
    T0 = 116
    a("s_cmp_ge_u32 s2, 256")
    a(f"s_cbranch_scc1 L_{name}_end")
    a("s_load_dwordx2 s[30:31], s[0:1], %d" % KA['ws'])
    a("s_load_dwordx2 s[44:45], s[0:1], %d" % KA['wo'])
    a("s_load_dwordx2 s[46:47], s[0:1], %d" % KA['w1'])
    a("s_load_dwordx2 s[48:49], s[0:1], %d" % KA['w2'])
    a("s_and_b32 s23, s2, 7")
    a("s_lshr_b32 s38, s2, 3")
    a("s_and_b32 s38, s38, 3")
    a("s_lshl_b32 s38, s38, 3")
    a("s_add_u32 s23, s23, s38")
    a("s_lshr_b32 s24, s2, 5")
    tk.tick()
    a("v_and_b32 v1, 63, v0")
    a("v_lshrrev_b32 v2, 6, v0")
    a("s_nop 0")
    a("v_readfirstlane_b32 s20, v2")
    a("s_nop 3")
    a("s_and_b32 s21, s20, 7")
    a("s_lshr_b32 s22, s20, 3")
    a("v_lshlrev_b32 v4, 4, v1")
    a("s_lshr_b32 s38, s20, 1")
    a("s_and_b32 s38, s38, 1")
    a("s_lshl_b32 s38, s38, 5")
    a("s_lshr_b32 s35, s20, 2")
    a("s_lshl_b32 s39, s35, 3")
    a("s_add_u32 s38, s38, s39")
    a("s_lshl_b32 s38, s38, 10")
    a("s_and_b32 s39, s20, 1")
    a("s_lshl_b32 s25, s39, 16")
    a("s_add_u32 s25, s25, s38")
    a("s_lshl_b32 s26, s39, 21")
    a("s_add_u32 s26, s26, s38")
    a("s_lshl_b32 s39, s23, 16")
    a("s_add_u32 s26, s26, s39")
    a("s_lshl_b32 s27, s24, 3")
    a("s_add_u32 s27, s27, s21")
    a("s_lshl_b32 s28, s27, 10")
    a("s_add_u32 s28, s28, s39")
    a("s_waitcnt lgkmcnt(0)")
    srd(a, 4, 30, 4*MB, add=WS_KF)
    srd(a, 8, 30, 2*MB, add=WS_QF)
    srd(a, 12, 30, 2*MB, add=WS_OF)
    a(f"buffer_load_dwordx4 {vr(Q,4)}, v4, s[8:11], s28 offen")
    srd(a, 40, 44, 512*512*2)
    a("s_lshr_b32 s51, s2, 3")
    a("s_lshl_b32 s51, s51, 4")
    a("s_add_u32 s51, s51, s20")
    a("s_lshl_b32 s51, s51, 10")
    a("s_mov_b32 s50, s51")
    def kvdma():
        for r in range(8):
            a(f"s_add_u32 m0, s25, {(r&3)*1024 + (r>>2)*4096}")
            if (r & 3) == 0: a(f"s_add_u32 s38, s26, {(r>>2)*4096}")
            a(f"buffer_load_dwordx4 v4, s[4:7], s38 offen offset:{(r&3)*1024} lds" if False else f"buffer_load_dwordx4 v4, s[4:7], s38 offen lds")
            if (r & 3) != 3: a("s_add_u32 s38, s38, 1024")
    a("s_cmp_eq_u32 s35, 0")
    a("s_cbranch_scc0 L_attn_nodma0")
    kvdma()
    a.label("L_attn_nodma0")
    a("v_mov_b32 v5, 0x3f803f80")
    a("v_lshlrev_b32 v6, 2, v0")
    a(f"v_add_u32 v6, {ONES}, v6")
    a("ds_write_b32 v6, v5")
    a("ds_write_b32 v6, v5 offset:512")
    a("s_lshl_b32 s29, s22, 15")
    a("v_add_u32 v2, s29, v4")
    a("v_lshrrev_b32 v5, 5, v1")
    a("v_and_b32 v6, 15, v1")
    a("v_lshlrev_b32 v6, 3, v6")
    a("v_lshlrev_b32 v3, 7, v5")
    a("v_add_u32 v3, v3, v6")
    a("v_xor_b32 v7, 128, v3")
    a(f"v_add_u32 v7, {ONES}, v7")
    a("s_add_u32 s38, s29, 65536")
    a("v_add_u32 v3, s38, v3")
    a("v_and_b32 v6, 16, v1")
    a("v_cmp_ne_u32 vcc, 0, v6")
    a("s_nop 1")
    a("v_cndmask_b32 v3, v3, v7, vcc")
    a("v_mov_b32 v6, 4096")
    a("v_cndmask_b32 v7, v6, 0, vcc")
    a("v_mov_b32 v5, v3")
    a("v_mov_b32 v6, v2")
    a("s_mov_b32 s33, 0")
    tk.tick()
    a("s_waitcnt vmcnt(0) lgkmcnt(0)")
    a("s_barrier")
    tk.tick()
    a("s_cmp_eq_u32 s35, 0")
    a("s_cbranch_scc1 L_attn_nodma1")
    kvdma()
    a.label("L_attn_nodma1")
    a(f"ds_read_b128 {vr(KF[0],4)}, v2")
    a("s_waitcnt lgkmcnt(0)")
    a(f"v_mfma_f32_32x32x16_bf16 {vr(S[0],16)}, {vr(KF[0],4)}, {vr(Q,4)}, 0")
    a("s_nop 15")
    a("s_nop 3")
    def maxtree(dst, src, init):
        first = True
        if init:
            a(f"v_max3_f32 v{dst}, v{src}, v{src+1}, v{src+2}")
            rest = list(range(src+3, src+16))
        else:
            rest = list(range(src, src+16))
        while len(rest) >= 2:
            a(f"v_max3_f32 v{dst}, v{dst}, v{rest[0]}, v{rest[1]}"); rest = rest[2:]
        if rest: a(f"v_max_f32 v{dst}, v{dst}, v{rest[0]}")
    maxtree(T0, S[0], True)
    a.label("L_attn_setmax")
    a(f"v_mov_b32 v{T0+1}, v{T0}")
    a("s_nop 1")
    a(f"v_permlane32_swap_b32 v{T0}, v{T0+1}")
    a("s_nop 1")
    a(f"v_max_f32 v{T0}, v{T0}, v{T0+1}")
    for r in range(16): a(f"v_sub_f32 v{NM+r}, 0, v{T0}")
    for r in range(16): a(f"v_mov_b32 v{O+r}, 0")
    for r in range(8):
        a(f"v_mov_b32 v{P[1]+r}, 0")
        a(f"v_mov_b32 v{VF[1]+r}, 0")
    a("v_mov_b32 v2, v6")
    a("v_mov_b32 v3, v5")
    a(f"ds_read_b128 {vr(KF[0],4)}, v2")
    a(f"ds_read_b128 {vr(KF[1],4)}, v2 offset:1024")
    a("s_waitcnt lgkmcnt(1)")
    a(f"v_mfma_f32_32x32x16_bf16 {vr(S[0],16)}, {vr(KF[0],4)}, {vr(Q,4)}, {vr(NM,16)}")
    a("s_nop 7")
    a("s_mov_b32 s32, 0")
    tk.tick()
    a.label("L_attn_loop")
    a("s_cmp_eq_u32 s32, 1")
    a("s_cbranch_scc0 L_attn_nosync")
    a("s_cmp_eq_u32 s33, 0")
    a("s_cbranch_scc0 L_attn_nosync")
    tk.tick()
    a("s_waitcnt vmcnt(0)")
    a("s_barrier")
    tk.tick()
    a.label("L_attn_nosync")
    if PF:
        a("s_cmp_eq_u32 s32, 0")
        a("s_cbranch_scc1 L_attn_nopf")
        a("s_cmp_eq_u32 s33, 0")
        a("s_cbranch_scc0 L_attn_nopf")
        a("s_cmp_eq_u32 s32, 2")
        a("s_cselect_b32 s40, s46, s40")
        a("s_cselect_b32 s41, s47, s41")
        a(f"s_cselect_b32 s42, {512*1376*2}, s42")
        a("s_cselect_b32 s50, s51, s50")
        a("s_cmp_eq_u32 s32, 5")
        a("s_cselect_b32 s40, s48, s40")
        a("s_cselect_b32 s41, s49, s41")
        a("s_cselect_b32 s50, s51, s50")
        a("buffer_load_dwordx4 v[124:127], v4, s[40:43], s50 offen")
        a("s_add_u32 s50, s50, 0x80000")
        a.label("L_attn_nopf")
    for u in range(4):
        p = u & 1
        a("s_waitcnt lgkmcnt(0)")
        a(f"v_mfma_f32_32x32x16_bf16 {vr(S[p^1],16)}, {vr(KF[p^1],4)}, {vr(Q,4)}, {vr(NM,16)}")
        a(f"ds_read_b128 {vr(KF[p],4)}, v2 offset:{(u+2)*1024}")
        for r in range(4):
            a(f"ds_read_b64_tr_b16 {vr(VF[p]+2*r,2)}, v3 offset:{u*1024 + r*256}")
        s = S[p]
        for i in range(8):
            a(f"v_exp_f32 v{s+2*i}, v{s+2*i}")
            a(f"v_exp_f32 v{s+2*i+1}, v{s+2*i+1}")
            if i > 0: a(f"v_cvt_pk_bf16_f32 v{P[p]+i-1}, v{s+2*i-2}, v{s+2*i-1}")
            if i == 2: a(f"v_mfma_f32_32x32x16_bf16 {vr(O,16)}, {vr(VF[p^1],4)}, {vr(P[p^1],4)}, {vr(O,16)}")
            if i == 5: a(f"v_mfma_f32_32x32x16_bf16 {vr(O,16)}, {vr(VF[p^1]+4,4)}, {vr(P[p^1]+4,4)}, {vr(O,16)}")
        a("s_nop 0")
        a(f"v_cvt_pk_bf16_f32 v{P[p]+7}, v{s+14}, v{s+15}")
    a("v_add_u32 v2, 4096, v2")
    a("v_add_u32 v3, v3, v7")
    a("s_add_u32 s32, s32, 1")
    a("s_cmp_lt_u32 s32, 8")
    a("s_cbranch_scc1 L_attn_loop")
    a("s_waitcnt lgkmcnt(0)")
    a(f"v_mfma_f32_32x32x16_bf16 {vr(O,16)}, {vr(VF[1],4)}, {vr(P[1],4)}, {vr(O,16)}")
    a(f"v_mfma_f32_32x32x16_bf16 {vr(O,16)}, {vr(VF[1]+4,4)}, {vr(P[1]+4,4)}, {vr(O,16)}")
    a("s_nop 15")
    a("s_nop 3")
    tk.tick()
    a("s_cmp_eq_u32 s33, 0")
    a("s_cbranch_scc0 L_attn_done")
    a("s_mov_b32 s34, 0x5f800000")
    a(f"v_cmp_nle_f32 s[36:37], v{O+8}, s34")
    a("v_mov_b32 v%d, 0x207" % (T0+1))
    for r in range(8):
        a(f"v_cmp_class_f32 vcc, v{O+r}, v{T0+1}")
        a("s_or_b64 s[36:37], s[36:37], vcc")
    a("s_cmp_eq_u64 s[36:37], 0")
    a("s_cbranch_scc1 L_attn_done")
    a("s_mov_b32 s33, 1")
    a("s_waitcnt vmcnt(0)")
    a("v_mov_b32 v2, v6")
    a(f"v_mov_b32 v{T0}, 0xff800000")
    a("s_mov_b32 s32, 0")
    a.label("L_attn_maxloop")
    a(f"ds_read_b128 {vr(KF[0],4)}, v2")
    a("s_waitcnt lgkmcnt(0)")
    a(f"v_mfma_f32_32x32x16_bf16 {vr(S[0],16)}, {vr(KF[0],4)}, {vr(Q,4)}, 0")
    a("s_nop 15")
    a("s_nop 3")
    maxtree(T0, S[0], False)
    a("v_add_u32 v2, 1024, v2")
    a("s_add_u32 s32, s32, 1")
    a("s_cmp_lt_u32 s32, 32")
    a("s_cbranch_scc1 L_attn_maxloop")
    a("s_branch L_attn_setmax")
    a.label("L_attn_done")
    a("s_mul_i32 s38, s21, 2560")
    a(f"s_add_u32 s38, s38, {SCR}")
    a("v_lshlrev_b32 v2, 2, v1")
    a("v_add_u32 v2, s38, v2")
    a("s_cmp_eq_u32 s22, 0")
    a("s_cbranch_scc1 L_attn_h0")
    for r in range(9): a(f"ds_write_b32 v2, v{O+r} offset:{r*256}")
    a(f"ds_write_b32 v2, v{T0} offset:{9*256}")
    a("s_waitcnt lgkmcnt(0)")
    a("s_barrier")
    a(f"s_branch L_attn_fin")
    a.label("L_attn_h0")
    a("s_barrier")
    for r in range(10): a(f"ds_read_b32 v{S[0]+r}, v2 offset:{r*256}")
    a("s_waitcnt lgkmcnt(0)")
    m1 = S[0] + 9
    a(f"v_max_f32 v{T0+1}, v{T0}, v{m1}")
    a(f"v_sub_f32 v{T0+2}, v{T0}, v{T0+1}")
    a(f"v_sub_f32 v{T0+3}, v{m1}, v{T0+1}")
    a(f"v_exp_f32 v{T0+2}, v{T0+2}")
    a(f"v_exp_f32 v{T0+3}, v{T0+3}")
    a("s_nop 0")
    for r in range(9):
        a(f"v_mul_f32 v{O+r}, v{O+r}, v{T0+2}")
        a(f"v_fma_f32 v{O+r}, v{S[0]+r}, v{T0+3}, v{O+r}")
    a(f"v_rcp_f32 v{T0+4}, v{O+8}")
    a("s_nop 0")
    for r in range(8): a(f"v_mul_f32 v{O+r}, v{O+r}, v{T0+4}")
    for j in range(4): a(f"v_cvt_pk_bf16_f32 v{P[0]+j}, v{O+2*j}, v{O+2*j+1}")
    a("s_lshl_b32 s38, s27, 5")
    a("s_add_u32 s38, s38, s23")
    a("s_lshl_b32 s38, s38, 10")
    a(f"buffer_store_dwordx4 {vr(P[0],4)}, v4, s[12:15], s38 offen" + STF)
    a.label("L_attn_fin")
    tk.tick()
    a("s_waitcnt vmcnt(0)")
    tk.tick()
    tk.dump(20)
    a.label(f"L_{name}_end")
    a("s_endpgm")
    return name, kernel_wrap(name, a.text(), 128, 100 if TICK else 64), SCR + 8*2560
```

```python
from dsl import *

def gemm64(mode):
    op = mode == "oproj"
    name = "k3_oproj_kernel" if op else "k5_ffn2_kernel"
    nks = 32 if op else 86
    nchunk = (nks + 7) // 8
    nslot = 4 if op else 5
    kspitch = 32 if op else AF_KS
    a = Asm()
    tk = Ticks(a, 2 if op else 4)
    a("s_cmp_ge_u32 s2, 256")
    a(f"s_cbranch_scc1 L_{name}_end")
    a("s_load_dwordx2 s[30:31], s[0:1], %d" % KA['ws'])
    a("s_load_dwordx2 s[32:33], s[0:1], %d" % (KA['wo'] if op else KA['w2']))
    a("s_load_dwordx2 s[34:35], s[0:1], %d" % (KA['x'] if op else KA['out']))
    a("s_and_b32 s3, s2, 7")
    a("s_lshr_b32 s38, s2, 3")
    a("s_lshl_b32 s23, s3, 2")
    a("s_and_b32 s39, s38, 3")
    a("s_add_u32 s23, s23, s39")
    a("s_lshr_b32 s24, s38, 2")
    tk.tick()
    a("v_and_b32 v1, 63, v0")
    a("v_lshrrev_b32 v2, 6, v0")
    a("s_nop 0")
    a("v_readfirstlane_b32 s20, v2")
    a("s_nop 3")
    a("s_and_b32 s21, s20, 1")
    a("s_lshr_b32 s22, s20, 2")
    a("s_lshr_b32 s25, s20, 1")
    a("s_and_b32 s25, s25, 1")
    a("v_and_b32 v2, 31, v1")
    a("v_lshrrev_b32 v3, 5, v1")
    a("s_lshl_b32 s38, s23, 1")
    a(f"s_mul_i32 s38, s38, {kspitch}")
    a("s_add_u32 s38, s38, s20")
    a("s_lshl_b32 s38, s38, 10")
    a("v_lshlrev_b32 v4, 4, v1")
    a("v_add_u32 v10, s38, v4")
    a(f"v_add_u32 v11, {kspitch*1024}, v10")
    a("v_lshrrev_b32 v5, 3, v1")
    a("s_lshl_b32 s38, s20, 4")
    a("v_add_u32 v5, s38, v5")
    a("v_lshlrev_b32 v5, 10, v5")
    a("v_lshrrev_b32 v6, 4, v1")
    a("v_and_b32 v6, 1, v6")
    a("v_lshlrev_b32 v6, 2, v6")
    a("v_and_b32 v7, 7, v1")
    a("v_xor_b32 v6, v6, v7")
    a("v_lshlrev_b32 v6, 4, v6")
    a("v_add_u32 v5, v5, v6")
    a("s_lshl_b32 s38, s24, 7")
    a("v_add_u32 v12, s38, v5")
    a("s_lshl_b32 s40, s23, 1")
    a("s_add_u32 s40, s40, s21")
    a("s_lshl_b32 s41, s24, 2")
    a("s_lshl_b32 s38, s25, 1")
    a("s_add_u32 s41, s41, s38")
    a("s_add_u32 s41, s41, s22")
    a("s_lshl_b32 s42, s40, 5")
    a("s_add_u32 s42, s42, s41")
    a("s_lshl_b32 s42, s42, 10")
    a("s_lshl_b32 s43, s40, 15")
    a("s_lshl_b32 s38, s41, 5")
    a("s_add_u32 s43, s43, s38")
    a("v_lshlrev_b32 v8, 10, v2")
    a("s_waitcnt lgkmcnt(0)")
    if op:
        srd(a, 4, 30, 2*MB, add=WS_OF)
        srd(a, 12, 30, 2*MB, add=WS_HF)
        srd(a, 16, 34, 2*MB)
    else:
        srd(a, 4, 30, 64*AF_KS*1024, add=WS_AF)
        srd(a, 12, 34, 2*MB)
        srd(a, 16, 30, 2*MB, add=WS_HF)
    srd(a, 8, 32, nks*16*1024)
    RES = 28
    if op:
        a("v_lshlrev_b32 v9, 3, v3")
        a("v_add_u32 v9, v9, v8")
        a(f"buffer_load_dwordx2 v[{RES}:{RES+1}], v9, s[16:19], s43 offen")
        a(f"buffer_load_dwordx2 v[{RES+2}:{RES+3}], v9, s[16:19], s43 offen offset:16")
    else:
        a(f"buffer_load_dwordx4 v[{RES}:{RES+3}], v4, s[16:19], s42 offen")
    a("s_lshl_b32 s26, s20, 11")
    def dma(c):
        slot = c % nslot
        for i in range(2):
            a(f"s_add_u32 m0, s26, {slot*32768 + i*1024}")
            a(f"s_movk_i32 s38, {c*8192}" if c*8192 < 32768 else f"s_mov_b32 s38, {c*8192}")
            a(f"buffer_load_dwordx4 v{10+i}, s[4:7], s38 offen lds")
        for i in range(2):
            a(f"s_add_u32 m0, s26, {slot*32768 + 16384 + i*1024}")
            a(f"s_mov_b32 s38, {c*131072 + i*8192}")
            a(f"buffer_load_dwordx4 v12, s[8:11], s38 offen lds")
    for c in range(min(nslot, nchunk)): dma(c)
    tk.tick()
    a("s_lshl_b32 s38, s22, 13")
    a("s_lshl_b32 s39, s21, 10")
    a("s_add_u32 s38, s38, s39")
    a("v_add_u32 v17, s38, v4")
    a("v_and_b32 v5, 15, v1")
    a("v_lshrrev_b32 v6, 2, v5")
    a(f"v_lshlrev_b32 v7, {3 if op else 2}, v3")
    a("v_add_u32 v6, v6, v7")
    a("s_lshl_b32 s38, s22, 6")
    a("v_add_u32 v6, s38, v6")
    a("v_lshlrev_b32 v6, 7, v6")
    a("v_lshrrev_b32 v7, 4, v1")
    a("v_and_b32 v7, 1, v7")
    a("v_xor_b32 v7, s22, v7")
    a("v_lshlrev_b32 v7, 1, v7")
    a("v_bfe_u32 v9, v5, 1, 1")
    a("v_add_u32 v7, v7, v9")
    a("s_lshl_b32 s38, s25, 2")
    a("v_add_u32 v7, s38, v7")
    a("v_lshrrev_b32 v9, 3, v5")
    a("v_lshlrev_b32 v9, 2, v9")
    a("v_xor_b32 v7, v7, v9")
    a("v_lshlrev_b32 v7, 4, v7")
    a("v_add_u32 v6, v6, v7")
    a("v_and_b32 v7, 1, v5")
    a("v_lshlrev_b32 v7, 3, v7")
    a("v_add_u32 v6, v6, v7")
    a("v_add_u32 v21, 16384, v6")
    a("v_add_u32 v18, 0x10000, v17")
    a("v_add_u32 v22, 0x10000, v21")
    a("v_add_u32 v19, 0x20000, v17")
    a("v_add_u32 v23, 0x20000, v21")
    halfrow = 4 if op else 8
    ACC = 48
    for r in range(ACC, ACC+16): a(f"v_mov_b32 v{r}, 0")
    AF = [32, 36]; WF = [40, 44]
    def reads(c, s, buf):
        slot = c % nslot
        hi = slot // 2; off = (slot % 2) * 32768
        a(f"ds_read_b128 {vr(AF[buf],4)}, v{17+hi} offset:{off + s*2048}")
        for hf in range(2):
            a(f"ds_read_b64_tr_b16 {vr(WF[buf]+2*hf,2)}, v{21+hi} offset:{off + (16*s + halfrow*hf)*128}")
    def compute(buf):
        a(f"v_mfma_f32_32x32x16_bf16 {vr(ACC,16)}, {vr(WF[buf],4)}, {vr(AF[buf],4)}, {vr(ACC,16)}")
    for c in range(nchunk):
        younger = min(c + nslot - (2 if c >= 1 else 1), nchunk - 1) - c if not op else nchunk - 1 - c
        a(f"s_waitcnt vmcnt({4*younger})")
        a("s_barrier")
        tk.tick()
        if (not op) and c >= 1 and c + 4 < nchunk: dma(c + 4)
        last = (c == nchunk - 1) and (nks % 8 != 0)
        ns0 = 4
        reads(c, 0, 0)
        for s in range(4):
            if last and s == 2:
                a("s_waitcnt lgkmcnt(0)")
                a("s_cmp_eq_u32 s22, 1")
                a(f"s_cbranch_scc1 L_{name}_kdone")
            if s < 3:
                reads(c, s+1, (s+1) & 1)
                a("s_waitcnt lgkmcnt(3)")
            else:
                a("s_waitcnt lgkmcnt(0)")
            compute(s & 1)
    a.label(f"L_{name}_kdone")
    tk.tick()
    a("s_barrier")
    a("s_lshl_b32 s38, s20, 11")
    a("v_add_u32 v5, s38, v4")
    a("s_nop 7")
    a("s_nop 3")
    for q in range(2):
        a(f"ds_write_b128 v5, {vr(ACC+8+4*q,4)} offset:{q*1024}")
    a("s_waitcnt lgkmcnt(0)")
    a("s_barrier")
    a("s_xor_b32 s39, s20, 4")
    a("s_lshl_b32 s38, s39, 11")
    a("v_add_u32 v5, s38, v4")
    for q in range(2):
        a(f"ds_read_b128 {vr(32+4*q,4)}, v5 offset:{q*1024}")
    a("s_waitcnt vmcnt(0) lgkmcnt(0)")
    for j in range(8):
        src = RES + (j >> 1)
        if j & 1: a(f"v_and_b32 v{40+j}, 0xffff0000, v{src}")
        else:     a(f"v_lshlrev_b32 v{40+j}, 16, v{src}")
        a(f"v_add_f32 v{ACC+j}, v{ACC+j}, v{32+j}")
        a(f"v_add_f32 v{ACC+j}, v{ACC+j}, v{40+j}")
    for j in range(4):
        a(f"v_cvt_pk_bf16_f32 v{32+j}, v{ACC+2*j}, v{ACC+2*j+1}")
    if op:
        a(f"buffer_store_dwordx4 v[32:35], v4, s[12:15], s42 offen" + STF)
    else:
        a("v_lshlrev_b32 v9, 4, v3")
        a("v_add_u32 v9, v9, v8")
        a("v_permlane32_swap_b32 v32, v34")
        a("v_permlane32_swap_b32 v33, v35")
        a("s_nop 1")
        a(f"buffer_store_dwordx4 v[32:35], v9, s[12:15], s43 offen" + STF)
    tk.tick()
    a("s_waitcnt vmcnt(0)")
    tk.tick()
    tk.dump(20)
    a.label(f"L_{name}_end")
    a("s_endpgm")
    return name, kernel_wrap(name, a.text(), 64, 100 if TICK else 64), nslot * 32768
```

```python
from dsl import *

def gemm96(mode):
    qkv = mode == "qkv"
    name = "k1_qkv_kernel" if qkv else "k4_ffn1_kernel"
    NW = 1536 if qkv else 1376
    pitchW = NW * 2
    a = Asm()
    tk = Ticks(a, 0 if qkv else 3)
    SL = 28672; NS = 4; WOFF = 16384; NCH = 8; LOOK = 3
    a("s_cmp_ge_u32 s2, 256")
    a(f"s_cbranch_scc1 L_{name}_end")
    a("s_load_dwordx2 s[30:31], s[0:1], %d" % (KA['x'] if qkv else KA['ws']))
    a("s_load_dwordx2 s[32:33], s[0:1], %d" % (KA['wqkv'] if qkv else KA['w1']))
    a("s_load_dwordx2 s[34:35], s[0:1], %d" % KA['ws'])
    if not qkv: a("s_load_dwordx2 s[36:37], s[0:1], %d" % KA['b1'])
    a("s_and_b32 s3, s2, 7")
    a("s_lshr_b32 s38, s2, 3")
    a("s_lshr_b32 s23, s3, 1")
    a("s_lshl_b32 s23, s23, 2")
    a("s_and_b32 s39, s38, 3")
    a("s_add_u32 s23, s23, s39")
    a("s_and_b32 s24, s3, 1")
    a("s_lshl_b32 s24, s24, 3")
    a("s_lshr_b32 s39, s38, 2")
    a("s_add_u32 s24, s24, s39")
    if not qkv:
        a("s_cmp_ge_u32 s24, 15")
        a(f"s_cbranch_scc1 L_{name}_end")
    tk.tick()
    a("v_and_b32 v1, 63, v0")
    a("v_lshrrev_b32 v2, 6, v0")
    a("v_lshlrev_b32 v4, 4, v1")
    a("v_readfirstlane_b32 s20, v2")
    a("v_and_b32 v2, 31, v1")
    a("v_lshrrev_b32 v3, 5, v1")
    a("s_and_b32 s21, s20, 3")
    a("s_lshr_b32 s22, s20, 2")
    a("v_mul_u32_u24 v5, 43691, v1")
    a("v_lshrrev_b32 v5, 19, v5")
    a("v_mul_u32_u24 v6, 12, v5")
    a("v_sub_u32 v6, v1, v6")
    a("v_lshlrev_b32 v6, 4, v6")
    a("s_mul_i32 s39, s24, 192")
    a("v_add_u32 v6, s39, v6")
    if not qkv:
        a(f"v_min_u32 v6, {pitchW-16}, v6")
    a("s_lshl_b32 s38, s20, 3")
    a("v_add_u32 v5, s38, v5")
    a(f"v_mul_u32_u24 v5, {pitchW}, v5")
    a("v_add_u32 v14, v5, v6")
    if qkv:
        a("s_lshl_b32 s38, s23, 7")
        a("s_lshl_b32 s39, s20, 4")
        a("s_add_u32 s38, s38, s39")
        a("v_lshrrev_b32 v5, 3, v1")
        a("v_add_u32 v5, s38, v5")
        a("v_lshlrev_b32 v5, 10, v5")
        a("v_lshrrev_b32 v6, 4, v1")
        a("v_and_b32 v7, 7, v1")
        a("v_xor_b32 v6, v6, v7")
        a("v_lshlrev_b32 v7, 4, v6")
        a("v_add_u32 v10, v5, v7")
        a("v_xor_b32 v6, 4, v6")
        a("v_lshlrev_b32 v7, 4, v6")
        a("v_add_u32 v11, v5, v7")
        a("v_add_u32 v11, 8192, v11")
    else:
        a("s_lshl_b32 s38, s23, 2")
        a("s_lshr_b32 s39, s20, 1")
        a("s_add_u32 s38, s38, s39")
        a("s_lshl_b32 s38, s38, 5")
        a("s_and_b32 s39, s20, 1")
        a("s_lshl_b32 s39, s39, 1")
        a("s_add_u32 s38, s38, s39")
        a("s_lshl_b32 s38, s38, 10")
        a("v_add_u32 v10, s38, v4")
    a("s_lshl_b32 s25, s20, 11")
    a("s_mul_i32 s26, s20, 1536")
    a(f"s_add_u32 s26, s26, {WOFF}")
    a("s_mov_b32 s46, -1")
    a("s_mov_b32 s47, 0xffff")
    a("s_waitcnt lgkmcnt(0)")
    if qkv:
        srd(a, 4, 30, 2048*1024)
        srd(a, 12, 34, 6*MB)
    else:
        srd(a, 4, 30, 2*MB, add=WS_HF)
        srd(a, 12, 34, 64*AF_KS*1024, add=WS_AF)
        srd(a, 16, 36, 1376*2)
    srd(a, 8, 32, 512*pitchW)
    issued = []
    def piece(c, p):
        slot = (c % NS) * SL
        if p < 2:
            i = p
            if qkv:
                a(f"s_add_u32 m0, s25, {slot + i*1024}")
                a(f"s_movk_i32 s38, {c*128}")
                a(f"buffer_load_dwordx4 v{10+i}, s[4:7], s38 offen lds")
            else:
                a(f"s_add_u32 m0, s25, {slot}")
                a(f"s_movk_i32 s38, {c*4096}")
                a(f"buffer_load_dwordx4 v10, s[4:7], s38 offen offset:{i*1024} lds")
        else:
            i = p - 2
            a(f"s_add_u32 m0, s26, {slot + i*768}")
            a(f"s_mov_b32 s38, {(c*64 + 4*i)*pitchW}")
            a("s_mov_b64 exec, s[46:47]")
            a(f"buffer_load_dwordx4 v14, s[8:11], s38 offen lds")
            a("s_mov_b64 exec, -1")
        issued.append(c)
    def dma(c):
        for p in range(4): piece(c, p)
    def younger(c):
        last = max(i for i, x in enumerate(issued) if x == c)
        return len(issued) - 1 - last
    pend = []
    def slot_hook(n=1):
        for _ in range(n):
            if pend: piece(*pend.pop(0))
    dma(0)
    if not qkv:
        pass
    if int(os.environ.get("OB96", "0")): a("s_barrier")
    dma(1)
    tk.tick()
    for b in range(3):
        a(f"s_add_u32 s{27+b}, s21, {b}")
        a(f"s_cmp_ge_u32 s{27+b}, 3")
        a(f"s_cselect_b32 s38, 3, 0")
        a(f"s_sub_u32 s{27+b}, s{27+b}, s38")
    if not qkv:
        a("s_mul_i32 s38, s24, 192")
        a("s_lshl_b32 s39, s22, 5")
        a("s_add_u32 s38, s38, s39")
        a("v_lshlrev_b32 v5, 3, v3")
        a("v_add_u32 v5, s38, v5")
        for b in range(3):
            a(f"s_lshl_b32 s38, s{27+b}, 6")
            for q in range(2):
                a(f"buffer_load_dwordx2 v[{28+4*b+2*q}:{29+4*b+2*q}], v5, s[16:19], s38 offen offset:{16*q}")
                issued.append("b1")
    NB1 = 0 if qkv else 6
    if qkv:
        a("s_lshl_b32 s38, s21, 12")
        a("v_lshlrev_b32 v5, 7, v2")
        a("v_add_u32 v5, s38, v5")
        a("v_bfe_u32 v6, v2, 1, 3")
        a("v_xor_b32 v6, v6, v3")
        a("s_lshl_b32 s39, s22, 2")
        a("v_xor_b32 v6, s39, v6")
        a("v_lshlrev_b32 v7, 4, v6")
        a("v_add_u32 v16, v5, v7")
        a("v_xor_b32 v6, 2, v6")
        a("v_lshlrev_b32 v7, 4, v6")
        a("v_add_u32 v17, v5, v7")
        a(f"v_add_u32 v18, {2*SL}, v16")
        a(f"v_add_u32 v19, {2*SL}, v17")
    else:
        a("s_lshl_b32 s38, s21, 12")
        a("s_lshl_b32 s39, s22, 11")
        a("s_add_u32 s38, s38, s39")
        a("v_add_u32 v16, s38, v4")
        a(f"v_add_u32 v18, {2*SL}, v16")
    a("v_and_b32 v5, 15, v1")
    a("v_lshrrev_b32 v6, 2, v5")
    a(f"v_lshlrev_b32 v7, {3 if qkv else 2}, v3")
    a("v_add_u32 v6, v6, v7")
    a("s_lshl_b32 s38, s22, 5")
    a("v_add_u32 v6, s38, v6")
    a("v_mul_u32_u24 v6, 192, v6")
    a("v_bfe_u32 v7, v1, 4, 1")
    a("v_xor_b32 v8, s22, v7")
    a("v_lshlrev_b32 v8, 5, v8")
    a("v_add_u32 v6, v6, v8")
    a("v_and_b32 v8, 3, v5")
    a("v_lshlrev_b32 v8, 3, v8")
    a("v_add_u32 v6, v6, v8")
    for b in range(3):
        a(f"s_lshl_b32 s38, s{27+b}, 6")
        a(f"s_add_u32 s38, s38, {WOFF}")
        a(f"v_add_u32 v{20+b}, s38, v6")
        a(f"v_add_u32 v{23+b}, {2*SL}, v{20+b}")
    halfrow = 4 if qkv else 8
    SEL = 64; CSA = 68; S1 = 26 if qkv else 8; S2 = 12; TMP = 120
    S1 = 8; S2 = 12
    a("v_cmp_eq_u32 vcc, v5, v7")
    a("v_mov_b32 v9, 0x3f803f80")
    for r in range(4): a(f"v_cndmask_b32 v{SEL+r}, 0, v9, vcc")
    for r in (8, 9, 12, 13): a(f"v_mov_b32 v{r}, 0")
    for r in range(CSA, CSA+4): a(f"v_mov_b32 v{r}, 0")
    for r in range(72, 120): a(f"v_mov_b32 v{r}, 0")
    a("s_mov_b32 s45, 0xffff0000")
    AF = [40, 44]; WF = [48, 60] ; ACC = 72
    WF = [128, 140]
    def reads(c, s, buf):
        slot = c % NS
        grp = slot // 2; off = (slot % 2) * SL
        if qkv:
            a(f"ds_read_b128 {vr(AF[buf],4)}, v{16+2*grp+s} offset:{off}")
        else:
            a(f"ds_read_b128 {vr(AF[buf],4)}, v{16+2*grp} offset:{off + s*1024}")
        for b in range(3):
            for hf in range(2):
                a(f"ds_read_b64_tr_b16 {vr(WF[buf]+4*b+2*hf,2)}, v{20+3*grp+b} offset:{off + (16*s + halfrow*hf)*192}")
    XP = os.environ.get("XP", "")
    def stats(reg, k):
        if "S" in XP: return
        t = TMP + 2*(k & 1)
        a(f"v_lshlrev_b32 v{t}, 16, v{reg}")
        a(f"v_and_b32 v{t+1}, s45, v{reg}")
        if "P" in XP:
            a(f"v_pk_add_f32 v[{S1}:{S1+1}], v[{S1}:{S1+1}], v[{t}:{t+1}]")
            a(f"v_pk_fma_f32 v[{S2}:{S2+1}], v[{t}:{t+1}], v[{t}:{t+1}], v[{S2}:{S2+1}]")
        else:
            a(f"v_add_f32 v{S1}, v{S1}, v{t}")
            a(f"v_fmac_f32 v{S2}, v{t}, v{t}")
            a(f"v_add_f32 v{S1+1}, v{S1+1}, v{t+1}")
            a(f"v_fmac_f32 v{S2+1}, v{t+1}, v{t+1}")
    def compute(buf, per=1):
        for b in range(3):
            a(f"v_mfma_f32_32x32x16_bf16 {vr(ACC+16*b,16)}, {vr(WF[buf]+4*b,4)}, {vr(AF[buf],4)}, {vr(ACC+16*b,16)}")
            slot_hook(per)
            if b == 0: stats(AF[buf], 0)
            if b == 1: stats(AF[buf]+1, 1); stats(AF[buf]+2, 0)
            if b == 2: stats(AF[buf]+3, 1)
        if "C" not in XP: a(f"v_mfma_f32_16x16x32_bf16 {vr(CSA,4)}, {vr(WF[buf],4)}, {vr(SEL,4)}, {vr(CSA,4)}")
        slot_hook(per)
    a(f"s_waitcnt vmcnt({younger(0)})")
    a("s_barrier")
    tk.tick()
    reads(0, 0, 0)
    pend += [(2, p) for p in range(4)]
    for c in range(NCH):
        reads(c, 1, 1)
        a("s_waitcnt lgkmcnt(7)")
        compute(0)
        if c < NCH - 1:
            a(f"s_waitcnt vmcnt({younger(c+1)})")
            a("s_barrier")
            if c in (1, 3, 5): tk.tick()
            if c + LOOK < NCH: pend += [(c + LOOK, p) for p in range(4)]
            reads(c + 1, 0, 0)
            a("s_waitcnt lgkmcnt(7)")
        else:
            a("s_waitcnt lgkmcnt(0)")
        compute(1)
    assert not pend
    tk.tick()
    EX, ST, CS = 0, 49152, 53248
    a(f"v_add_f32 v8, v8, v9")
    a(f"v_add_f32 v9, v12, v13")
    a("v_mov_b32 v12, v8")
    a("v_mov_b32 v13, v9")
    a("s_mul_i32 s38, s20, 6144")
    a("v_add_u32 v5, s38, v4")
    a("v_permlane32_swap_b32 v8, v12")
    a("v_permlane32_swap_b32 v9, v13")
    a("s_lshl_b32 s38, s20, 9")
    a("v_lshlrev_b32 v6, 3, v1")
    a("v_add_u32 v7, s38, v6")
    a("v_add_f32 v8, v8, v12")
    a("v_add_f32 v9, v9, v13")
    a("v_and_b32 v10, 15, v1")
    a("v_xor_b32 v10, s22, v10")
    a("v_lshlrev_b32 v10, 6, v10")
    a("v_lshrrev_b32 v11, 4, v1")
    a("v_lshlrev_b32 v11, 4, v11")
    a("v_add_u32 v10, v10, v11")
    a("s_mul_i32 s38, s22, 384")
    a("s_lshl_b32 s39, s27, 7")
    a("s_add_u32 s38, s38, s39")
    a("v_add_u32 v10, s38, v10")
    a("s_nop 3")
    a(f"ds_write_b64 v7, v[8:9] offset:{ST}")
    for b in range(3):
        for q in range(2):
            a(f"ds_write_b128 v5, {vr(ACC+16*b+8+4*q,4)} offset:{EX + (2*b+q)*1024}")
    a("s_mov_b32 s46, 0x00030003")
    a("s_mov_b32 s47, 0x00030003")
    a("s_mov_b64 exec, s[46:47]")
    a(f"ds_write_b128 v10, {vr(CSA,4)} offset:{CS}")
    a("s_mov_b64 exec, -1")
    a("s_xor_b32 s39, s20, 4")
    a("s_mul_i32 s38, s39, 6144")
    a("v_add_u32 v5, s38, v4")
    a("s_lshl_b32 s38, s39, 9")
    a("v_add_u32 v7, s38, v6")
    a("s_lshl_b32 s38, s22, 6")
    a("v_lshlrev_b32 v10, 4, v3")
    a("v_add_u32 v10, s38, v10")
    a("s_waitcnt lgkmcnt(0)")
    a("s_barrier")
    PX = 128
    a(f"ds_read_b64 v[40:41], v7 offset:{ST}")
    for i in range(6):
        a(f"ds_read_b128 {vr(PX+4*i,4)}, v5 offset:{EX + i*1024}")
    CSR = 152
    for b in range(3):
        a(f"s_lshl_b32 s38, s{27+b}, 7")
        a(f"v_add_u32 v{16+b}, s38, v10")
    for k2 in range(2):
        for b in range(3):
            for q in range(2):
                a(f"ds_read_b128 {vr(CSR+24*k2+8*b+4*q,4)}, v{16+b} offset:{CS + k2*384 + q*32}")
    a("s_waitcnt lgkmcnt(15)")
    a("v_add_f32 v22, v8, v40")
    a("v_add_f32 v23, v9, v41")
    a("v_mul_f32 v22, 0x3b000000, v22")
    a("v_mul_f32 v23, 0x3b000000, v23")
    a("v_fma_f32 v23, -v22, v22, v23")
    a("v_max_f32 v23, 0, v23")
    a("v_add_f32 v23, 0x3727c5ac, v23")
    a("v_rsq_f32 v23, v23")
    a("s_lshl_b32 s40, s23, 2")
    a("s_add_u32 s40, s40, s21")
    a("v_lshlrev_b32 v9, 5, v2")
    a("v_lshlrev_b32 v10, 4, v3")
    a("v_add_u32 v9, v9, v10")
    a("v_mul_f32 v22, v22, v23")
    a("s_waitcnt lgkmcnt(0)")
    tk.tick()
    for i in range(24):
        a(f"v_add_f32 v{CSR+i}, v{CSR+i}, v{CSR+24+i}")
    for b in range(3):
        A0 = ACC + 16*b
        a("s_mul_i32 s41, s24, 6")
        a("s_add_u32 s41, s41, s22")
        a(f"s_lshl_b32 s38, s{27+b}, 1")
        a(f"s_add_u32 s41, s41, s38")
        if qkv:
            a("s_lshl_b32 s42, s41, 16")
            a("s_lshl_b32 s43, s40, 10")
            a("s_add_u32 s42, s42, s43")
            a("s_cmp_lt_u32 s41, 32")
            a("s_cselect_b32 s44, 0x3eb8aa3b, 1.0")
            a("v_mul_f32 v11, s44, v23")
            a("v_mul_f32 v12, s44, v22")
            a("s_cmp_ge_u32 s41, 64")
            a("s_cselect_b64 vcc, -1, 0")
            a("v_cndmask_b32 v13, v4, v9, vcc")
            for j in range(8):
                a(f"v_add_f32 v{A0+j}, v{A0+j}, v{PX+8*b+j}")
                a(f"v_mul_f32 v{CSR+24+j}, v12, v{CSR+8*b+j}")
                a(f"v_fma_f32 v{A0+j}, v11, v{A0+j}, -v{CSR+24+j}")
            for j in range(4):
                a(f"v_cvt_pk_bf16_f32 v{PX+8*b+j}, v{A0+2*j}, v{A0+2*j+1}")
            a(f"buffer_store_dwordx4 {vr(PX+8*b,4)}, v13, s[12:15], s42 offen" + STF)
        else:
            a(f"s_mul_i32 s42, s40, {AF_KS}")
            a("s_add_u32 s42, s42, s41")
            a("s_lshl_b32 s42, s42, 10")
            if b == 0: a("s_waitcnt vmcnt(0)")
            for j in range(8):
                x = A0 + j; t1 = A0 + 8 + j
                bsrc = 28 + 4*b + (j >> 1)
                if j & 1: a(f"v_and_b32 v{t1}, s45, v{bsrc}")
                else:     a(f"v_lshlrev_b32 v{t1}, 16, v{bsrc}")
                a(f"v_fma_f32 v{t1}, -v22, v{CSR+8*b+j}, v{t1}")
                a(f"v_add_f32 v{x}, v{x}, v{PX+8*b+j}")
                a(f"v_fma_f32 v{x}, v23, v{x}, v{t1}")
                a(f"v_min_f32 v{t1}, 0x41f00000, v{x}")
                a(f"v_mul_f32 v{t1}, 0x3fb8aa3b, v{t1}")
            for j in range(8):
                a(f"v_exp_f32 v{A0+8+j}, v{A0+8+j}")
            for j in range(8):
                t1 = A0 + 8 + j; t2 = CSR + 8*b + j
                a(f"v_add_f32 v{t2}, 2.0, v{t1}")
                a(f"v_mul_f32 v{t1}, v{t1}, v{t2}")
                a(f"v_add_f32 v{t2}, 2.0, v{t1}")
            for j in range(8):
                a(f"v_rcp_f32 v{CSR+8*b+j}, v{CSR+8*b+j}")
            for j in range(8):
                a(f"v_mul_f32 v{A0+j}, v{A0+j}, v{A0+8+j}")
            for j in range(8):
                a(f"v_mul_f32 v{A0+j}, v{A0+j}, v{CSR+8*b+j}")
            for j in range(4):
                a(f"v_cvt_pk_bf16_f32 v{PX+8*b+j}, v{A0+2*j}, v{A0+2*j+1}")
            a(f"buffer_store_dwordx4 {vr(PX+8*b,4)}, v4, s[12:15], s42 offen" + STF)
    tk.tick()
    if TICK: a("s_waitcnt vmcnt(0)")
    tk.tick()
    tk.dump(20)
    a.label(f"L_{name}_end")
    a("s_endpgm")
    return name, kernel_wrap(name, a.text(), 200, 100 if TICK else 64), NS * SL
```

```python
from dsl import *

PF = int(os.environ.get("PF", "1"))
AD = int(os.environ.get("AD", "0"))
def attn():
    name = "k2_attn_kernel"
    a = Asm()
    tk = Ticks(a, 1)
    ONES = 131072; SCR = ONES + 4608
    Q, KF, VF, P, S, O, NM = 8, [12, 16], [20, 28], [36, 44], [52, 68], 84, 100
    T0 = 116
    a("s_cmp_ge_u32 s2, 256")
    a(f"s_cbranch_scc1 L_{name}_end")
    a("s_load_dwordx2 s[30:31], s[0:1], %d" % KA['ws'])
    a("s_load_dwordx2 s[44:45], s[0:1], %d" % KA['wo'])
    a("s_load_dwordx2 s[46:47], s[0:1], %d" % KA['w1'])
    a("s_load_dwordx2 s[48:49], s[0:1], %d" % KA['w2'])
    a("s_and_b32 s23, s2, 7")
    a("s_lshr_b32 s38, s2, 3")
    a("s_and_b32 s38, s38, 3")
    a("s_lshl_b32 s38, s38, 3")
    a("s_add_u32 s23, s23, s38")
    a("s_lshr_b32 s24, s2, 5")
    tk.tick()
    a("v_and_b32 v1, 63, v0")
    a("v_lshrrev_b32 v2, 6, v0")
    a("s_nop 0")
    a("v_readfirstlane_b32 s20, v2")
    a("s_nop 3")
    a("s_and_b32 s21, s20, 7")
    a("s_lshr_b32 s22, s20, 3")
    a("v_lshlrev_b32 v4, 4, v1")
    a("s_lshr_b32 s38, s20, 1")
    a("s_and_b32 s38, s38, 1")
    a("s_lshl_b32 s38, s38, 5")
    a("s_lshr_b32 s35, s20, 2")
    if AD:
        a("s_lshl_b32 s39, s35, 1")
        a("s_mul_i32 s52, s35, 4")
        a("s_add_u32 s52, s52, 8")
        a("s_lshl_b32 s52, s52, 10")
    else:
        a("s_lshl_b32 s39, s35, 3")
    a("s_add_u32 s38, s38, s39")
    a("s_lshl_b32 s38, s38, 10")
    a("s_and_b32 s39, s20, 1")
    a("s_lshl_b32 s25, s39, 16")
    a("s_add_u32 s25, s25, s38")
    a("s_lshl_b32 s26, s39, 21")
    a("s_add_u32 s26, s26, s38")
    a("s_lshl_b32 s39, s23, 16")
    a("s_add_u32 s26, s26, s39")
    a("s_lshl_b32 s27, s24, 3")
    a("s_add_u32 s27, s27, s21")
    a("s_lshl_b32 s28, s27, 10")
    a("s_add_u32 s28, s28, s39")
    a("s_waitcnt lgkmcnt(0)")
    srd(a, 4, 30, 4*MB, add=WS_KF)
    srd(a, 8, 30, 2*MB, add=WS_QF)
    srd(a, 12, 30, 2*MB, add=WS_OF)
    a(f"buffer_load_dwordx4 {vr(Q,4)}, v4, s[8:11], s28 offen")
    srd(a, 40, 44, 512*512*2)
    a("s_lshr_b32 s51, s2, 3")
    a("s_lshl_b32 s51, s51, 4")
    a("s_add_u32 s51, s51, s20")
    a("s_lshl_b32 s51, s51, 10")
    a("s_mov_b32 s50, s51")
    def kvdma():
        for r in range(8):
            a(f"s_add_u32 m0, s25, {(r&3)*1024 + (r>>2)*4096}")
            if (r & 3) == 0: a(f"s_add_u32 s38, s26, {(r>>2)*4096}")
            a(f"buffer_load_dwordx4 v4, s[4:7], s38 offen offset:{(r&3)*1024} lds" if False else f"buffer_load_dwordx4 v4, s[4:7], s38 offen lds")
            if (r & 3) != 3: a("s_add_u32 s38, s38, 1024")
    def kvdma2(n, ls, gs):
        for r in range(n):
            a(f"s_add_u32 m0, {ls}, {r*1024}")
            a(f"s_add_u32 s38, {gs}, {r*1024}")
            a(f"buffer_load_dwordx4 v4, s[4:7], s38 offen lds")
    if AD:
        kvdma2(2, "s25", "s26")
        a("s_barrier")
        a("s_add_u32 s25, s25, s52")
        a("s_add_u32 s26, s26, s52")
        kvdma2(6, "s25", "s26")
    else:
        a("s_cmp_eq_u32 s35, 0")
        a("s_cbranch_scc0 L_attn_nodma0")
        kvdma()
        a.label("L_attn_nodma0")
    a("v_mov_b32 v5, 0x3f803f80")
    a("v_lshlrev_b32 v6, 2, v0")
    a(f"v_add_u32 v6, {ONES}, v6")
    a("ds_write_b32 v6, v5")
    a("ds_write_b32 v6, v5 offset:512")
    a("s_lshl_b32 s29, s22, 15")
    a("v_add_u32 v2, s29, v4")
    a("v_lshrrev_b32 v5, 5, v1")
    a("v_and_b32 v6, 15, v1")
    a("v_lshlrev_b32 v6, 3, v6")
    a("v_lshlrev_b32 v3, 7, v5")
    a("v_add_u32 v3, v3, v6")
    a("v_xor_b32 v7, 128, v3")
    a(f"v_add_u32 v7, {ONES}, v7")
    a("s_add_u32 s38, s29, 65536")
    a("v_add_u32 v3, s38, v3")
    a("v_and_b32 v6, 16, v1")
    a("v_cmp_ne_u32 vcc, 0, v6")
    a("s_nop 1")
    a("v_cndmask_b32 v3, v3, v7, vcc")
    a("v_mov_b32 v6, 4096")
    a("v_cndmask_b32 v7, v6, 0, vcc")
    a("v_mov_b32 v5, v3")
    a("v_mov_b32 v6, v2")
    a("s_mov_b32 s33, 0")
    tk.tick()
    a(f"s_waitcnt vmcnt({6 if AD else 0}) lgkmcnt(0)")
    a("s_barrier")
    tk.tick()
    if not AD:
        a("s_cmp_eq_u32 s35, 0")
        a("s_cbranch_scc1 L_attn_nodma1")
        kvdma()
        a.label("L_attn_nodma1")
    a(f"ds_read_b128 {vr(KF[0],4)}, v2")
    a("s_waitcnt lgkmcnt(0)")
    a(f"v_mfma_f32_32x32x16_bf16 {vr(S[0],16)}, {vr(KF[0],4)}, {vr(Q,4)}, 0")
    a("s_nop 15")
    a("s_nop 3")
    def maxtree(dst, src, init):
        first = True
        if init:
            a(f"v_max3_f32 v{dst}, v{src}, v{src+1}, v{src+2}")
            rest = list(range(src+3, src+16))
        else:
            rest = list(range(src, src+16))
        while len(rest) >= 2:
            a(f"v_max3_f32 v{dst}, v{dst}, v{rest[0]}, v{rest[1]}"); rest = rest[2:]
        if rest: a(f"v_max_f32 v{dst}, v{dst}, v{rest[0]}")
    maxtree(T0, S[0], True)
    a.label("L_attn_setmax")
    a(f"v_mov_b32 v{T0+1}, v{T0}")
    a("s_nop 1")
    a(f"v_permlane32_swap_b32 v{T0}, v{T0+1}")
    a("s_nop 1")
    a(f"v_max_f32 v{T0}, v{T0}, v{T0+1}")
    for r in range(16): a(f"v_sub_f32 v{NM+r}, 0, v{T0}")
    for r in range(16): a(f"v_mov_b32 v{O+r}, 0")
    for r in range(8):
        a(f"v_mov_b32 v{P[1]+r}, 0")
        a(f"v_mov_b32 v{VF[1]+r}, 0")
    a("v_mov_b32 v2, v6")
    a("v_mov_b32 v3, v5")
    a(f"ds_read_b128 {vr(KF[0],4)}, v2")
    a(f"ds_read_b128 {vr(KF[1],4)}, v2 offset:1024")
    a("s_waitcnt lgkmcnt(1)")
    a(f"v_mfma_f32_32x32x16_bf16 {vr(S[0],16)}, {vr(KF[0],4)}, {vr(Q,4)}, {vr(NM,16)}")
    a("s_nop 7")
    a("s_mov_b32 s32, 0")
    tk.tick()
    a.label("L_attn_loop")
    a("s_cmp_eq_u32 s32, 1")
    a("s_cbranch_scc0 L_attn_nosync")
    a("s_cmp_eq_u32 s33, 0")
    a("s_cbranch_scc0 L_attn_nosync")
    tk.tick()
    a("s_waitcnt vmcnt(0)")
    a("s_barrier")
    tk.tick()
    a.label("L_attn_nosync")
    if PF:
        a("s_cmp_eq_u32 s32, 0")
        a("s_cbranch_scc1 L_attn_nopf")
        a("s_cmp_eq_u32 s33, 0")
        a("s_cbranch_scc0 L_attn_nopf")
        a("s_cmp_eq_u32 s32, 2")
        a("s_cselect_b32 s40, s46, s40")
        a("s_cselect_b32 s41, s47, s41")
        a(f"s_cselect_b32 s42, {512*1376*2}, s42")
        a("s_cselect_b32 s50, s51, s50")
        a("s_cmp_eq_u32 s32, 5")
        a("s_cselect_b32 s40, s48, s40")
        a("s_cselect_b32 s41, s49, s41")
        a("s_cselect_b32 s50, s51, s50")
        a("buffer_load_dwordx4 v[124:127], v4, s[40:43], s50 offen")
        a("s_add_u32 s50, s50, 0x80000")
        a.label("L_attn_nopf")
    for u in range(4):
        p = u & 1
        a("s_waitcnt lgkmcnt(0)")
        a(f"v_mfma_f32_32x32x16_bf16 {vr(S[p^1],16)}, {vr(KF[p^1],4)}, {vr(Q,4)}, {vr(NM,16)}")
        a(f"ds_read_b128 {vr(KF[p],4)}, v2 offset:{(u+2)*1024}")
        for r in range(4):
            a(f"ds_read_b64_tr_b16 {vr(VF[p]+2*r,2)}, v3 offset:{u*1024 + r*256}")
        s = S[p]
        for i in range(8):
            a(f"v_exp_f32 v{s+2*i}, v{s+2*i}")
            a(f"v_exp_f32 v{s+2*i+1}, v{s+2*i+1}")
            if i > 0: a(f"v_cvt_pk_bf16_f32 v{P[p]+i-1}, v{s+2*i-2}, v{s+2*i-1}")
            if i == 2: a(f"v_mfma_f32_32x32x16_bf16 {vr(O,16)}, {vr(VF[p^1],4)}, {vr(P[p^1],4)}, {vr(O,16)}")
            if i == 5: a(f"v_mfma_f32_32x32x16_bf16 {vr(O,16)}, {vr(VF[p^1]+4,4)}, {vr(P[p^1]+4,4)}, {vr(O,16)}")
        a("s_nop 0")
        a(f"v_cvt_pk_bf16_f32 v{P[p]+7}, v{s+14}, v{s+15}")
    a("v_add_u32 v2, 4096, v2")
    a("v_add_u32 v3, v3, v7")
    a("s_add_u32 s32, s32, 1")
    a("s_cmp_lt_u32 s32, 8")
    a("s_cbranch_scc1 L_attn_loop")
    a("s_waitcnt lgkmcnt(0)")
    a(f"v_mfma_f32_32x32x16_bf16 {vr(O,16)}, {vr(VF[1],4)}, {vr(P[1],4)}, {vr(O,16)}")
    a(f"v_mfma_f32_32x32x16_bf16 {vr(O,16)}, {vr(VF[1]+4,4)}, {vr(P[1]+4,4)}, {vr(O,16)}")
    a("s_nop 15")
    a("s_nop 3")
    tk.tick()
    a("s_cmp_eq_u32 s33, 0")
    a("s_cbranch_scc0 L_attn_done")
    a("s_mov_b32 s34, 0x5f800000")
    a(f"v_cmp_nle_f32 s[36:37], v{O+8}, s34")
    a("v_mov_b32 v%d, 0x207" % (T0+1))
    for r in range(8):
        a(f"v_cmp_class_f32 vcc, v{O+r}, v{T0+1}")
        a("s_or_b64 s[36:37], s[36:37], vcc")
    a("s_cmp_eq_u64 s[36:37], 0")
    a("s_cbranch_scc1 L_attn_done")
    a("s_mov_b32 s33, 1")
    a("s_waitcnt vmcnt(0)")
    a("v_mov_b32 v2, v6")
    a(f"v_mov_b32 v{T0}, 0xff800000")
    a("s_mov_b32 s32, 0")
    a.label("L_attn_maxloop")
    a(f"ds_read_b128 {vr(KF[0],4)}, v2")
    a("s_waitcnt lgkmcnt(0)")
    a(f"v_mfma_f32_32x32x16_bf16 {vr(S[0],16)}, {vr(KF[0],4)}, {vr(Q,4)}, 0")
    a("s_nop 15")
    a("s_nop 3")
    maxtree(T0, S[0], False)
    a("v_add_u32 v2, 1024, v2")
    a("s_add_u32 s32, s32, 1")
    a("s_cmp_lt_u32 s32, 32")
    a("s_cbranch_scc1 L_attn_maxloop")
    a("s_branch L_attn_setmax")
    a.label("L_attn_done")
    a("s_mul_i32 s38, s21, 2560")
    a(f"s_add_u32 s38, s38, {SCR}")
    a("v_lshlrev_b32 v2, 2, v1")
    a("v_add_u32 v2, s38, v2")
    a("s_cmp_eq_u32 s22, 0")
    a("s_cbranch_scc1 L_attn_h0")
    for r in range(9): a(f"ds_write_b32 v2, v{O+r} offset:{r*256}")
    a(f"ds_write_b32 v2, v{T0} offset:{9*256}")
    a("s_waitcnt lgkmcnt(0)")
    a("s_barrier")
    a(f"s_branch L_attn_fin")
    a.label("L_attn_h0")
    a("s_barrier")
    for r in range(10): a(f"ds_read_b32 v{S[0]+r}, v2 offset:{r*256}")
    a("s_waitcnt lgkmcnt(0)")
    m1 = S[0] + 9
    a(f"v_max_f32 v{T0+1}, v{T0}, v{m1}")
    a(f"v_sub_f32 v{T0+2}, v{T0}, v{T0+1}")
    a(f"v_sub_f32 v{T0+3}, v{m1}, v{T0+1}")
    a(f"v_exp_f32 v{T0+2}, v{T0+2}")
    a(f"v_exp_f32 v{T0+3}, v{T0+3}")
    a("s_nop 0")
    for r in range(9):
        a(f"v_mul_f32 v{O+r}, v{O+r}, v{T0+2}")
        a(f"v_fma_f32 v{O+r}, v{S[0]+r}, v{T0+3}, v{O+r}")
    a(f"v_rcp_f32 v{T0+4}, v{O+8}")
    a("s_nop 0")
    for r in range(8): a(f"v_mul_f32 v{O+r}, v{O+r}, v{T0+4}")
    for j in range(4): a(f"v_cvt_pk_bf16_f32 v{P[0]+j}, v{O+2*j}, v{O+2*j+1}")
    a("s_lshl_b32 s38, s27, 5")
    a("s_add_u32 s38, s38, s23")
    a("s_lshl_b32 s38, s38, 10")
    a(f"buffer_store_dwordx4 {vr(P[0],4)}, v4, s[12:15], s38 offen" + STF)
    a.label("L_attn_fin")
    tk.tick()
    a("s_waitcnt vmcnt(0)")
    tk.tick()
    tk.dump(20)
    a.label(f"L_{name}_end")
    a("s_endpgm")
    return name, kernel_wrap(name, a.text(), 128, 100 if TICK else 64), SCR + 8*2560
```

```python
import os
from dsl import *

def gemm64(mode):
    op = mode == "oproj"
    name = "k3_oproj_kernel" if op else "k5_ffn2_kernel"
    nks = 32 if op else 86
    nchunk = (nks + 7) // 8
    nslot = 4 if op else 5
    kspitch = 32 if op else AF_KS
    a = Asm()
    tk = Ticks(a, 2 if op else 4)
    a("s_cmp_ge_u32 s2, 256")
    a(f"s_cbranch_scc1 L_{name}_end")
    a("s_load_dwordx2 s[30:31], s[0:1], %d" % KA['ws'])
    a("s_load_dwordx2 s[32:33], s[0:1], %d" % (KA['wo'] if op else KA['w2']))
    a("s_load_dwordx2 s[34:35], s[0:1], %d" % (KA['x'] if op else KA['out']))
    a("s_and_b32 s3, s2, 7")
    a("s_lshr_b32 s38, s2, 3")
    a("s_lshl_b32 s23, s3, 2")
    a("s_and_b32 s39, s38, 3")
    a("s_add_u32 s23, s23, s39")
    a("s_lshr_b32 s24, s38, 2")
    tk.tick()
    a("v_and_b32 v1, 63, v0")
    a("v_lshrrev_b32 v2, 6, v0")
    a("s_nop 0")
    a("v_readfirstlane_b32 s20, v2")
    a("s_nop 3")
    a("s_and_b32 s21, s20, 1")
    a("s_lshr_b32 s22, s20, 2")
    a("s_lshr_b32 s25, s20, 1")
    a("s_and_b32 s25, s25, 1")
    a("v_and_b32 v2, 31, v1")
    a("v_lshrrev_b32 v3, 5, v1")
    a("s_lshl_b32 s38, s23, 1")
    a(f"s_mul_i32 s38, s38, {kspitch}")
    a("s_add_u32 s38, s38, s20")
    a("s_lshl_b32 s38, s38, 10")
    a("v_lshlrev_b32 v4, 4, v1")
    a("v_add_u32 v10, s38, v4")
    a(f"v_add_u32 v11, {kspitch*1024}, v10")
    a("v_lshrrev_b32 v5, 3, v1")
    a("s_lshl_b32 s38, s20, 4")
    a("v_add_u32 v5, s38, v5")
    a("v_lshlrev_b32 v5, 10, v5")
    a("v_lshrrev_b32 v6, 4, v1")
    a("v_and_b32 v6, 1, v6")
    a("v_lshlrev_b32 v6, 2, v6")
    a("v_and_b32 v7, 7, v1")
    a("v_xor_b32 v6, v6, v7")
    a("v_lshlrev_b32 v6, 4, v6")
    a("v_add_u32 v5, v5, v6")
    a("s_lshl_b32 s38, s24, 7")
    a("v_add_u32 v12, s38, v5")
    a("s_lshl_b32 s40, s23, 1")
    a("s_add_u32 s40, s40, s21")
    a("s_lshl_b32 s41, s24, 2")
    a("s_lshl_b32 s38, s25, 1")
    a("s_add_u32 s41, s41, s38")
    a("s_add_u32 s41, s41, s22")
    a("s_lshl_b32 s42, s40, 5")
    a("s_add_u32 s42, s42, s41")
    a("s_lshl_b32 s42, s42, 10")
    a("s_lshl_b32 s43, s40, 15")
    a("s_lshl_b32 s38, s41, 5")
    a("s_add_u32 s43, s43, s38")
    a("v_lshlrev_b32 v8, 10, v2")
    a("s_waitcnt lgkmcnt(0)")
    if op:
        srd(a, 4, 30, 2*MB, add=WS_OF)
        srd(a, 12, 30, 2*MB, add=WS_HF)
        srd(a, 16, 34, 2*MB)
    else:
        srd(a, 4, 30, 64*AF_KS*1024, add=WS_AF)
        srd(a, 12, 34, 2*MB)
        srd(a, 16, 30, 2*MB, add=WS_HF)
    srd(a, 8, 32, nks*16*1024)
    RES = 28
    if op:
        a("v_lshlrev_b32 v9, 3, v3")
        a("v_add_u32 v9, v9, v8")
        a(f"buffer_load_dwordx2 v[{RES}:{RES+1}], v9, s[16:19], s43 offen")
        a(f"buffer_load_dwordx2 v[{RES+2}:{RES+3}], v9, s[16:19], s43 offen offset:16")
    else:
        a(f"buffer_load_dwordx4 v[{RES}:{RES+3}], v4, s[16:19], s42 offen")
    a("s_lshl_b32 s26, s20, 11")
    def dma(c):
        slot = c % nslot
        for i in range(2):
            a(f"s_add_u32 m0, s26, {slot*32768 + i*1024}")
            a(f"s_movk_i32 s38, {c*8192}" if c*8192 < 32768 else f"s_mov_b32 s38, {c*8192}")
            a(f"buffer_load_dwordx4 v{10+i}, s[4:7], s38 offen lds")
        for i in range(2):
            a(f"s_add_u32 m0, s26, {slot*32768 + 16384 + i*1024}")
            a(f"s_mov_b32 s38, {c*131072 + i*8192}")
            a(f"buffer_load_dwordx4 v12, s[8:11], s38 offen lds")
    OB = int(os.environ.get("OB", "1"))
    for c in range(min(nslot, nchunk)):
        dma(c)
        if OB and c < min(nslot, nchunk) - 1 and c < OB: a("s_barrier")
    tk.tick()
    a("s_lshl_b32 s38, s22, 13")
    a("s_lshl_b32 s39, s21, 10")
    a("s_add_u32 s38, s38, s39")
    a("v_add_u32 v17, s38, v4")
    a("v_and_b32 v5, 15, v1")
    a("v_lshrrev_b32 v6, 2, v5")
    a(f"v_lshlrev_b32 v7, {3 if op else 2}, v3")
    a("v_add_u32 v6, v6, v7")
    a("s_lshl_b32 s38, s22, 6")
    a("v_add_u32 v6, s38, v6")
    a("v_lshlrev_b32 v6, 7, v6")
    a("v_lshrrev_b32 v7, 4, v1")
    a("v_and_b32 v7, 1, v7")
    a("v_xor_b32 v7, s22, v7")
    a("v_lshlrev_b32 v7, 1, v7")
    a("v_bfe_u32 v9, v5, 1, 1")
    a("v_add_u32 v7, v7, v9")
    a("s_lshl_b32 s38, s25, 2")
    a("v_add_u32 v7, s38, v7")
    a("v_lshrrev_b32 v9, 3, v5")
    a("v_lshlrev_b32 v9, 2, v9")
    a("v_xor_b32 v7, v7, v9")
    a("v_lshlrev_b32 v7, 4, v7")
    a("v_add_u32 v6, v6, v7")
    a("v_and_b32 v7, 1, v5")
    a("v_lshlrev_b32 v7, 3, v7")
    a("v_add_u32 v6, v6, v7")
    a("v_add_u32 v21, 16384, v6")
    a("v_add_u32 v18, 0x10000, v17")
    a("v_add_u32 v22, 0x10000, v21")
    a("v_add_u32 v19, 0x20000, v17")
    a("v_add_u32 v23, 0x20000, v21")
    halfrow = 4 if op else 8
    ACC = 48
    for r in range(ACC, ACC+16): a(f"v_mov_b32 v{r}, 0")
    AF = [32, 36]; WF = [40, 44]
    def reads(c, s, buf):
        slot = c % nslot
        hi = slot // 2; off = (slot % 2) * 32768
        a(f"ds_read_b128 {vr(AF[buf],4)}, v{17+hi} offset:{off + s*2048}")
        for hf in range(2):
            a(f"ds_read_b64_tr_b16 {vr(WF[buf]+2*hf,2)}, v{21+hi} offset:{off + (16*s + halfrow*hf)*128}")
    def compute(buf):
        a(f"v_mfma_f32_32x32x16_bf16 {vr(ACC,16)}, {vr(WF[buf],4)}, {vr(AF[buf],4)}, {vr(ACC,16)}")
    for c in range(nchunk):
        younger = min(c + nslot - (2 if c >= 1 else 1), nchunk - 1) - c if not op else nchunk - 1 - c
        a(f"s_waitcnt vmcnt({4*younger})")
        a("s_barrier")
        tk.tick()
        if (not op) and c >= 1 and c + 4 < nchunk: dma(c + 4)
        last = (c == nchunk - 1) and (nks % 8 != 0)
        ns0 = 4
        reads(c, 0, 0)
        for s in range(4):
            if last and s == 2:
                a("s_waitcnt lgkmcnt(0)")
                a("s_cmp_eq_u32 s22, 1")
                a(f"s_cbranch_scc1 L_{name}_kdone")
            if s < 3:
                reads(c, s+1, (s+1) & 1)
                a("s_waitcnt lgkmcnt(3)")
            else:
                a("s_waitcnt lgkmcnt(0)")
            compute(s & 1)
    a.label(f"L_{name}_kdone")
    tk.tick()
    a("s_barrier")
    a("s_lshl_b32 s38, s20, 11")
    a("v_add_u32 v5, s38, v4")
    a("s_nop 7")
    a("s_nop 3")
    for q in range(2):
        a(f"ds_write_b128 v5, {vr(ACC+8+4*q,4)} offset:{q*1024}")
    a("s_waitcnt lgkmcnt(0)")
    a("s_barrier")
    a("s_xor_b32 s39, s20, 4")
    a("s_lshl_b32 s38, s39, 11")
    a("v_add_u32 v5, s38, v4")
    for q in range(2):
        a(f"ds_read_b128 {vr(32+4*q,4)}, v5 offset:{q*1024}")
    a("s_waitcnt vmcnt(0) lgkmcnt(0)")
    for j in range(8):
        src = RES + (j >> 1)
        if j & 1: a(f"v_and_b32 v{40+j}, 0xffff0000, v{src}")
        else:     a(f"v_lshlrev_b32 v{40+j}, 16, v{src}")
        a(f"v_add_f32 v{ACC+j}, v{ACC+j}, v{32+j}")
        a(f"v_add_f32 v{ACC+j}, v{ACC+j}, v{40+j}")
    for j in range(4):
        a(f"v_cvt_pk_bf16_f32 v{32+j}, v{ACC+2*j}, v{ACC+2*j+1}")
    if op:
        a(f"buffer_store_dwordx4 v[32:35], v4, s[12:15], s42 offen" + STF)
    else:
        a("v_lshlrev_b32 v9, 4, v3")
        a("v_add_u32 v9, v9, v8")
        a("v_permlane32_swap_b32 v32, v34")
        a("v_permlane32_swap_b32 v33, v35")
        a("s_nop 1")
        a(f"buffer_store_dwordx4 v[32:35], v9, s[12:15], s43 offen" + STF)
    tk.tick()
    a("s_waitcnt vmcnt(0)")
    tk.tick()
    tk.dump(20)
    a.label(f"L_{name}_end")
    a("s_endpgm")
    return name, kernel_wrap(name, a.text(), 64, 100 if TICK else 64), nslot * 32768
```

```python
import os
from dsl import *

def gemm64(mode):
    op = mode == "oproj"
    name = "k3_oproj_kernel" if op else "k5_ffn2_kernel"
    nks = 32 if op else 86
    nchunk = (nks + 7) // 8
    nslot = 4 if op else 5
    kspitch = 32 if op else AF_KS
    a = Asm()
    tk = Ticks(a, 2 if op else 4)
    a("s_cmp_ge_u32 s2, 256")
    a(f"s_cbranch_scc1 L_{name}_end")
    a("s_load_dwordx2 s[30:31], s[0:1], %d" % KA['ws'])
    a("s_load_dwordx2 s[32:33], s[0:1], %d" % (KA['wo'] if op else KA['w2']))
    a("s_load_dwordx2 s[34:35], s[0:1], %d" % (KA['x'] if op else KA['out']))
    a("s_and_b32 s3, s2, 7")
    a("s_lshr_b32 s38, s2, 3")
    a("s_lshl_b32 s23, s3, 2")
    a("s_and_b32 s39, s38, 3")
    a("s_add_u32 s23, s23, s39")
    a("s_lshr_b32 s24, s38, 2")
    tk.tick()
    a("v_and_b32 v1, 63, v0")
    a("v_lshrrev_b32 v2, 6, v0")
    a("s_nop 0")
    a("v_readfirstlane_b32 s20, v2")
    a("s_nop 3")
    a("s_and_b32 s21, s20, 1")
    a("s_lshr_b32 s22, s20, 2")
    a("s_lshr_b32 s25, s20, 1")
    a("s_and_b32 s25, s25, 1")
    a("v_and_b32 v2, 31, v1")
    a("v_lshrrev_b32 v3, 5, v1")
    a("s_lshl_b32 s38, s23, 1")
    a(f"s_mul_i32 s38, s38, {kspitch}")
    a("s_add_u32 s38, s38, s20")
    a("s_lshl_b32 s38, s38, 10")
    a("v_lshlrev_b32 v4, 4, v1")
    a("v_add_u32 v10, s38, v4")
    a(f"v_add_u32 v11, {kspitch*1024}, v10")
    a("v_lshrrev_b32 v5, 3, v1")
    a("s_lshl_b32 s38, s20, 4")
    a("v_add_u32 v5, s38, v5")
    a("v_lshlrev_b32 v5, 10, v5")
    a("v_lshrrev_b32 v6, 4, v1")
    a("v_and_b32 v6, 1, v6")
    a("v_lshlrev_b32 v6, 2, v6")
    a("v_and_b32 v7, 7, v1")
    a("v_xor_b32 v6, v6, v7")
    a("v_lshlrev_b32 v6, 4, v6")
    a("v_add_u32 v5, v5, v6")
    a("s_lshl_b32 s38, s24, 7")
    a("v_add_u32 v12, s38, v5")
    a("s_lshl_b32 s40, s23, 1")
    a("s_add_u32 s40, s40, s21")
    a("s_lshl_b32 s41, s24, 2")
    a("s_lshl_b32 s38, s25, 1")
    a("s_add_u32 s41, s41, s38")
    a("s_add_u32 s41, s41, s22")
    a("s_lshl_b32 s42, s40, 5")
    a("s_add_u32 s42, s42, s41")
    a("s_lshl_b32 s42, s42, 10")
    a("s_lshl_b32 s43, s40, 15")
    a("s_lshl_b32 s38, s41, 5")
    a("s_add_u32 s43, s43, s38")
    a("v_lshlrev_b32 v8, 10, v2")
    a("s_waitcnt lgkmcnt(0)")
    if op:
        srd(a, 4, 30, 2*MB, add=WS_OF)
        srd(a, 12, 30, 2*MB, add=WS_HF)
        srd(a, 16, 34, 2*MB)
    else:
        srd(a, 4, 30, 64*AF_KS*1024, add=WS_AF)
        srd(a, 12, 34, 2*MB)
        srd(a, 16, 30, 2*MB, add=WS_HF)
    srd(a, 8, 32, nks*16*1024)
    RES = 28
    if op:
        a("v_lshlrev_b32 v9, 3, v3")
        a("v_add_u32 v9, v9, v8")
        a(f"buffer_load_dwordx2 v[{RES}:{RES+1}], v9, s[16:19], s43 offen")
        a(f"buffer_load_dwordx2 v[{RES+2}:{RES+3}], v9, s[16:19], s43 offen offset:16")
    else:
        a(f"buffer_load_dwordx4 v[{RES}:{RES+3}], v4, s[16:19], s42 offen")
    a("s_lshl_b32 s26, s20, 11")
    issued = []
    def piece(c, p):
        slot = c % nslot
        i = p & 1
        if p < 2:
            a(f"s_add_u32 m0, s26, {slot*32768 + i*1024}")
            a(f"s_movk_i32 s38, {c*8192}" if c*8192 < 32768 else f"s_mov_b32 s38, {c*8192}")
            a(f"buffer_load_dwordx4 v{10+i}, s[4:7], s38 offen lds")
        else:
            a(f"s_add_u32 m0, s26, {slot*32768 + 16384 + i*1024}")
            a(f"s_mov_b32 s38, {c*131072 + i*8192}")
            a(f"buffer_load_dwordx4 v12, s[8:11], s38 offen lds")
        issued.append(c)
    def younger(c):
        last = max(i for i, x in enumerate(issued) if x == c)
        return len(issued) - 1 - last
    PRO = int(os.environ.get("PRO64", "3"))
    for c in range(PRO):
        for p in range(4): piece(c, p)
    nextc = [PRO]
    tk.tick()
    a("s_lshl_b32 s38, s22, 13")
    a("s_lshl_b32 s39, s21, 10")
    a("s_add_u32 s38, s38, s39")
    a("v_add_u32 v17, s38, v4")
    a("v_and_b32 v5, 15, v1")
    a("v_lshrrev_b32 v6, 2, v5")
    a(f"v_lshlrev_b32 v7, {3 if op else 2}, v3")
    a("v_add_u32 v6, v6, v7")
    a("s_lshl_b32 s38, s22, 6")
    a("v_add_u32 v6, s38, v6")
    a("v_lshlrev_b32 v6, 7, v6")
    a("v_lshrrev_b32 v7, 4, v1")
    a("v_and_b32 v7, 1, v7")
    a("v_xor_b32 v7, s22, v7")
    a("v_lshlrev_b32 v7, 1, v7")
    a("v_bfe_u32 v9, v5, 1, 1")
    a("v_add_u32 v7, v7, v9")
    a("s_lshl_b32 s38, s25, 2")
    a("v_add_u32 v7, s38, v7")
    a("v_lshrrev_b32 v9, 3, v5")
    a("v_lshlrev_b32 v9, 2, v9")
    a("v_xor_b32 v7, v7, v9")
    a("v_lshlrev_b32 v7, 4, v7")
    a("v_add_u32 v6, v6, v7")
    a("v_and_b32 v7, 1, v5")
    a("v_lshlrev_b32 v7, 3, v7")
    a("v_add_u32 v6, v6, v7")
    a("v_add_u32 v21, 16384, v6")
    a("v_add_u32 v18, 0x10000, v17")
    a("v_add_u32 v22, 0x10000, v21")
    a("v_add_u32 v19, 0x20000, v17")
    a("v_add_u32 v23, 0x20000, v21")
    halfrow = 4 if op else 8
    ACC = 48
    for r in range(ACC, ACC+16): a(f"v_mov_b32 v{r}, 0")
    AF = [32, 36]; WF = [40, 44]
    def reads(c, s, buf):
        slot = c % nslot
        hi = slot // 2; off = (slot % 2) * 32768
        a(f"ds_read_b128 {vr(AF[buf],4)}, v{17+hi} offset:{off + s*2048}")
        for hf in range(2):
            a(f"ds_read_b64_tr_b16 {vr(WF[buf]+2*hf,2)}, v{21+hi} offset:{off + (16*s + halfrow*hf)*128}")
    def compute(buf):
        a(f"v_mfma_f32_32x32x16_bf16 {vr(ACC,16)}, {vr(WF[buf],4)}, {vr(AF[buf],4)}, {vr(ACC,16)}")
    for c in range(nchunk):
        a(f"s_waitcnt vmcnt({younger(c)})")
        a("s_barrier")
        tk.tick()
        pend = []
        while nextc[0] < nchunk and nextc[0] <= c + nslot - 1:
            pend += [(nextc[0], p) for p in range(4)]
            nextc[0] += 1
        per = (len(pend) + 3) // 4
        last = (c == nchunk - 1) and (nks % 8 != 0)
        reads(c, 0, 0)
        for s in range(4):
            if last and s == 2:
                a("s_waitcnt lgkmcnt(0)")
                a("s_cmp_eq_u32 s22, 1")
                a(f"s_cbranch_scc1 L_{name}_kdone")
            if s < 3:
                reads(c, s+1, (s+1) & 1)
                a("s_waitcnt lgkmcnt(3)")
            else:
                a("s_waitcnt lgkmcnt(0)")
            compute(s & 1)
            for _ in range(per):
                if pend: piece(*pend.pop(0))
        assert not pend
    a.label(f"L_{name}_kdone")
    tk.tick()
    a("s_barrier")
    a("s_lshl_b32 s38, s20, 11")
    a("v_add_u32 v5, s38, v4")
    a("s_nop 7")
    a("s_nop 3")
    for q in range(2):
        a(f"ds_write_b128 v5, {vr(ACC+8+4*q,4)} offset:{q*1024}")
    a("s_waitcnt lgkmcnt(0)")
    a("s_barrier")
    a("s_xor_b32 s39, s20, 4")
    a("s_lshl_b32 s38, s39, 11")
    a("v_add_u32 v5, s38, v4")
    for q in range(2):
        a(f"ds_read_b128 {vr(32+4*q,4)}, v5 offset:{q*1024}")
    a("s_waitcnt vmcnt(0) lgkmcnt(0)")
    for j in range(8):
        src = RES + (j >> 1)
        if j & 1: a(f"v_and_b32 v{40+j}, 0xffff0000, v{src}")
        else:     a(f"v_lshlrev_b32 v{40+j}, 16, v{src}")
        a(f"v_add_f32 v{ACC+j}, v{ACC+j}, v{32+j}")
        a(f"v_add_f32 v{ACC+j}, v{ACC+j}, v{40+j}")
    for j in range(4):
        a(f"v_cvt_pk_bf16_f32 v{32+j}, v{ACC+2*j}, v{ACC+2*j+1}")
    if op:
        a(f"buffer_store_dwordx4 v[32:35], v4, s[12:15], s42 offen" + STF)
    else:
        a("v_lshlrev_b32 v9, 4, v3")
        a("v_add_u32 v9, v9, v8")
        a("v_permlane32_swap_b32 v32, v34")
        a("v_permlane32_swap_b32 v33, v35")
        a("s_nop 1")
        a(f"buffer_store_dwordx4 v[32:35], v9, s[12:15], s43 offen" + STF)
    tk.tick()
    a("s_waitcnt vmcnt(0)")
    tk.tick()
    tk.dump(20)
    a.label(f"L_{name}_end")
    a("s_endpgm")
    return name, kernel_wrap(name, a.text(), 64, 100 if TICK else 64), nslot * 32768
```

```python
import os
from dsl import *

def gemm64(mode):
    op = mode == "oproj"
    name = "k3_oproj_kernel" if op else "k5_ffn2_kernel"
    nks = 32 if op else 86
    nchunk = (nks + 7) // 8
    nslot = 4 if op else 5
    kspitch = 32 if op else AF_KS
    a = Asm()
    tk = Ticks(a, 2 if op else 4)
    a("s_cmp_ge_u32 s2, 256")
    a(f"s_cbranch_scc1 L_{name}_end")
    a("s_load_dwordx2 s[30:31], s[0:1], %d" % KA['ws'])
    a("s_load_dwordx2 s[32:33], s[0:1], %d" % (KA['wo'] if op else KA['w2']))
    a("s_load_dwordx2 s[34:35], s[0:1], %d" % (KA['x'] if op else KA['out']))
    a("s_and_b32 s3, s2, 7")
    a("s_lshr_b32 s38, s2, 3")
    a("s_lshl_b32 s23, s3, 2")
    a("s_and_b32 s39, s38, 3")
    a("s_add_u32 s23, s23, s39")
    a("s_lshr_b32 s24, s38, 2")
    tk.tick()
    a("v_and_b32 v1, 63, v0")
    a("v_lshrrev_b32 v2, 6, v0")
    a("s_nop 0")
    a("v_readfirstlane_b32 s20, v2")
    a("s_nop 3")
    a("s_and_b32 s21, s20, 1")
    a("s_lshr_b32 s22, s20, 2")
    a("s_lshr_b32 s25, s20, 1")
    a("s_and_b32 s25, s25, 1")
    a("v_and_b32 v2, 31, v1")
    a("v_lshrrev_b32 v3, 5, v1")
    a("s_lshl_b32 s38, s23, 1")
    a(f"s_mul_i32 s38, s38, {kspitch}")
    a("s_add_u32 s38, s38, s20")
    a("s_lshl_b32 s38, s38, 10")
    a("v_lshlrev_b32 v4, 4, v1")
    a("v_add_u32 v10, s38, v4")
    a(f"v_add_u32 v11, {kspitch*1024}, v10")
    a("v_lshrrev_b32 v5, 3, v1")
    a("s_lshl_b32 s38, s20, 4")
    a("v_add_u32 v5, s38, v5")
    a("v_lshlrev_b32 v5, 10, v5")
    a("v_lshrrev_b32 v6, 4, v1")
    a("v_and_b32 v6, 1, v6")
    a("v_lshlrev_b32 v6, 2, v6")
    a("v_and_b32 v7, 7, v1")
    a("v_xor_b32 v6, v6, v7")
    a("v_lshlrev_b32 v6, 4, v6")
    a("v_add_u32 v5, v5, v6")
    a("s_lshl_b32 s38, s24, 7")
    a("v_add_u32 v12, s38, v5")
    a("s_lshl_b32 s40, s23, 1")
    a("s_add_u32 s40, s40, s21")
    a("s_lshl_b32 s41, s24, 2")
    a("s_lshl_b32 s38, s25, 1")
    a("s_add_u32 s41, s41, s38")
    a("s_add_u32 s41, s41, s22")
    a("s_lshl_b32 s42, s40, 5")
    a("s_add_u32 s42, s42, s41")
    a("s_lshl_b32 s42, s42, 10")
    a("s_lshl_b32 s43, s40, 15")
    a("s_lshl_b32 s38, s41, 5")
    a("s_add_u32 s43, s43, s38")
    a("v_lshlrev_b32 v8, 10, v2")
    a("s_waitcnt lgkmcnt(0)")
    if op:
        srd(a, 4, 30, 2*MB, add=WS_OF)
        srd(a, 12, 30, 2*MB, add=WS_HF)
        srd(a, 16, 34, 2*MB)
    else:
        srd(a, 4, 30, 64*AF_KS*1024, add=WS_AF)
        srd(a, 12, 34, 2*MB)
        srd(a, 16, 30, 2*MB, add=WS_HF)
    srd(a, 8, 32, nks*16*1024)
    RES = 28
    if op:
        a("v_lshlrev_b32 v13, 4, v3")
        a("v_add_u32 v13, v13, v8")
    else:
        a(f"buffer_load_dwordx4 v[{RES}:{RES+3}], v4, s[16:19], s42 offen")
    a("s_lshl_b32 s26, s20, 11")
    issued = []
    def piece(c, p):
        slot = c % nslot
        i = p & 1
        if p < 2:
            a(f"s_add_u32 m0, s26, {slot*32768 + i*1024}")
            a(f"s_movk_i32 s38, {c*8192}" if c*8192 < 32768 else f"s_mov_b32 s38, {c*8192}")
            a(f"buffer_load_dwordx4 v{10+i}, s[4:7], s38 offen lds")
        else:
            a(f"s_add_u32 m0, s26, {slot*32768 + 16384 + i*1024}")
            a(f"s_mov_b32 s38, {c*131072 + i*8192}")
            a(f"buffer_load_dwordx4 v12, s[8:11], s38 offen lds")
        issued.append(c)
    def younger(c):
        last = max(i for i, x in enumerate(issued) if x == c)
        return len(issued) - 1 - last
    PRO = int(os.environ.get("PRO64", "3"))
    for c in range(PRO):
        for p in range(4): piece(c, p)
    nextc = [PRO]
    tk.tick()
    a("s_lshl_b32 s38, s22, 13")
    a("s_lshl_b32 s39, s21, 10")
    a("s_add_u32 s38, s38, s39")
    a("v_add_u32 v17, s38, v4")
    a("v_and_b32 v5, 15, v1")
    a("v_lshrrev_b32 v6, 2, v5")
    a(f"v_lshlrev_b32 v7, {3 if op else 2}, v3")
    a("v_add_u32 v6, v6, v7")
    a("s_lshl_b32 s38, s22, 6")
    a("v_add_u32 v6, s38, v6")
    a("v_lshlrev_b32 v6, 7, v6")
    a("v_lshrrev_b32 v7, 4, v1")
    a("v_and_b32 v7, 1, v7")
    a("v_xor_b32 v7, s22, v7")
    a("v_lshlrev_b32 v7, 1, v7")
    a("v_bfe_u32 v9, v5, 1, 1")
    a("v_add_u32 v7, v7, v9")
    a("s_lshl_b32 s38, s25, 2")
    a("v_add_u32 v7, s38, v7")
    a("v_lshrrev_b32 v9, 3, v5")
    a("v_lshlrev_b32 v9, 2, v9")
    a("v_xor_b32 v7, v7, v9")
    a("v_lshlrev_b32 v7, 4, v7")
    a("v_add_u32 v6, v6, v7")
    a("v_and_b32 v7, 1, v5")
    a("v_lshlrev_b32 v7, 3, v7")
    a("v_add_u32 v6, v6, v7")
    a("v_add_u32 v21, 16384, v6")
    a("v_add_u32 v18, 0x10000, v17")
    a("v_add_u32 v22, 0x10000, v21")
    a("v_add_u32 v19, 0x20000, v17")
    a("v_add_u32 v23, 0x20000, v21")
    halfrow = 4 if op else 8
    ACC = 48
    for r in range(ACC, ACC+16): a(f"v_mov_b32 v{r}, 0")
    AF = [32, 36]; WF = [40, 44]
    def reads(c, s, buf):
        slot = c % nslot
        hi = slot // 2; off = (slot % 2) * 32768
        a(f"ds_read_b128 {vr(AF[buf],4)}, v{17+hi} offset:{off + s*2048}")
        for hf in range(2):
            a(f"ds_read_b64_tr_b16 {vr(WF[buf]+2*hf,2)}, v{21+hi} offset:{off + (16*s + halfrow*hf)*128}")
    def compute(buf):
        a(f"v_mfma_f32_32x32x16_bf16 {vr(ACC,16)}, {vr(WF[buf],4)}, {vr(AF[buf],4)}, {vr(ACC,16)}")
    for c in range(nchunk):
        a(f"s_waitcnt vmcnt({younger(c)})")
        a("s_barrier")
        tk.tick()
        pend = []
        while nextc[0] < nchunk and nextc[0] <= c + nslot - 1:
            pend += [(nextc[0], p) for p in range(4)]
            nextc[0] += 1
        per = (len(pend) + 3) // 4
        last = (c == nchunk - 1) and (nks % 8 != 0)
        reads(c, 0, 0)
        for s in range(4):
            if last and s == 2:
                a("s_waitcnt lgkmcnt(0)")
                a("s_cmp_eq_u32 s22, 1")
                a(f"s_cbranch_scc1 L_{name}_kdone")
            if s < 3:
                reads(c, s+1, (s+1) & 1)
                a("s_waitcnt lgkmcnt(3)")
            else:
                a("s_waitcnt lgkmcnt(0)")
            compute(s & 1)
            for _ in range(per):
                if pend: piece(*pend.pop(0))
        assert not pend
        if op and c == 0:
            a(f"buffer_load_dwordx4 v[{RES}:{RES+3}], v13, s[16:19], s43 offen")
            issued.append("res")
    a.label(f"L_{name}_kdone")
    tk.tick()
    a("s_barrier")
    a("s_lshl_b32 s38, s20, 11")
    a("v_add_u32 v5, s38, v4")
    a("s_nop 7")
    a("s_nop 3")
    for q in range(2):
        a(f"ds_write_b128 v5, {vr(ACC+8+4*q,4)} offset:{q*1024}")
    a("s_waitcnt lgkmcnt(0)")
    a("s_barrier")
    a("s_xor_b32 s39, s20, 4")
    a("s_lshl_b32 s38, s39, 11")
    a("v_add_u32 v5, s38, v4")
    for q in range(2):
        a(f"ds_read_b128 {vr(32+4*q,4)}, v5 offset:{q*1024}")
    a("s_waitcnt vmcnt(0) lgkmcnt(0)")
    if op:
        a(f"v_permlane32_swap_b32 v{RES}, v{RES+2}")
        a(f"v_permlane32_swap_b32 v{RES+1}, v{RES+3}")
    for j in range(8):
        src = RES + (j >> 1)
        if j & 1: a(f"v_and_b32 v{40+j}, 0xffff0000, v{src}")
        else:     a(f"v_lshlrev_b32 v{40+j}, 16, v{src}")
        a(f"v_add_f32 v{ACC+j}, v{ACC+j}, v{32+j}")
        a(f"v_add_f32 v{ACC+j}, v{ACC+j}, v{40+j}")
    for j in range(4):
        a(f"v_cvt_pk_bf16_f32 v{32+j}, v{ACC+2*j}, v{ACC+2*j+1}")
    if op:
        a(f"buffer_store_dwordx4 v[32:35], v4, s[12:15], s42 offen" + STF)
        if KS3:
            STX = 16384
            a(f"v_mul_f32 v25, v{ACC}, v{ACC}")
            a(f"v_add_f32 v24, v{ACC}, v{ACC+1}")
            a(f"v_fmac_f32 v25, v{ACC+1}, v{ACC+1}")
            for j in range(2, 8):
                a(f"v_add_f32 v24, v24, v{ACC+j}")
                a(f"v_fmac_f32 v25, v{ACC+j}, v{ACC+j}")
            a("s_lshl_b32 s38, s20, 9")
            a("v_lshlrev_b32 v6, 3, v1")
            a("v_add_u32 v6, s38, v6")
            a(f"ds_write_b64 v6, v[24:25] offset:{STX}")
            srd(a, 4, 30, 128*1024, add=WS_ST)
            a("s_lshl_b32 s44, s40, 11")
            a("s_lshr_b32 s38, s24, 1")
            a("s_lshl_b32 s38, s38, 9")
            a("s_add_u32 s44, s44, s38")
            a("s_and_b32 s38, s24, 1")
            a("s_lshl_b32 s38, s38, 3")
            a("s_add_u32 s44, s44, s38")
            a("v_lshlrev_b32 v7, 4, v2")
            a("v_lshlrev_b32 v9, 2, v3")
            a("v_add_u32 v7, v7, v9")
            a("s_waitcnt lgkmcnt(0)")
            a("s_barrier")
            a("s_cmp_ge_u32 s20, 2")
            a(f"s_cbranch_scc1 L_{name}_nost")
            for q in range(4):
                a(f"ds_read_b64 v[{40+2*q}:{41+2*q}], v6 offset:{STX + q*1024}")
            a("v_cmp_eq_u32 vcc, 0, v3")
            a("s_waitcnt lgkmcnt(0)")
            a("v_add_f32 v40, v40, v42")
            a("v_add_f32 v41, v41, v43")
            a("v_add_f32 v44, v44, v46")
            a("v_add_f32 v45, v45, v47")
            a("v_add_f32 v40, v40, v44")
            a("v_add_f32 v41, v41, v45")
            a("v_mov_b32 v42, v40")
            a("v_mov_b32 v43, v41")
            a("s_nop 1")
            a("v_permlane32_swap_b32 v40, v42")
            a("v_permlane32_swap_b32 v41, v43")
            a("s_nop 1")
            a("v_add_f32 v40, v40, v42")
            a("v_add_f32 v41, v41, v43")
            a("v_cndmask_b32 v40, v41, v40, vcc")
            a("buffer_store_dword v40, v7, s[4:7], s44 offen" + STF)
            a.label(f"L_{name}_nost")
    else:
        a("v_lshlrev_b32 v9, 4, v3")
        a("v_add_u32 v9, v9, v8")
        a("v_permlane32_swap_b32 v32, v34")
        a("v_permlane32_swap_b32 v33, v35")
        a("s_nop 1")
        a(f"buffer_store_dwordx4 v[32:35], v9, s[12:15], s43 offen" + STF)
    tk.tick()
    a("s_waitcnt vmcnt(0)")
    tk.tick()
    tk.dump(20)
    a.label(f"L_{name}_end")
    a("s_endpgm")
    return name, kernel_wrap(name, a.text(), 64, 100 if TICK else 64), nslot * 32768
```

```python
from dsl import *

def gemm96(mode):
    qkv = mode == "qkv"
    name = "k1_qkv_kernel" if qkv else "k4_ffn1_kernel"
    NW = 1536 if qkv else 1376
    pitchW = NW * 2
    a = Asm()
    tk = Ticks(a, 0 if qkv else 3)
    SL = 28672; NS = 4; WOFF = 16384; NCH = 8; LOOK = 3
    a("s_cmp_ge_u32 s2, 256")
    a(f"s_cbranch_scc1 L_{name}_end")
    a("s_load_dwordx2 s[30:31], s[0:1], %d" % (KA['x'] if qkv else KA['ws']))
    a("s_load_dwordx2 s[32:33], s[0:1], %d" % (KA['wqkv'] if qkv else KA['w1']))
    a("s_load_dwordx2 s[34:35], s[0:1], %d" % KA['ws'])
    if not qkv: a("s_load_dwordx2 s[36:37], s[0:1], %d" % KA['b1'])
    a("s_and_b32 s3, s2, 7")
    a("s_lshr_b32 s38, s2, 3")
    a("s_lshr_b32 s23, s3, 1")
    a("s_lshl_b32 s23, s23, 2")
    a("s_and_b32 s39, s38, 3")
    a("s_add_u32 s23, s23, s39")
    a("s_and_b32 s24, s3, 1")
    a("s_lshl_b32 s24, s24, 3")
    a("s_lshr_b32 s39, s38, 2")
    a("s_add_u32 s24, s24, s39")
    if not qkv:
        a("s_cmp_ge_u32 s24, 15")
        a(f"s_cbranch_scc1 L_{name}_end")
    tk.tick()
    a("v_and_b32 v1, 63, v0")
    a("v_lshrrev_b32 v2, 6, v0")
    a("v_lshlrev_b32 v4, 4, v1")
    a("v_readfirstlane_b32 s20, v2")
    a("v_and_b32 v2, 31, v1")
    a("v_lshrrev_b32 v3, 5, v1")
    a("s_and_b32 s21, s20, 3")
    a("s_lshr_b32 s22, s20, 2")
    a("v_mul_u32_u24 v5, 43691, v1")
    a("v_lshrrev_b32 v5, 19, v5")
    a("v_mul_u32_u24 v6, 12, v5")
    a("v_sub_u32 v6, v1, v6")
    a("v_lshlrev_b32 v6, 4, v6")
    a("s_mul_i32 s39, s24, 192")
    a("v_add_u32 v6, s39, v6")
    if not qkv:
        a(f"v_min_u32 v6, {pitchW-16}, v6")
    a("s_lshl_b32 s38, s20, 3")
    a("v_add_u32 v5, s38, v5")
    a(f"v_mul_u32_u24 v5, {pitchW}, v5")
    a("v_add_u32 v14, v5, v6")
    if qkv:
        a("s_lshl_b32 s38, s23, 7")
        a("s_lshl_b32 s39, s20, 4")
        a("s_add_u32 s38, s38, s39")
        a("v_lshrrev_b32 v5, 3, v1")
        a("v_add_u32 v5, s38, v5")
        a("v_lshlrev_b32 v5, 10, v5")
        a("v_lshrrev_b32 v6, 4, v1")
        a("v_and_b32 v7, 7, v1")
        a("v_xor_b32 v6, v6, v7")
        a("v_lshlrev_b32 v7, 4, v6")
        a("v_add_u32 v10, v5, v7")
        a("v_xor_b32 v6, 4, v6")
        a("v_lshlrev_b32 v7, 4, v6")
        a("v_add_u32 v11, v5, v7")
        a("v_add_u32 v11, 8192, v11")
    else:
        a("s_lshl_b32 s38, s23, 2")
        a("s_lshr_b32 s39, s20, 1")
        a("s_add_u32 s38, s38, s39")
        a("s_lshl_b32 s38, s38, 5")
        a("s_and_b32 s39, s20, 1")
        a("s_lshl_b32 s39, s39, 1")
        a("s_add_u32 s38, s38, s39")
        a("s_lshl_b32 s38, s38, 10")
        a("v_add_u32 v10, s38, v4")
    a("s_lshl_b32 s25, s20, 11")
    a("s_mul_i32 s26, s20, 1536")
    a(f"s_add_u32 s26, s26, {WOFF}")
    a("s_mov_b32 s46, -1")
    a("s_mov_b32 s47, 0xffff")
    a("s_waitcnt lgkmcnt(0)")
    if qkv:
        srd(a, 4, 30, 2048*1024)
        srd(a, 12, 34, 6*MB)
    else:
        srd(a, 4, 30, 2*MB, add=WS_HF)
        srd(a, 12, 34, 64*AF_KS*1024, add=WS_AF)
        srd(a, 16, 36, 1376*2)
    srd(a, 8, 32, 512*pitchW)
    issued = []
    def piece(c, p):
        slot = (c % NS) * SL
        if p < 2:
            i = p
            if qkv:
                a(f"s_add_u32 m0, s25, {slot + i*1024}")
                a(f"s_movk_i32 s38, {c*128}")
                a(f"buffer_load_dwordx4 v{10+i}, s[4:7], s38 offen lds")
            else:
                a(f"s_add_u32 m0, s25, {slot}")
                a(f"s_movk_i32 s38, {c*4096}")
                a(f"buffer_load_dwordx4 v10, s[4:7], s38 offen offset:{i*1024} lds")
        else:
            i = p - 2
            a(f"s_add_u32 m0, s26, {slot + i*768}")
            a(f"s_mov_b32 s38, {(c*64 + 4*i)*pitchW}")
            a("s_mov_b64 exec, s[46:47]")
            a(f"buffer_load_dwordx4 v14, s[8:11], s38 offen lds")
            a("s_mov_b64 exec, -1")
        issued.append(c)
    def dma(c):
        for p in range(4): piece(c, p)
    def younger(c):
        last = max(i for i, x in enumerate(issued) if x == c)
        return len(issued) - 1 - last
    pend = []
    def slot_hook(n=1):
        for _ in range(n):
            if pend: piece(*pend.pop(0))
    dma(0)
    if not qkv:
        pass
    if int(os.environ.get("OB96", "1")): a("s_barrier")
    dma(1)
    tk.tick()
    for b in range(3):
        a(f"s_add_u32 s{27+b}, s21, {b}")
        a(f"s_cmp_ge_u32 s{27+b}, 3")
        a(f"s_cselect_b32 s38, 3, 0")
        a(f"s_sub_u32 s{27+b}, s{27+b}, s38")
    if not qkv:
        a("s_mul_i32 s38, s24, 192")
        a("s_lshl_b32 s39, s22, 5")
        a("s_add_u32 s38, s38, s39")
        a("v_lshlrev_b32 v5, 3, v3")
        a("v_add_u32 v5, s38, v5")
        for b in range(3):
            a(f"s_lshl_b32 s38, s{27+b}, 6")
            for q in range(2):
                a(f"buffer_load_dwordx2 v[{28+4*b+2*q}:{29+4*b+2*q}], v5, s[16:19], s38 offen offset:{16*q}")
                issued.append("b1")
        if KS3:
            srd(a, 48, 34, 128*1024, add=WS_ST)
            a("s_lshl_b32 s38, s23, 2")
            a("s_add_u32 s38, s38, s21")
            a("s_lshl_b32 s38, s38, 11")
            a("v_lshlrev_b32 v5, 9, v3")
            a("v_lshlrev_b32 v6, 4, v2")
            a("v_add_u32 v5, v5, v6")
            for j in range(2):
                a(f"buffer_load_dwordx4 v[{120+4*j}:{123+4*j}], v5, s[48:51], s38 offen offset:{1024*j}")
                issued.append("st")
    NB1 = 0 if qkv else 6
    if qkv:
        a("s_lshl_b32 s38, s21, 12")
        a("v_lshlrev_b32 v5, 7, v2")
        a("v_add_u32 v5, s38, v5")
        a("v_bfe_u32 v6, v2, 1, 3")
        a("v_xor_b32 v6, v6, v3")
        a("s_lshl_b32 s39, s22, 2")
        a("v_xor_b32 v6, s39, v6")
        a("v_lshlrev_b32 v7, 4, v6")
        a("v_add_u32 v16, v5, v7")
        a("v_xor_b32 v6, 2, v6")
        a("v_lshlrev_b32 v7, 4, v6")
        a("v_add_u32 v17, v5, v7")
        a(f"v_add_u32 v18, {2*SL}, v16")
        a(f"v_add_u32 v19, {2*SL}, v17")
    else:
        a("s_lshl_b32 s38, s21, 12")
        a("s_lshl_b32 s39, s22, 11")
        a("s_add_u32 s38, s38, s39")
        a("v_add_u32 v16, s38, v4")
        a(f"v_add_u32 v18, {2*SL}, v16")
    a("v_and_b32 v5, 15, v1")
    a("v_lshrrev_b32 v6, 2, v5")
    a(f"v_lshlrev_b32 v7, {3 if qkv else 2}, v3")
    a("v_add_u32 v6, v6, v7")
    a("s_lshl_b32 s38, s22, 5")
    a("v_add_u32 v6, s38, v6")
    a("v_mul_u32_u24 v6, 192, v6")
    a("v_bfe_u32 v7, v1, 4, 1")
    a("v_xor_b32 v8, s22, v7")
    a("v_lshlrev_b32 v8, 5, v8")
    a("v_add_u32 v6, v6, v8")
    a("v_and_b32 v8, 3, v5")
    a("v_lshlrev_b32 v8, 3, v8")
    a("v_add_u32 v6, v6, v8")
    for b in range(3):
        a(f"s_lshl_b32 s38, s{27+b}, 6")
        a(f"s_add_u32 s38, s38, {WOFF}")
        a(f"v_add_u32 v{20+b}, s38, v6")
        a(f"v_add_u32 v{23+b}, {2*SL}, v{20+b}")
    halfrow = 4 if qkv else 8
    SEL = 64; CSA = 68; S1 = 26 if qkv else 8; S2 = 12; TMP = 120
    S1 = 8; S2 = 12
    a("v_cmp_eq_u32 vcc, v5, v7")
    a("v_mov_b32 v9, 0x3f803f80")
    for r in range(4): a(f"v_cndmask_b32 v{SEL+r}, 0, v9, vcc")
    for r in (8, 9, 12, 13): a(f"v_mov_b32 v{r}, 0")
    for r in range(CSA, CSA+4): a(f"v_mov_b32 v{r}, 0")
    for r in range(72, 120): a(f"v_mov_b32 v{r}, 0")
    a("s_mov_b32 s45, 0xffff0000")
    AF = [40, 44]; WF = [48, 60] ; ACC = 72
    WF = [128, 140]
    def reads(c, s, buf):
        slot = c % NS
        grp = slot // 2; off = (slot % 2) * SL
        if qkv:
            a(f"ds_read_b128 {vr(AF[buf],4)}, v{16+2*grp+s} offset:{off}")
        else:
            a(f"ds_read_b128 {vr(AF[buf],4)}, v{16+2*grp} offset:{off + s*1024}")
        for b in range(3):
            for hf in range(2):
                a(f"ds_read_b64_tr_b16 {vr(WF[buf]+4*b+2*hf,2)}, v{20+3*grp+b} offset:{off + (16*s + halfrow*hf)*192}")
    XP = os.environ.get("XP", "")
    def stats(reg, k):
        if "S" in XP or (KS3 and not qkv): return
        t = TMP + 2*(k & 1)
        a(f"v_lshlrev_b32 v{t}, 16, v{reg}")
        a(f"v_and_b32 v{t+1}, s45, v{reg}")
        if "P" in XP:
            a(f"v_pk_add_f32 v[{S1}:{S1+1}], v[{S1}:{S1+1}], v[{t}:{t+1}]")
            a(f"v_pk_fma_f32 v[{S2}:{S2+1}], v[{t}:{t+1}], v[{t}:{t+1}], v[{S2}:{S2+1}]")
        else:
            a(f"v_add_f32 v{S1}, v{S1}, v{t}")
            a(f"v_fmac_f32 v{S2}, v{t}, v{t}")
            a(f"v_add_f32 v{S1+1}, v{S1+1}, v{t+1}")
            a(f"v_fmac_f32 v{S2+1}, v{t+1}, v{t+1}")
    def compute(buf, per=1):
        for b in range(3):
            a(f"v_mfma_f32_32x32x16_bf16 {vr(ACC+16*b,16)}, {vr(WF[buf]+4*b,4)}, {vr(AF[buf],4)}, {vr(ACC+16*b,16)}")
            slot_hook(per)
            if b == 0: stats(AF[buf], 0)
            if b == 1: stats(AF[buf]+1, 1); stats(AF[buf]+2, 0)
            if b == 2: stats(AF[buf]+3, 1)
        if "C" not in XP: a(f"v_mfma_f32_16x16x32_bf16 {vr(CSA,4)}, {vr(WF[buf],4)}, {vr(SEL,4)}, {vr(CSA,4)}")
        slot_hook(per)
    a(f"s_waitcnt vmcnt({younger(0)})")
    a("s_barrier")
    tk.tick()
    reads(0, 0, 0)
    pend += [(2, p) for p in range(4)]
    for c in range(NCH):
        reads(c, 1, 1)
        a("s_waitcnt lgkmcnt(7)")
        compute(0)
        if c < NCH - 1:
            a(f"s_waitcnt vmcnt({younger(c+1)})")
            a("s_barrier")
            if c in (1, 3, 5): tk.tick()
            if c + LOOK < NCH: pend += [(c + LOOK, p) for p in range(4)]
            reads(c + 1, 0, 0)
            a("s_waitcnt lgkmcnt(7)")
        else:
            a("s_waitcnt lgkmcnt(0)")
        compute(1)
    assert not pend
    tk.tick()
    EX, ST, CS = 0, 49152, 53248
    GS = KS3 and not qkv
    if GS:
        a("v_add_f32 v8, v120, v122")
        a("v_add_f32 v9, v121, v123")
        a("v_add_f32 v12, v124, v126")
        a("v_add_f32 v13, v125, v127")
        a("v_add_f32 v8, v8, v12")
        a("v_add_f32 v9, v9, v13")
    else:
        a(f"v_add_f32 v8, v8, v9")
        a(f"v_add_f32 v9, v12, v13")
    a("v_mov_b32 v12, v8")
    a("v_mov_b32 v13, v9")
    a("s_mul_i32 s38, s20, 6144")
    a("v_add_u32 v5, s38, v4")
    a("v_permlane32_swap_b32 v8, v12")
    a("v_permlane32_swap_b32 v9, v13")
    a("s_lshl_b32 s38, s20, 9")
    a("v_lshlrev_b32 v6, 3, v1")
    a("v_add_u32 v7, s38, v6")
    a("v_add_f32 v8, v8, v12")
    a("v_add_f32 v9, v9, v13")
    a("v_and_b32 v10, 15, v1")
    a("v_xor_b32 v10, s22, v10")
    a("v_lshlrev_b32 v10, 6, v10")
    a("v_lshrrev_b32 v11, 4, v1")
    a("v_lshlrev_b32 v11, 4, v11")
    a("v_add_u32 v10, v10, v11")
    a("s_mul_i32 s38, s22, 384")
    a("s_lshl_b32 s39, s27, 7")
    a("s_add_u32 s38, s38, s39")
    a("v_add_u32 v10, s38, v10")
    a("s_nop 3")
    if not GS: a(f"ds_write_b64 v7, v[8:9] offset:{ST}")
    for b in range(3):
        for q in range(2):
            a(f"ds_write_b128 v5, {vr(ACC+16*b+8+4*q,4)} offset:{EX + (2*b+q)*1024}")
    a("s_mov_b32 s46, 0x00030003")
    a("s_mov_b32 s47, 0x00030003")
    a("s_mov_b64 exec, s[46:47]")
    a(f"ds_write_b128 v10, {vr(CSA,4)} offset:{CS}")
    a("s_mov_b64 exec, -1")
    a("s_xor_b32 s39, s20, 4")
    a("s_mul_i32 s38, s39, 6144")
    a("v_add_u32 v5, s38, v4")
    a("s_lshl_b32 s38, s39, 9")
    a("v_add_u32 v7, s38, v6")
    a("s_lshl_b32 s38, s22, 6")
    a("v_lshlrev_b32 v10, 4, v3")
    a("v_add_u32 v10, s38, v10")
    a("s_waitcnt lgkmcnt(0)")
    a("s_barrier")
    PX = 128
    def statcalc():
        if GS:
            a("v_mul_f32 v22, 0x3b000000, v8")
            a("v_mul_f32 v23, 0x3b000000, v9")
        else:
            a("v_add_f32 v22, v8, v40")
            a("v_add_f32 v23, v9, v41")
            a("v_mul_f32 v22, 0x3b000000, v22")
            a("v_mul_f32 v23, 0x3b000000, v23")
        a("v_fma_f32 v23, -v22, v22, v23")
        a("v_max_f32 v23, 0, v23")
        a("v_add_f32 v23, 0x3727c5ac, v23")
        a("v_rsq_f32 v23, v23")
    if not GS: a(f"ds_read_b64 v[40:41], v7 offset:{ST}")
    for i in range(6):
        a(f"ds_read_b128 {vr(PX+4*i,4)}, v5 offset:{EX + i*1024}")
    CSR = 152
    for b in range(3):
        a(f"s_lshl_b32 s38, s{27+b}, 7")
        a(f"v_add_u32 v{16+b}, s38, v10")
    for k2 in range(2):
        for b in range(3):
            for q in range(2):
                a(f"ds_read_b128 {vr(CSR+24*k2+8*b+4*q,4)}, v{16+b} offset:{CS + k2*384 + q*32}")
    if not GS: a("s_waitcnt lgkmcnt(15)")
    statcalc()
    a("s_lshl_b32 s40, s23, 2")
    a("s_add_u32 s40, s40, s21")
    a("v_lshlrev_b32 v9, 5, v2")
    a("v_lshlrev_b32 v10, 4, v3")
    a("v_add_u32 v9, v9, v10")
    a("v_mul_f32 v22, v22, v23")
    a("s_waitcnt lgkmcnt(0)")
    tk.tick()
    for i in range(24):
        a(f"v_add_f32 v{CSR+i}, v{CSR+i}, v{CSR+24+i}")
    for b in range(3):
        A0 = ACC + 16*b
        a("s_mul_i32 s41, s24, 6")
        a("s_add_u32 s41, s41, s22")
        a(f"s_lshl_b32 s38, s{27+b}, 1")
        a(f"s_add_u32 s41, s41, s38")
        if qkv:
            a("s_lshl_b32 s42, s41, 16")
            a("s_lshl_b32 s43, s40, 10")
            a("s_add_u32 s42, s42, s43")
            a("s_cmp_lt_u32 s41, 32")
            a("s_cselect_b32 s44, 0x3eb8aa3b, 1.0")
            a("v_mul_f32 v11, s44, v23")
            a("v_mul_f32 v12, s44, v22")
            a("s_cmp_ge_u32 s41, 64")
            a("s_cselect_b64 vcc, -1, 0")
            a("v_cndmask_b32 v13, v4, v9, vcc")
            for j in range(8):
                a(f"v_add_f32 v{A0+j}, v{A0+j}, v{PX+8*b+j}")
                a(f"v_mul_f32 v{CSR+24+j}, v12, v{CSR+8*b+j}")
                a(f"v_fma_f32 v{A0+j}, v11, v{A0+j}, -v{CSR+24+j}")
            for j in range(4):
                a(f"v_cvt_pk_bf16_f32 v{PX+8*b+j}, v{A0+2*j}, v{A0+2*j+1}")
            a(f"buffer_store_dwordx4 {vr(PX+8*b,4)}, v13, s[12:15], s42 offen" + STF)
        else:
            a(f"s_mul_i32 s42, s40, {AF_KS}")
            a("s_add_u32 s42, s42, s41")
            a("s_lshl_b32 s42, s42, 10")
            if b == 0: a("s_waitcnt vmcnt(0)")
            for j in range(8):
                x = A0 + j; t1 = A0 + 8 + j
                bsrc = 28 + 4*b + (j >> 1)
                if j & 1: a(f"v_and_b32 v{t1}, s45, v{bsrc}")
                else:     a(f"v_lshlrev_b32 v{t1}, 16, v{bsrc}")
                a(f"v_fma_f32 v{t1}, -v22, v{CSR+8*b+j}, v{t1}")
                a(f"v_add_f32 v{x}, v{x}, v{PX+8*b+j}")
                a(f"v_fma_f32 v{x}, v23, v{x}, v{t1}")
                a(f"v_min_f32 v{t1}, 0x41f00000, v{x}")
                a(f"v_mul_f32 v{t1}, 0x3fb8aa3b, v{t1}")
            for j in range(8):
                a(f"v_exp_f32 v{A0+8+j}, v{A0+8+j}")
            for j in range(8):
                t1 = A0 + 8 + j; t2 = CSR + 8*b + j
                a(f"v_add_f32 v{t2}, 2.0, v{t1}")
                a(f"v_mul_f32 v{t1}, v{t1}, v{t2}")
                a(f"v_add_f32 v{t2}, 2.0, v{t1}")
            for j in range(8):
                a(f"v_rcp_f32 v{CSR+8*b+j}, v{CSR+8*b+j}")
            for j in range(8):
                a(f"v_mul_f32 v{A0+j}, v{A0+j}, v{A0+8+j}")
            for j in range(8):
                a(f"v_mul_f32 v{A0+j}, v{A0+j}, v{CSR+8*b+j}")
            for j in range(4):
                a(f"v_cvt_pk_bf16_f32 v{PX+8*b+j}, v{A0+2*j}, v{A0+2*j+1}")
            a(f"buffer_store_dwordx4 {vr(PX+8*b,4)}, v4, s[12:15], s42 offen" + STF)
    tk.tick()
    if TICK: a("s_waitcnt vmcnt(0)")
    tk.tick()
    tk.dump(20)
    a.label(f"L_{name}_end")
    a("s_endpgm")
    return name, kernel_wrap(name, a.text(), 200, 100 if TICK else 64), NS * SL
```

```python
from dsl import *

PF = int(os.environ.get("PF", "1"))
AD = 0
M0 = int(os.environ.get("M0", "1"))
FB = int(os.environ.get("FB", "0"))
def attn():
    name = "k2_attn_kernel"
    a = Asm()
    tk = Ticks(a, 1)
    ONES = 131072; SCR = ONES + 4608
    Q, KF, VF, P, S, O, NM = 8, [12, 16], [20, 28], [36, 44], [52, 68], 84, 100
    T0 = 116
    a("s_cmp_ge_u32 s2, 256")
    a(f"s_cbranch_scc1 L_{name}_end")
    a("s_load_dwordx2 s[30:31], s[0:1], %d" % KA['ws'])
    a("s_load_dwordx2 s[44:45], s[0:1], %d" % KA['wo'])
    a("s_load_dwordx2 s[46:47], s[0:1], %d" % KA['w1'])
    a("s_load_dwordx2 s[48:49], s[0:1], %d" % KA['w2'])
    a("s_and_b32 s23, s2, 7")
    a("s_lshr_b32 s38, s2, 3")
    a("s_and_b32 s38, s38, 3")
    a("s_lshl_b32 s38, s38, 3")
    a("s_add_u32 s23, s23, s38")
    a("s_lshr_b32 s24, s2, 5")
    tk.tick()
    a("v_and_b32 v1, 63, v0")
    a("v_lshrrev_b32 v2, 6, v0")
    a("s_nop 0")
    a("v_readfirstlane_b32 s20, v2")
    a("s_nop 3")
    a("s_and_b32 s21, s20, 7")
    a("s_lshr_b32 s22, s20, 3")
    a("v_lshlrev_b32 v4, 4, v1")
    a("s_lshr_b32 s38, s20, 1")
    a("s_and_b32 s38, s38, 1")
    a("s_lshl_b32 s38, s38, 5")
    a("s_lshr_b32 s35, s20, 2")
    if AD:
        a("s_lshl_b32 s39, s35, 1")
        a("s_mul_i32 s52, s35, 4")
        a("s_add_u32 s52, s52, 8")
        a("s_lshl_b32 s52, s52, 10")
    else:
        a("s_lshl_b32 s39, s35, 3")
    a("s_add_u32 s38, s38, s39")
    a("s_lshl_b32 s38, s38, 10")
    a("s_and_b32 s39, s20, 1")
    a("s_lshl_b32 s25, s39, 16")
    a("s_add_u32 s25, s25, s38")
    a("s_lshl_b32 s26, s39, 21")
    a("s_add_u32 s26, s26, s38")
    a("s_lshl_b32 s39, s23, 16")
    a("s_add_u32 s26, s26, s39")
    a("s_lshl_b32 s27, s24, 3")
    a("s_add_u32 s27, s27, s21")
    a("s_lshl_b32 s28, s27, 10")
    a("s_add_u32 s28, s28, s39")
    a("s_waitcnt lgkmcnt(0)")
    srd(a, 4, 30, 4*MB, add=WS_KF)
    srd(a, 8, 30, 2*MB, add=WS_QF)
    srd(a, 12, 30, 2*MB, add=WS_OF)
    a(f"buffer_load_dwordx4 {vr(Q,4)}, v4, s[8:11], s28 offen")
    srd(a, 40, 44, 512*512*2)
    a("s_lshr_b32 s51, s2, 3")
    a("s_lshl_b32 s51, s51, 4")
    a("s_add_u32 s51, s51, s20")
    a("s_lshl_b32 s51, s51, 10")
    a("s_mov_b32 s50, s51")
    def kvdma():
        for r in range(8):
            a(f"s_add_u32 m0, s25, {(r&3)*1024 + (r>>2)*4096}")
            if (r & 3) == 0: a(f"s_add_u32 s38, s26, {(r>>2)*4096}")
            a(f"buffer_load_dwordx4 v4, s[4:7], s38 offen offset:{(r&3)*1024} lds" if False else f"buffer_load_dwordx4 v4, s[4:7], s38 offen lds")
            if (r & 3) != 3: a("s_add_u32 s38, s38, 1024")
    def kvdma2(n, ls, gs):
        for r in range(n):
            a(f"s_add_u32 m0, {ls}, {r*1024}")
            a(f"s_add_u32 s38, {gs}, {r*1024}")
            a(f"buffer_load_dwordx4 v4, s[4:7], s38 offen lds")
    if AD:
        kvdma2(2, "s25", "s26")
        a("s_barrier")
        a("s_add_u32 s25, s25, s52")
        a("s_add_u32 s26, s26, s52")
        kvdma2(6, "s25", "s26")
    else:
        a("s_cmp_eq_u32 s35, 0")
        a("s_cbranch_scc0 L_attn_nodma0")
        kvdma()
        a.label("L_attn_nodma0")
    a("v_mov_b32 v5, 0x3f803f80")
    a("v_lshlrev_b32 v6, 2, v0")
    a(f"v_add_u32 v6, {ONES}, v6")
    a("ds_write_b32 v6, v5")
    a("ds_write_b32 v6, v5 offset:512")
    a("s_lshl_b32 s29, s22, 15")
    a("v_add_u32 v2, s29, v4")
    a("v_lshrrev_b32 v5, 5, v1")
    a("v_and_b32 v6, 15, v1")
    a("v_lshlrev_b32 v6, 3, v6")
    a("v_lshlrev_b32 v3, 7, v5")
    a("v_add_u32 v3, v3, v6")
    a("v_xor_b32 v7, 128, v3")
    a(f"v_add_u32 v7, {ONES}, v7")
    a("s_add_u32 s38, s29, 65536")
    a("v_add_u32 v3, s38, v3")
    a("v_and_b32 v6, 16, v1")
    a("v_cmp_ne_u32 vcc, 0, v6")
    a("s_nop 1")
    a("v_cndmask_b32 v3, v3, v7, vcc")
    a("v_mov_b32 v6, 4096")
    a("v_cndmask_b32 v7, v6, 0, vcc")
    a("v_mov_b32 v5, v3")
    a("v_mov_b32 v6, v2")
    a("s_mov_b32 s33, 0")
    def maxtree(dst, src, init):
        if init:
            a(f"v_max3_f32 v{dst}, v{src}, v{src+1}, v{src+2}")
            rest = list(range(src+3, src+16))
        else:
            rest = list(range(src, src+16))
        while len(rest) >= 2:
            a(f"v_max3_f32 v{dst}, v{dst}, v{rest[0]}, v{rest[1]}"); rest = rest[2:]
        if rest: a(f"v_max_f32 v{dst}, v{dst}, v{rest[0]}")
    def zero_init():
        for r in range(16): a(f"v_mov_b32 v{O+r}, 0")
        for r in range(8):
            a(f"v_mov_b32 v{P[1]+r}, 0")
            a(f"v_mov_b32 v{VF[1]+r}, 0")
    def setmax():
        a(f"v_mov_b32 v{T0+1}, v{T0}")
        a("s_nop 1")
        a(f"v_permlane32_swap_b32 v{T0}, v{T0+1}")
        a("s_nop 1")
        a(f"v_max_f32 v{T0}, v{T0}, v{T0+1}")
        for r in range(16): a(f"v_sub_f32 v{NM+r}, 0, v{T0}")
    def mainloop(first, C, tag):
        a(f"ds_read_b128 {vr(KF[0],4)}, v2")
        a(f"ds_read_b128 {vr(KF[1],4)}, v2 offset:1024")
        a("s_waitcnt lgkmcnt(1)")
        a(f"v_mfma_f32_32x32x16_bf16 {vr(S[0],16)}, {vr(KF[0],4)}, {vr(Q,4)}, {C}")
        a("s_nop 7")
        a("s_mov_b32 s32, 0")
        if first: tk.tick()
        a.label(f"L_attn_loop{tag}")
        if first:
            a("s_cmp_eq_u32 s32, 1")
            a("s_cbranch_scc0 L_attn_nosync")
            tk.tick()
            a("s_waitcnt vmcnt(0)")
            a("s_barrier")
            tk.tick()
            a.label("L_attn_nosync")
            if PF:
                a("s_cmp_eq_u32 s32, 0")
                a("s_cbranch_scc1 L_attn_nopf")
                a("s_cmp_eq_u32 s32, 2")
                a("s_cselect_b32 s40, s46, s40")
                a("s_cselect_b32 s41, s47, s41")
                a(f"s_cselect_b32 s42, {512*1376*2}, s42")
                a("s_cselect_b32 s50, s51, s50")
                a("s_cmp_eq_u32 s32, 5")
                a("s_cselect_b32 s40, s48, s40")
                a("s_cselect_b32 s41, s49, s41")
                a("s_cselect_b32 s50, s51, s50")
                a("buffer_load_dwordx4 v[124:127], v4, s[40:43], s50 offen")
                a("s_add_u32 s50, s50, 0x80000")
                a.label("L_attn_nopf")
        for u in range(4):
            p = u & 1
            a("s_waitcnt lgkmcnt(0)")
            a(f"v_mfma_f32_32x32x16_bf16 {vr(S[p^1],16)}, {vr(KF[p^1],4)}, {vr(Q,4)}, {C}")
            a(f"ds_read_b128 {vr(KF[p],4)}, v2 offset:{(u+2)*1024}")
            for r in range(4):
                a(f"ds_read_b64_tr_b16 {vr(VF[p]+2*r,2)}, v3 offset:{u*1024 + r*256}")
            s = S[p]
            for i in range(8):
                a(f"v_exp_f32 v{s+2*i}, v{s+2*i}")
                a(f"v_exp_f32 v{s+2*i+1}, v{s+2*i+1}")
                if i > 0: a(f"v_cvt_pk_bf16_f32 v{P[p]+i-1}, v{s+2*i-2}, v{s+2*i-1}")
                if i == 2: a(f"v_mfma_f32_32x32x16_bf16 {vr(O,16)}, {vr(VF[p^1],4)}, {vr(P[p^1],4)}, {vr(O,16)}")
                if i == 5: a(f"v_mfma_f32_32x32x16_bf16 {vr(O,16)}, {vr(VF[p^1]+4,4)}, {vr(P[p^1]+4,4)}, {vr(O,16)}")
            a("s_nop 0")
            a(f"v_cvt_pk_bf16_f32 v{P[p]+7}, v{s+14}, v{s+15}")
        a("v_add_u32 v2, 4096, v2")
        a("v_add_u32 v3, v3, v7")
        a("s_add_u32 s32, s32, 1")
        a("s_cmp_lt_u32 s32, 8")
        a(f"s_cbranch_scc1 L_attn_loop{tag}")
        a("s_waitcnt lgkmcnt(0)")
        a(f"v_mfma_f32_32x32x16_bf16 {vr(O,16)}, {vr(VF[1],4)}, {vr(P[1],4)}, {vr(O,16)}")
        a(f"v_mfma_f32_32x32x16_bf16 {vr(O,16)}, {vr(VF[1]+4,4)}, {vr(P[1]+4,4)}, {vr(O,16)}")
        a("s_nop 15")
        a("s_nop 3")
    if M0:
        a(f"v_mov_b32 v{T0}, 0")
        zero_init()
    tk.tick()
    a("s_waitcnt vmcnt(0) lgkmcnt(0)")
    a("s_barrier")
    tk.tick()
    a("s_cmp_eq_u32 s35, 0")
    a("s_cbranch_scc1 L_attn_nodma1")
    kvdma()
    a.label("L_attn_nodma1")
    if M0:
        mainloop(True, "0", "")
    else:
        a(f"ds_read_b128 {vr(KF[0],4)}, v2")
        a("s_waitcnt lgkmcnt(0)")
        a(f"v_mfma_f32_32x32x16_bf16 {vr(S[0],16)}, {vr(KF[0],4)}, {vr(Q,4)}, 0")
        a("s_nop 15")
        a("s_nop 3")
        maxtree(T0, S[0], True)
        setmax()
        zero_init()
        mainloop(True, vr(NM,16), "")
    tk.tick()
    a("s_mov_b32 s34, 0x5f800000")
    a(f"v_cmp_nle_f32 s[36:37], v{O+8}, s34")
    a("s_mov_b32 s34, 0x21800000")
    a(f"v_cmp_nge_f32 vcc, v{O+8}, s34")
    a("s_or_b64 s[36:37], s[36:37], vcc")
    a("v_mov_b32 v%d, 0x207" % (T0+1))
    for r in range(8):
        a(f"v_cmp_class_f32 vcc, v{O+r}, v{T0+1}")
        a("s_or_b64 s[36:37], s[36:37], vcc")
    a("s_cmp_eq_u64 s[36:37], 0")
    if not FB: a("s_cbranch_scc1 L_attn_done")
    a("s_waitcnt vmcnt(0)")
    a("v_mov_b32 v2, v6")
    a(f"v_mov_b32 v{T0}, 0xff800000")
    a("s_mov_b32 s32, 0")
    a.label("L_attn_maxloop")
    a(f"ds_read_b128 {vr(KF[0],4)}, v2")
    a("s_waitcnt lgkmcnt(0)")
    a(f"v_mfma_f32_32x32x16_bf16 {vr(S[0],16)}, {vr(KF[0],4)}, {vr(Q,4)}, 0")
    a("s_nop 15")
    a("s_nop 3")
    maxtree(T0, S[0], False)
    a("v_add_u32 v2, 1024, v2")
    a("s_add_u32 s32, s32, 1")
    a("s_cmp_lt_u32 s32, 32")
    a("s_cbranch_scc1 L_attn_maxloop")
    setmax()
    zero_init()
    a("v_mov_b32 v2, v6")
    a("v_mov_b32 v3, v5")
    mainloop(False, vr(NM,16), "2")
    a.label("L_attn_done")
    a("s_mul_i32 s38, s21, 2560")
    a(f"s_add_u32 s38, s38, {SCR}")
    a("v_lshlrev_b32 v2, 2, v1")
    a("v_add_u32 v2, s38, v2")
    a("s_cmp_eq_u32 s22, 0")
    a("s_cbranch_scc1 L_attn_h0")
    for r in range(9): a(f"ds_write_b32 v2, v{O+r} offset:{r*256}")
    a(f"ds_write_b32 v2, v{T0} offset:{9*256}")
    a("s_waitcnt lgkmcnt(0)")
    a("s_barrier")
    a(f"s_branch L_attn_fin")
    a.label("L_attn_h0")
    a("s_barrier")
    for r in range(10): a(f"ds_read_b32 v{S[0]+r}, v2 offset:{r*256}")
    a("s_waitcnt lgkmcnt(0)")
    m1 = S[0] + 9
    a(f"v_max_f32 v{T0+1}, v{T0}, v{m1}")
    a(f"v_sub_f32 v{T0+2}, v{T0}, v{T0+1}")
    a(f"v_sub_f32 v{T0+3}, v{m1}, v{T0+1}")
    a(f"v_exp_f32 v{T0+2}, v{T0+2}")
    a(f"v_exp_f32 v{T0+3}, v{T0+3}")
    a("s_nop 0")
    for r in range(9):
        a(f"v_mul_f32 v{O+r}, v{O+r}, v{T0+2}")
        a(f"v_fma_f32 v{O+r}, v{S[0]+r}, v{T0+3}, v{O+r}")
    a(f"v_rcp_f32 v{T0+4}, v{O+8}")
    a("s_nop 0")
    for r in range(8): a(f"v_mul_f32 v{O+r}, v{O+r}, v{T0+4}")
    for j in range(4): a(f"v_cvt_pk_bf16_f32 v{P[0]+j}, v{O+2*j}, v{O+2*j+1}")
    a("s_lshl_b32 s38, s27, 5")
    a("s_add_u32 s38, s38, s23")
    a("s_lshl_b32 s38, s38, 10")
    a(f"buffer_store_dwordx4 {vr(P[0],4)}, v4, s[12:15], s38 offen" + STF)
    a.label("L_attn_fin")
    tk.tick()
    a("s_waitcnt vmcnt(0)")
    tk.tick()
    tk.dump(20)
    a.label(f"L_{name}_end")
    a("s_endpgm")
    return name, kernel_wrap(name, a.text(), 128, 100 if TICK else 64), SCR + 8*2560
```

```python
from dsl import *

PF = int(os.environ.get("PF", "1"))
AD = 0
OZ = int(os.environ.get("OZ", "1"))
M0 = int(os.environ.get("M0", "1"))
FB = int(os.environ.get("FB", "0"))
def attn():
    name = "k2_attn_kernel"
    a = Asm()
    tk = Ticks(a, 1)
    ONES = 131072; SCR = ONES + 4608
    Q, KF, VF, P, S, O, NM = 8, [12, 16], [20, 28], [36, 44], [52, 68], 84, 100
    T0 = 116
    a("s_cmp_ge_u32 s2, 256")
    a(f"s_cbranch_scc1 L_{name}_end")
    a("s_load_dwordx2 s[30:31], s[0:1], %d" % KA['ws'])
    a("s_load_dwordx2 s[44:45], s[0:1], %d" % KA['wo'])
    a("s_load_dwordx2 s[46:47], s[0:1], %d" % KA['w1'])
    a("s_load_dwordx2 s[48:49], s[0:1], %d" % KA['w2'])
    a("s_and_b32 s23, s2, 7")
    a("s_lshr_b32 s38, s2, 3")
    a("s_and_b32 s38, s38, 3")
    a("s_lshl_b32 s38, s38, 3")
    a("s_add_u32 s23, s23, s38")
    a("s_lshr_b32 s24, s2, 5")
    tk.tick()
    a("v_and_b32 v1, 63, v0")
    a("v_lshrrev_b32 v2, 6, v0")
    a("s_nop 0")
    a("v_readfirstlane_b32 s20, v2")
    a("s_nop 3")
    a("s_and_b32 s21, s20, 7")
    a("s_lshr_b32 s22, s20, 3")
    a("v_lshlrev_b32 v4, 4, v1")
    a("s_lshr_b32 s38, s20, 1")
    a("s_and_b32 s38, s38, 1")
    a("s_lshl_b32 s38, s38, 5")
    a("s_lshr_b32 s35, s20, 2")
    if AD:
        a("s_lshl_b32 s39, s35, 1")
        a("s_mul_i32 s52, s35, 4")
        a("s_add_u32 s52, s52, 8")
        a("s_lshl_b32 s52, s52, 10")
    else:
        a("s_lshl_b32 s39, s35, 3")
    a("s_add_u32 s38, s38, s39")
    a("s_lshl_b32 s38, s38, 10")
    a("s_and_b32 s39, s20, 1")
    a("s_lshl_b32 s25, s39, 16")
    a("s_add_u32 s25, s25, s38")
    a("s_lshl_b32 s26, s39, 21")
    a("s_add_u32 s26, s26, s38")
    a("s_lshl_b32 s39, s23, 16")
    a("s_add_u32 s26, s26, s39")
    a("s_lshl_b32 s27, s24, 3")
    a("s_add_u32 s27, s27, s21")
    a("s_lshl_b32 s28, s27, 10")
    a("s_add_u32 s28, s28, s39")
    a("s_waitcnt lgkmcnt(0)")
    srd(a, 4, 30, 4*MB, add=WS_KF)
    srd(a, 8, 30, 2*MB, add=WS_QF)
    srd(a, 12, 30, 2*MB, add=WS_OF)
    a(f"buffer_load_dwordx4 {vr(Q,4)}, v4, s[8:11], s28 offen")
    srd(a, 40, 44, 512*512*2)
    a("s_lshr_b32 s51, s2, 3")
    a("s_lshl_b32 s51, s51, 4")
    a("s_add_u32 s51, s51, s20")
    a("s_lshl_b32 s51, s51, 10")
    a("s_mov_b32 s50, s51")
    def kvdma():
        for r in range(8):
            a(f"s_add_u32 m0, s25, {(r&3)*1024 + (r>>2)*4096}")
            if (r & 3) == 0: a(f"s_add_u32 s38, s26, {(r>>2)*4096}")
            a(f"buffer_load_dwordx4 v4, s[4:7], s38 offen offset:{(r&3)*1024} lds" if False else f"buffer_load_dwordx4 v4, s[4:7], s38 offen lds")
            if (r & 3) != 3: a("s_add_u32 s38, s38, 1024")
    def kvdma2(n, ls, gs):
        for r in range(n):
            a(f"s_add_u32 m0, {ls}, {r*1024}")
            a(f"s_add_u32 s38, {gs}, {r*1024}")
            a(f"buffer_load_dwordx4 v4, s[4:7], s38 offen lds")
    if AD:
        kvdma2(2, "s25", "s26")
        a("s_barrier")
        a("s_add_u32 s25, s25, s52")
        a("s_add_u32 s26, s26, s52")
        kvdma2(6, "s25", "s26")
    else:
        a("s_cmp_eq_u32 s35, 0")
        a("s_cbranch_scc0 L_attn_nodma0")
        kvdma()
        a.label("L_attn_nodma0")
    if OZ:
        a("v_and_b32 v6, 5, v0")
        a("v_cmp_eq_u32 vcc, 0, v6")
        a("v_mov_b32 v5, 0x3f80")
        a("v_cndmask_b32 v5, 0, v5, vcc")
    else:
        a("v_mov_b32 v5, 0x3f803f80")
    a("v_lshlrev_b32 v6, 2, v0")
    a(f"v_add_u32 v6, {ONES}, v6")
    a("ds_write_b32 v6, v5")
    a("ds_write_b32 v6, v5 offset:512")
    a("s_lshl_b32 s29, s22, 15")
    a("v_add_u32 v2, s29, v4")
    a("v_lshrrev_b32 v5, 5, v1")
    a("v_and_b32 v6, 15, v1")
    a("v_lshlrev_b32 v6, 3, v6")
    a("v_lshlrev_b32 v3, 7, v5")
    a("v_add_u32 v3, v3, v6")
    a("v_xor_b32 v7, 128, v3")
    a(f"v_add_u32 v7, {ONES}, v7")
    a("s_add_u32 s38, s29, 65536")
    a("v_add_u32 v3, s38, v3")
    a("v_and_b32 v6, 16, v1")
    a("v_cmp_ne_u32 vcc, 0, v6")
    a("s_nop 1")
    a("v_cndmask_b32 v3, v3, v7, vcc")
    a("v_mov_b32 v6, 4096")
    a("v_cndmask_b32 v7, v6, 0, vcc")
    a("v_mov_b32 v5, v3")
    a("v_mov_b32 v6, v2")
    a("s_mov_b32 s33, 0")
    def maxtree(dst, src, init):
        if init:
            a(f"v_max3_f32 v{dst}, v{src}, v{src+1}, v{src+2}")
            rest = list(range(src+3, src+16))
        else:
            rest = list(range(src, src+16))
        while len(rest) >= 2:
            a(f"v_max3_f32 v{dst}, v{dst}, v{rest[0]}, v{rest[1]}"); rest = rest[2:]
        if rest: a(f"v_max_f32 v{dst}, v{dst}, v{rest[0]}")
    def zero_init():
        for r in range(16): a(f"v_mov_b32 v{O+r}, 0")
        for r in range(8):
            a(f"v_mov_b32 v{P[1]+r}, 0")
            a(f"v_mov_b32 v{VF[1]+r}, 0")
    def setmax():
        a(f"v_mov_b32 v{T0+1}, v{T0}")
        a("s_nop 1")
        a(f"v_permlane32_swap_b32 v{T0}, v{T0+1}")
        a("s_nop 1")
        a(f"v_max_f32 v{T0}, v{T0}, v{T0+1}")
        for r in range(16): a(f"v_sub_f32 v{NM+r}, 0, v{T0}")
    def mainloop(first, C, tag):
        a(f"ds_read_b128 {vr(KF[0],4)}, v2")
        a(f"ds_read_b128 {vr(KF[1],4)}, v2 offset:1024")
        a("s_waitcnt lgkmcnt(1)")
        a(f"v_mfma_f32_32x32x16_bf16 {vr(S[0],16)}, {vr(KF[0],4)}, {vr(Q,4)}, {C}")
        a("s_nop 7")
        a("s_mov_b32 s32, 0")
        if first: tk.tick()
        a.label(f"L_attn_loop{tag}")
        if first:
            a("s_cmp_eq_u32 s32, 1")
            a("s_cbranch_scc0 L_attn_nosync")
            tk.tick()
            a("s_waitcnt vmcnt(0)")
            a("s_barrier")
            tk.tick()
            a.label("L_attn_nosync")
            if PF:
                a("s_cmp_eq_u32 s32, 0")
                a("s_cbranch_scc1 L_attn_nopf")
                a("s_cmp_eq_u32 s32, 2")
                a("s_cselect_b32 s40, s46, s40")
                a("s_cselect_b32 s41, s47, s41")
                a(f"s_cselect_b32 s42, {512*1376*2}, s42")
                a("s_cselect_b32 s50, s51, s50")
                a("s_cmp_eq_u32 s32, 5")
                a("s_cselect_b32 s40, s48, s40")
                a("s_cselect_b32 s41, s49, s41")
                a("s_cselect_b32 s50, s51, s50")
                a("buffer_load_dwordx4 v[124:127], v4, s[40:43], s50 offen")
                a("s_add_u32 s50, s50, 0x80000")
                a.label("L_attn_nopf")
        for u in range(4):
            p = u & 1
            a("s_waitcnt lgkmcnt(0)")
            a(f"v_mfma_f32_32x32x16_bf16 {vr(S[p^1],16)}, {vr(KF[p^1],4)}, {vr(Q,4)}, {C}")
            a(f"ds_read_b128 {vr(KF[p],4)}, v2 offset:{(u+2)*1024}")
            for r in range(4):
                a(f"ds_read_b64_tr_b16 {vr(VF[p]+2*r,2)}, v3 offset:{u*1024 + r*256}")
            s = S[p]
            for i in range(8):
                a(f"v_exp_f32 v{s+2*i}, v{s+2*i}")
                a(f"v_exp_f32 v{s+2*i+1}, v{s+2*i+1}")
                if i > 0: a(f"v_cvt_pk_bf16_f32 v{P[p]+i-1}, v{s+2*i-2}, v{s+2*i-1}")
                if i == 2: a(f"v_mfma_f32_32x32x16_bf16 {vr(O,16)}, {vr(VF[p^1],4)}, {vr(P[p^1],4)}, {vr(O,16)}")
                if i == 5: a(f"v_mfma_f32_32x32x16_bf16 {vr(O,16)}, {vr(VF[p^1]+4,4)}, {vr(P[p^1]+4,4)}, {vr(O,16)}")
            a("s_nop 0")
            a(f"v_cvt_pk_bf16_f32 v{P[p]+7}, v{s+14}, v{s+15}")
        a("v_add_u32 v2, 4096, v2")
        a("v_add_u32 v3, v3, v7")
        a("s_add_u32 s32, s32, 1")
        a("s_cmp_lt_u32 s32, 8")
        a(f"s_cbranch_scc1 L_attn_loop{tag}")
        a("s_waitcnt lgkmcnt(0)")
        a(f"v_mfma_f32_32x32x16_bf16 {vr(O,16)}, {vr(VF[1],4)}, {vr(P[1],4)}, {vr(O,16)}")
        a(f"v_mfma_f32_32x32x16_bf16 {vr(O,16)}, {vr(VF[1]+4,4)}, {vr(P[1]+4,4)}, {vr(O,16)}")
        a("s_nop 15")
        a("s_nop 3")
    if M0:
        a(f"v_mov_b32 v{T0}, 0")
        zero_init()
    tk.tick()
    a("s_waitcnt vmcnt(0) lgkmcnt(0)")
    a("s_barrier")
    tk.tick()
    a("s_cmp_eq_u32 s35, 0")
    a("s_cbranch_scc1 L_attn_nodma1")
    kvdma()
    a.label("L_attn_nodma1")
    if M0:
        mainloop(True, "0", "")
    else:
        a(f"ds_read_b128 {vr(KF[0],4)}, v2")
        a("s_waitcnt lgkmcnt(0)")
        a(f"v_mfma_f32_32x32x16_bf16 {vr(S[0],16)}, {vr(KF[0],4)}, {vr(Q,4)}, 0")
        a("s_nop 15")
        a("s_nop 3")
        maxtree(T0, S[0], True)
        setmax()
        zero_init()
        mainloop(True, vr(NM,16), "")
    tk.tick()
    a("s_mov_b32 s34, 0x5f800000")
    a(f"v_cmp_nle_f32 s[36:37], v{O+8}, s34")
    a("s_mov_b32 s34, 0x21800000")
    a(f"v_cmp_nge_f32 vcc, v{O+8}, s34")
    a("s_or_b64 s[36:37], s[36:37], vcc")
    a("v_mov_b32 v%d, 0x207" % (T0+1))
    for r in range(8):
        a(f"v_cmp_class_f32 vcc, v{O+r}, v{T0+1}")
        a("s_or_b64 s[36:37], s[36:37], vcc")
    a("s_cmp_eq_u64 s[36:37], 0")
    if not FB: a("s_cbranch_scc1 L_attn_done")
    a("s_waitcnt vmcnt(0)")
    a("v_mov_b32 v2, v6")
    a(f"v_mov_b32 v{T0}, 0xff800000")
    a("s_mov_b32 s32, 0")
    a.label("L_attn_maxloop")
    a(f"ds_read_b128 {vr(KF[0],4)}, v2")
    a("s_waitcnt lgkmcnt(0)")
    a(f"v_mfma_f32_32x32x16_bf16 {vr(S[0],16)}, {vr(KF[0],4)}, {vr(Q,4)}, 0")
    a("s_nop 15")
    a("s_nop 3")
    maxtree(T0, S[0], False)
    a("v_add_u32 v2, 1024, v2")
    a("s_add_u32 s32, s32, 1")
    a("s_cmp_lt_u32 s32, 32")
    a("s_cbranch_scc1 L_attn_maxloop")
    setmax()
    zero_init()
    a("v_mov_b32 v2, v6")
    a("v_mov_b32 v3, v5")
    mainloop(False, vr(NM,16), "2")
    a.label("L_attn_done")
    a("s_mul_i32 s38, s21, 2560")
    a(f"s_add_u32 s38, s38, {SCR}")
    a("v_lshlrev_b32 v2, 2, v1")
    a("v_add_u32 v2, s38, v2")
    a("s_cmp_eq_u32 s22, 0")
    a("s_cbranch_scc1 L_attn_h0")
    for r in range(9): a(f"ds_write_b32 v2, v{O+r} offset:{r*256}")
    a(f"ds_write_b32 v2, v{T0} offset:{9*256}")
    a("s_waitcnt lgkmcnt(0)")
    a("s_barrier")
    a(f"s_branch L_attn_fin")
    a.label("L_attn_h0")
    a("s_barrier")
    for r in range(10): a(f"ds_read_b32 v{S[0]+r}, v2 offset:{r*256}")
    a("s_waitcnt lgkmcnt(0)")
    m1 = S[0] + 9
    a(f"v_max_f32 v{T0+1}, v{T0}, v{m1}")
    a(f"v_sub_f32 v{T0+2}, v{T0}, v{T0+1}")
    a(f"v_sub_f32 v{T0+3}, v{m1}, v{T0+1}")
    a(f"v_exp_f32 v{T0+2}, v{T0+2}")
    a(f"v_exp_f32 v{T0+3}, v{T0+3}")
    a("s_nop 0")
    for r in range(9):
        a(f"v_mul_f32 v{O+r}, v{O+r}, v{T0+2}")
        a(f"v_fma_f32 v{O+r}, v{S[0]+r}, v{T0+3}, v{O+r}")
    a(f"v_rcp_f32 v{T0+4}, v{O+8}")
    a("s_nop 0")
    for r in range(8): a(f"v_mul_f32 v{O+r}, v{O+r}, v{T0+4}")
    for j in range(4): a(f"v_cvt_pk_bf16_f32 v{P[0]+j}, v{O+2*j}, v{O+2*j+1}")
    a("s_lshl_b32 s38, s27, 5")
    a("s_add_u32 s38, s38, s23")
    a("s_lshl_b32 s38, s38, 10")
    a(f"buffer_store_dwordx4 {vr(P[0],4)}, v4, s[12:15], s38 offen" + STF)
    a.label("L_attn_fin")
    tk.tick()
    a("s_waitcnt vmcnt(0)")
    tk.tick()
    tk.dump(20)
    a.label(f"L_{name}_end")
    a("s_endpgm")
    return name, kernel_wrap(name, a.text(), 128, 100 if TICK else 64), SCR + 8*2560
```

```python
from dsl import *

PF = int(os.environ.get("PF", "1"))
AD = 0
PRIO = os.environ.get("PRIO", "3333333333221100")
OZ = int(os.environ.get("OZ", "1"))
M0 = int(os.environ.get("M0", "1"))
FB = int(os.environ.get("FB", "0"))
def attn():
    name = "k2_attn_kernel"
    a = Asm()
    tk = Ticks(a, 1)
    ONES = 131072; SCR = ONES + 4608
    Q, KF, VF, P, S, O, NM = 8, [12, 16], [20, 28], [36, 44], [52, 68], 84, 100
    T0 = 116
    a("s_cmp_ge_u32 s2, 256")
    a(f"s_cbranch_scc1 L_{name}_end")
    a("s_load_dwordx2 s[30:31], s[0:1], %d" % KA['ws'])
    a("s_load_dwordx2 s[44:45], s[0:1], %d" % KA['wo'])
    a("s_load_dwordx2 s[46:47], s[0:1], %d" % KA['w1'])
    a("s_load_dwordx2 s[48:49], s[0:1], %d" % KA['w2'])
    a("s_and_b32 s23, s2, 7")
    a("s_lshr_b32 s38, s2, 3")
    a("s_and_b32 s38, s38, 3")
    a("s_lshl_b32 s38, s38, 3")
    a("s_add_u32 s23, s23, s38")
    a("s_lshr_b32 s24, s2, 5")
    tk.tick()
    a("v_and_b32 v1, 63, v0")
    a("v_lshrrev_b32 v2, 6, v0")
    a("s_nop 0")
    a("v_readfirstlane_b32 s20, v2")
    a("s_nop 3")
    a("s_and_b32 s21, s20, 7")
    a("s_lshr_b32 s22, s20, 3")
    a("v_lshlrev_b32 v4, 4, v1")
    a("s_lshr_b32 s38, s20, 1")
    a("s_and_b32 s38, s38, 1")
    a("s_lshl_b32 s38, s38, 5")
    a("s_lshr_b32 s35, s20, 2")
    if AD:
        a("s_lshl_b32 s39, s35, 1")
        a("s_mul_i32 s52, s35, 4")
        a("s_add_u32 s52, s52, 8")
        a("s_lshl_b32 s52, s52, 10")
    else:
        a("s_lshl_b32 s39, s35, 3")
    a("s_add_u32 s38, s38, s39")
    a("s_lshl_b32 s38, s38, 10")
    a("s_and_b32 s39, s20, 1")
    a("s_lshl_b32 s25, s39, 16")
    a("s_add_u32 s25, s25, s38")
    a("s_lshl_b32 s26, s39, 21")
    a("s_add_u32 s26, s26, s38")
    a("s_lshl_b32 s39, s23, 16")
    a("s_add_u32 s26, s26, s39")
    a("s_lshl_b32 s27, s24, 3")
    a("s_add_u32 s27, s27, s21")
    a("s_lshl_b32 s28, s27, 10")
    a("s_add_u32 s28, s28, s39")
    a("s_waitcnt lgkmcnt(0)")
    srd(a, 4, 30, 4*MB, add=WS_KF)
    srd(a, 8, 30, 2*MB, add=WS_QF)
    srd(a, 12, 30, 2*MB, add=WS_OF)
    a(f"buffer_load_dwordx4 {vr(Q,4)}, v4, s[8:11], s28 offen")
    srd(a, 40, 44, 512*512*2)
    a("s_lshr_b32 s51, s2, 3")
    a("s_lshl_b32 s51, s51, 4")
    a("s_add_u32 s51, s51, s20")
    a("s_lshl_b32 s51, s51, 10")
    a("s_mov_b32 s50, s51")
    def kvdma():
        for r in range(8):
            a(f"s_add_u32 m0, s25, {(r&3)*1024 + (r>>2)*4096}")
            if (r & 3) == 0: a(f"s_add_u32 s38, s26, {(r>>2)*4096}")
            a(f"buffer_load_dwordx4 v4, s[4:7], s38 offen offset:{(r&3)*1024} lds" if False else f"buffer_load_dwordx4 v4, s[4:7], s38 offen lds")
            if (r & 3) != 3: a("s_add_u32 s38, s38, 1024")
    def kvdma2(n, ls, gs):
        for r in range(n):
            a(f"s_add_u32 m0, {ls}, {r*1024}")
            a(f"s_add_u32 s38, {gs}, {r*1024}")
            a(f"buffer_load_dwordx4 v4, s[4:7], s38 offen lds")
    if AD:
        kvdma2(2, "s25", "s26")
        a("s_barrier")
        a("s_add_u32 s25, s25, s52")
        a("s_add_u32 s26, s26, s52")
        kvdma2(6, "s25", "s26")
    else:
        a("s_cmp_eq_u32 s35, 0")
        a("s_cbranch_scc0 L_attn_nodma0")
        kvdma()
        a.label("L_attn_nodma0")
    if OZ:
        a("v_and_b32 v6, 5, v0")
        a("v_cmp_eq_u32 vcc, 0, v6")
        a("v_mov_b32 v5, 0x3f80")
        a("v_cndmask_b32 v5, 0, v5, vcc")
    else:
        a("v_mov_b32 v5, 0x3f803f80")
    a("v_lshlrev_b32 v6, 2, v0")
    a(f"v_add_u32 v6, {ONES}, v6")
    a("ds_write_b32 v6, v5")
    a("ds_write_b32 v6, v5 offset:512")
    a("s_lshl_b32 s29, s22, 15")
    a("v_add_u32 v2, s29, v4")
    a("v_lshrrev_b32 v5, 5, v1")
    a("v_and_b32 v6, 15, v1")
    a("v_lshlrev_b32 v6, 3, v6")
    a("v_lshlrev_b32 v3, 7, v5")
    a("v_add_u32 v3, v3, v6")
    a("v_xor_b32 v7, 128, v3")
    a(f"v_add_u32 v7, {ONES}, v7")
    a("s_add_u32 s38, s29, 65536")
    a("v_add_u32 v3, s38, v3")
    a("v_and_b32 v6, 16, v1")
    a("v_cmp_ne_u32 vcc, 0, v6")
    a("s_nop 1")
    a("v_cndmask_b32 v3, v3, v7, vcc")
    a("v_mov_b32 v6, 4096")
    a("v_cndmask_b32 v7, v6, 0, vcc")
    a("v_mov_b32 v5, v3")
    a("v_mov_b32 v6, v2")
    a("s_mov_b32 s33, 0")
    def maxtree(dst, src, init):
        if init:
            a(f"v_max3_f32 v{dst}, v{src}, v{src+1}, v{src+2}")
            rest = list(range(src+3, src+16))
        else:
            rest = list(range(src, src+16))
        while len(rest) >= 2:
            a(f"v_max3_f32 v{dst}, v{dst}, v{rest[0]}, v{rest[1]}"); rest = rest[2:]
        if rest: a(f"v_max_f32 v{dst}, v{dst}, v{rest[0]}")
    def zero_init():
        for r in range(16): a(f"v_mov_b32 v{O+r}, 0")
        for r in range(8):
            a(f"v_mov_b32 v{P[1]+r}, 0")
            a(f"v_mov_b32 v{VF[1]+r}, 0")
    def setmax():
        a(f"v_mov_b32 v{T0+1}, v{T0}")
        a("s_nop 1")
        a(f"v_permlane32_swap_b32 v{T0}, v{T0+1}")
        a("s_nop 1")
        a(f"v_max_f32 v{T0}, v{T0}, v{T0+1}")
        for r in range(16): a(f"v_sub_f32 v{NM+r}, 0, v{T0}")
    def mainloop(first, C, tag):
        a(f"ds_read_b128 {vr(KF[0],4)}, v2")
        a(f"ds_read_b128 {vr(KF[1],4)}, v2 offset:1024")
        a("s_waitcnt lgkmcnt(1)")
        a(f"v_mfma_f32_32x32x16_bf16 {vr(S[0],16)}, {vr(KF[0],4)}, {vr(Q,4)}, {C}")
        a("s_nop 7")
        a("s_mov_b32 s32, 0")
        if PRIO: a(f"s_setprio {PRIO[0]}")
        if first: tk.tick()
        a.label(f"L_attn_loop{tag}")
        if first:
            a("s_cmp_eq_u32 s32, 1")
            a("s_cbranch_scc0 L_attn_nosync")
            tk.tick()
            a("s_waitcnt vmcnt(0)")
            a("s_barrier")
            tk.tick()
            a.label("L_attn_nosync")
            if PF:
                a("s_cmp_eq_u32 s32, 0")
                a("s_cbranch_scc1 L_attn_nopf")
                a("s_cmp_eq_u32 s32, 2")
                a("s_cselect_b32 s40, s46, s40")
                a("s_cselect_b32 s41, s47, s41")
                a(f"s_cselect_b32 s42, {512*1376*2}, s42")
                a("s_cselect_b32 s50, s51, s50")
                a("s_cmp_eq_u32 s32, 5")
                a("s_cselect_b32 s40, s48, s40")
                a("s_cselect_b32 s41, s49, s41")
                a("s_cselect_b32 s50, s51, s50")
                a("buffer_load_dwordx4 v[124:127], v4, s[40:43], s50 offen")
                a("s_add_u32 s50, s50, 0x80000")
                a.label("L_attn_nopf")
        def setprio(half):
            if not PRIO: return
            for it in range(8):
                k = 2*it + half
                if k == 0 or PRIO[k] == PRIO[k-1]: continue
                a(f"s_cmp_eq_u32 s32, {it}")
                a(f"s_cbranch_scc0 L_attn_p{tag}_{k}")
                a(f"s_setprio {PRIO[k]}")
                a.label(f"L_attn_p{tag}_{k}")
        if PRIO: a(f"s_setprio {PRIO[0]}")  if False else None
        for u in range(4):
            p = u & 1
            if u == 0: setprio(0)
            if u == 2: setprio(1)
            a("s_waitcnt lgkmcnt(0)")
            a(f"v_mfma_f32_32x32x16_bf16 {vr(S[p^1],16)}, {vr(KF[p^1],4)}, {vr(Q,4)}, {C}")
            a(f"ds_read_b128 {vr(KF[p],4)}, v2 offset:{(u+2)*1024}")
            for r in range(4):
                a(f"ds_read_b64_tr_b16 {vr(VF[p]+2*r,2)}, v3 offset:{u*1024 + r*256}")
            s = S[p]
            for i in range(8):
                a(f"v_exp_f32 v{s+2*i}, v{s+2*i}")
                a(f"v_exp_f32 v{s+2*i+1}, v{s+2*i+1}")
                if i > 0: a(f"v_cvt_pk_bf16_f32 v{P[p]+i-1}, v{s+2*i-2}, v{s+2*i-1}")
                if i == 2: a(f"v_mfma_f32_32x32x16_bf16 {vr(O,16)}, {vr(VF[p^1],4)}, {vr(P[p^1],4)}, {vr(O,16)}")
                if i == 5: a(f"v_mfma_f32_32x32x16_bf16 {vr(O,16)}, {vr(VF[p^1]+4,4)}, {vr(P[p^1]+4,4)}, {vr(O,16)}")
            a("s_nop 0")
            a(f"v_cvt_pk_bf16_f32 v{P[p]+7}, v{s+14}, v{s+15}")
        a("v_add_u32 v2, 4096, v2")
        a("v_add_u32 v3, v3, v7")
        a("s_add_u32 s32, s32, 1")
        a("s_cmp_lt_u32 s32, 8")
        a(f"s_cbranch_scc1 L_attn_loop{tag}")
        a("s_waitcnt lgkmcnt(0)")
        a(f"v_mfma_f32_32x32x16_bf16 {vr(O,16)}, {vr(VF[1],4)}, {vr(P[1],4)}, {vr(O,16)}")
        a(f"v_mfma_f32_32x32x16_bf16 {vr(O,16)}, {vr(VF[1]+4,4)}, {vr(P[1]+4,4)}, {vr(O,16)}")
        a("s_nop 15")
        a("s_nop 3")
    if M0:
        a(f"v_mov_b32 v{T0}, 0")
        zero_init()
    tk.tick()
    a("s_waitcnt vmcnt(0) lgkmcnt(0)")
    a("s_barrier")
    tk.tick()
    a("s_cmp_eq_u32 s35, 0")
    a("s_cbranch_scc1 L_attn_nodma1")
    kvdma()
    a.label("L_attn_nodma1")
    if M0:
        mainloop(True, "0", "")
    else:
        a(f"ds_read_b128 {vr(KF[0],4)}, v2")
        a("s_waitcnt lgkmcnt(0)")
        a(f"v_mfma_f32_32x32x16_bf16 {vr(S[0],16)}, {vr(KF[0],4)}, {vr(Q,4)}, 0")
        a("s_nop 15")
        a("s_nop 3")
        maxtree(T0, S[0], True)
        setmax()
        zero_init()
        mainloop(True, vr(NM,16), "")
    tk.tick()
    a("s_mov_b32 s34, 0x5f800000")
    a(f"v_cmp_nle_f32 s[36:37], v{O+8}, s34")
    a("s_mov_b32 s34, 0x21800000")
    a(f"v_cmp_nge_f32 vcc, v{O+8}, s34")
    a("s_or_b64 s[36:37], s[36:37], vcc")
    a("v_mov_b32 v%d, 0x207" % (T0+1))
    for r in range(8):
        a(f"v_cmp_class_f32 vcc, v{O+r}, v{T0+1}")
        a("s_or_b64 s[36:37], s[36:37], vcc")
    a("s_cmp_eq_u64 s[36:37], 0")
    if not FB: a("s_cbranch_scc1 L_attn_done")
    a("s_waitcnt vmcnt(0)")
    a("v_mov_b32 v2, v6")
    a(f"v_mov_b32 v{T0}, 0xff800000")
    a("s_mov_b32 s32, 0")
    a.label("L_attn_maxloop")
    a(f"ds_read_b128 {vr(KF[0],4)}, v2")
    a("s_waitcnt lgkmcnt(0)")
    a(f"v_mfma_f32_32x32x16_bf16 {vr(S[0],16)}, {vr(KF[0],4)}, {vr(Q,4)}, 0")
    a("s_nop 15")
    a("s_nop 3")
    maxtree(T0, S[0], False)
    a("v_add_u32 v2, 1024, v2")
    a("s_add_u32 s32, s32, 1")
    a("s_cmp_lt_u32 s32, 32")
    a("s_cbranch_scc1 L_attn_maxloop")
    setmax()
    zero_init()
    a("v_mov_b32 v2, v6")
    a("v_mov_b32 v3, v5")
    mainloop(False, vr(NM,16), "2")
    a.label("L_attn_done")
    a("s_mul_i32 s38, s21, 2560")
    a(f"s_add_u32 s38, s38, {SCR}")
    a("v_lshlrev_b32 v2, 2, v1")
    a("v_add_u32 v2, s38, v2")
    a("s_cmp_eq_u32 s22, 0")
    a("s_cbranch_scc1 L_attn_h0")
    for r in range(9): a(f"ds_write_b32 v2, v{O+r} offset:{r*256}")
    a(f"ds_write_b32 v2, v{T0} offset:{9*256}")
    a("s_waitcnt lgkmcnt(0)")
    a("s_barrier")
    a(f"s_branch L_attn_fin")
    a.label("L_attn_h0")
    a("s_barrier")
    for r in range(10): a(f"ds_read_b32 v{S[0]+r}, v2 offset:{r*256}")
    a("s_waitcnt lgkmcnt(0)")
    m1 = S[0] + 9
    a(f"v_max_f32 v{T0+1}, v{T0}, v{m1}")
    a(f"v_sub_f32 v{T0+2}, v{T0}, v{T0+1}")
    a(f"v_sub_f32 v{T0+3}, v{m1}, v{T0+1}")
    a(f"v_exp_f32 v{T0+2}, v{T0+2}")
    a(f"v_exp_f32 v{T0+3}, v{T0+3}")
    a("s_nop 0")
    for r in range(9):
        a(f"v_mul_f32 v{O+r}, v{O+r}, v{T0+2}")
        a(f"v_fma_f32 v{O+r}, v{S[0]+r}, v{T0+3}, v{O+r}")
    a(f"v_rcp_f32 v{T0+4}, v{O+8}")
    a("s_nop 0")
    for r in range(8): a(f"v_mul_f32 v{O+r}, v{O+r}, v{T0+4}")
    for j in range(4): a(f"v_cvt_pk_bf16_f32 v{P[0]+j}, v{O+2*j}, v{O+2*j+1}")
    a("s_lshl_b32 s38, s27, 5")
    a("s_add_u32 s38, s38, s23")
    a("s_lshl_b32 s38, s38, 10")
    a(f"buffer_store_dwordx4 {vr(P[0],4)}, v4, s[12:15], s38 offen" + STF)
    a.label("L_attn_fin")
    tk.tick()
    a("s_waitcnt vmcnt(0)")
    tk.tick()
    tk.dump(20)
    a.label(f"L_{name}_end")
    a("s_endpgm")
    return name, kernel_wrap(name, a.text(), 128, 100 if TICK else 64), SCR + 8*2560
```

```python
from dsl import *

PF = int(os.environ.get("PF", "1"))
AD = 0
PRIO = os.environ.get("PRIO", "33333333333333332222222211111100")
SWP = int(os.environ.get("SWP", "1"))
OZ = int(os.environ.get("OZ", "1"))
M0 = int(os.environ.get("M0", "1"))
FB = int(os.environ.get("FB", "0"))
def attn():
    name = "k2_attn_kernel"
    a = Asm()
    tk = Ticks(a, 1)
    ONES = 131072; SCR = ONES + 4608
    Q, KF, VF, P, S, O, NM = 8, [12, 16], [20, 28], [36, 44], [52, 68], 84, 100
    T0 = 116
    a("s_cmp_ge_u32 s2, 256")
    a(f"s_cbranch_scc1 L_{name}_end")
    a("s_load_dwordx2 s[30:31], s[0:1], %d" % KA['ws'])
    a("s_load_dwordx2 s[44:45], s[0:1], %d" % KA['wo'])
    a("s_load_dwordx2 s[46:47], s[0:1], %d" % KA['w1'])
    a("s_load_dwordx2 s[48:49], s[0:1], %d" % KA['w2'])
    a("s_and_b32 s23, s2, 7")
    a("s_lshr_b32 s38, s2, 3")
    a("s_and_b32 s38, s38, 3")
    a("s_lshl_b32 s38, s38, 3")
    a("s_add_u32 s23, s23, s38")
    a("s_lshr_b32 s24, s2, 5")
    tk.tick()
    a("v_and_b32 v1, 63, v0")
    a("v_lshrrev_b32 v2, 6, v0")
    a("s_nop 0")
    a("v_readfirstlane_b32 s20, v2")
    a("s_nop 3")
    a("s_and_b32 s21, s20, 7")
    a("s_lshr_b32 s22, s20, 3")
    a("v_lshlrev_b32 v4, 4, v1")
    a("s_lshr_b32 s38, s20, 1")
    a("s_and_b32 s38, s38, 1")
    a("s_lshl_b32 s38, s38, 5")
    a("s_lshr_b32 s35, s20, 2")
    if AD:
        a("s_lshl_b32 s39, s35, 1")
        a("s_mul_i32 s52, s35, 4")
        a("s_add_u32 s52, s52, 8")
        a("s_lshl_b32 s52, s52, 10")
    else:
        a("s_lshl_b32 s39, s35, 3")
    a("s_add_u32 s38, s38, s39")
    a("s_lshl_b32 s38, s38, 10")
    a("s_and_b32 s39, s20, 1")
    a("s_lshl_b32 s25, s39, 16")
    a("s_add_u32 s25, s25, s38")
    a("s_lshl_b32 s26, s39, 21")
    a("s_add_u32 s26, s26, s38")
    a("s_lshl_b32 s39, s23, 16")
    a("s_add_u32 s26, s26, s39")
    a("s_lshl_b32 s27, s24, 3")
    a("s_add_u32 s27, s27, s21")
    a("s_lshl_b32 s28, s27, 10")
    a("s_add_u32 s28, s28, s39")
    a("s_waitcnt lgkmcnt(0)")
    srd(a, 4, 30, 4*MB, add=WS_KF)
    srd(a, 8, 30, 2*MB, add=WS_QF)
    srd(a, 12, 30, 2*MB, add=WS_OF)
    a(f"buffer_load_dwordx4 {vr(Q,4)}, v4, s[8:11], s28 offen")
    srd(a, 40, 44, 512*512*2)
    a("s_lshr_b32 s51, s2, 3")
    a("s_lshl_b32 s51, s51, 4")
    a("s_add_u32 s51, s51, s20")
    a("s_lshl_b32 s51, s51, 10")
    a("s_mov_b32 s50, s51")
    def kvdma():
        for r in range(8):
            a(f"s_add_u32 m0, s25, {(r&3)*1024 + (r>>2)*4096}")
            if (r & 3) == 0: a(f"s_add_u32 s38, s26, {(r>>2)*4096}")
            a(f"buffer_load_dwordx4 v4, s[4:7], s38 offen offset:{(r&3)*1024} lds" if False else f"buffer_load_dwordx4 v4, s[4:7], s38 offen lds")
            if (r & 3) != 3: a("s_add_u32 s38, s38, 1024")
    def kvdma2(n, ls, gs):
        for r in range(n):
            a(f"s_add_u32 m0, {ls}, {r*1024}")
            a(f"s_add_u32 s38, {gs}, {r*1024}")
            a(f"buffer_load_dwordx4 v4, s[4:7], s38 offen lds")
    if AD:
        kvdma2(2, "s25", "s26")
        a("s_barrier")
        a("s_add_u32 s25, s25, s52")
        a("s_add_u32 s26, s26, s52")
        kvdma2(6, "s25", "s26")
    else:
        a("s_cmp_eq_u32 s35, 0")
        a("s_cbranch_scc0 L_attn_nodma0")
        kvdma()
        a.label("L_attn_nodma0")
    if OZ:
        a("v_and_b32 v6, 5, v0")
        a("v_cmp_eq_u32 vcc, 0, v6")
        a("v_mov_b32 v5, 0x3f80")
        a("v_cndmask_b32 v5, 0, v5, vcc")
    else:
        a("v_mov_b32 v5, 0x3f803f80")
    a("v_lshlrev_b32 v6, 2, v0")
    a(f"v_add_u32 v6, {ONES}, v6")
    a("ds_write_b32 v6, v5")
    a("ds_write_b32 v6, v5 offset:512")
    a("s_lshl_b32 s29, s22, 15")
    a("v_add_u32 v2, s29, v4")
    a("v_lshrrev_b32 v5, 5, v1")
    a("v_and_b32 v6, 15, v1")
    a("v_lshlrev_b32 v6, 3, v6")
    a("v_lshlrev_b32 v3, 7, v5")
    a("v_add_u32 v3, v3, v6")
    a("v_xor_b32 v7, 128, v3")
    a(f"v_add_u32 v7, {ONES}, v7")
    a("s_add_u32 s38, s29, 65536")
    a("v_add_u32 v3, s38, v3")
    a("v_and_b32 v6, 16, v1")
    a("v_cmp_ne_u32 vcc, 0, v6")
    a("s_nop 1")
    a("v_cndmask_b32 v3, v3, v7, vcc")
    a("v_mov_b32 v6, 4096")
    a("v_cndmask_b32 v7, v6, 0, vcc")
    a("v_mov_b32 v5, v3")
    a("v_mov_b32 v6, v2")
    a("s_mov_b32 s33, 0")
    def maxtree(dst, src, init):
        if init:
            a(f"v_max3_f32 v{dst}, v{src}, v{src+1}, v{src+2}")
            rest = list(range(src+3, src+16))
        else:
            rest = list(range(src, src+16))
        while len(rest) >= 2:
            a(f"v_max3_f32 v{dst}, v{dst}, v{rest[0]}, v{rest[1]}"); rest = rest[2:]
        if rest: a(f"v_max_f32 v{dst}, v{dst}, v{rest[0]}")
    def zero_init():
        for r in range(16): a(f"v_mov_b32 v{O+r}, 0")
        for r in range(8):
            a(f"v_mov_b32 v{P[1]+r}, 0")
            a(f"v_mov_b32 v{VF[1]+r}, 0")
    def setmax():
        a(f"v_mov_b32 v{T0+1}, v{T0}")
        a("s_nop 1")
        a(f"v_permlane32_swap_b32 v{T0}, v{T0+1}")
        a("s_nop 1")
        a(f"v_max_f32 v{T0}, v{T0}, v{T0+1}")
        for r in range(16): a(f"v_sub_f32 v{NM+r}, 0, v{T0}")
    def mainloop(first, C, tag):
        a(f"ds_read_b128 {vr(KF[0],4)}, v2")
        a(f"ds_read_b128 {vr(KF[1],4)}, v2 offset:1024")
        a("s_waitcnt lgkmcnt(1)")
        a(f"v_mfma_f32_32x32x16_bf16 {vr(S[0],16)}, {vr(KF[0],4)}, {vr(Q,4)}, {C}")
        a("s_nop 7")
        a("s_mov_b32 s32, 0")
        if PRIO: a(f"s_setprio {PRIO[0]}")
        if first: tk.tick()
        a.label(f"L_attn_loop{tag}")
        if first:
            a("s_cmp_eq_u32 s32, 1")
            a("s_cbranch_scc0 L_attn_nosync")
            tk.tick()
            a("s_waitcnt vmcnt(0)")
            a("s_barrier")
            tk.tick()
            a.label("L_attn_nosync")
            if PF:
                a("s_cmp_eq_u32 s32, 0")
                a("s_cbranch_scc1 L_attn_nopf")
                a("s_cmp_eq_u32 s32, 2")
                a("s_cselect_b32 s40, s46, s40")
                a("s_cselect_b32 s41, s47, s41")
                a(f"s_cselect_b32 s42, {512*1376*2}, s42")
                a("s_cselect_b32 s50, s51, s50")
                a("s_cmp_eq_u32 s32, 5")
                a("s_cselect_b32 s40, s48, s40")
                a("s_cselect_b32 s41, s49, s41")
                a("s_cselect_b32 s50, s51, s50")
                a("buffer_load_dwordx4 v[124:127], v4, s[40:43], s50 offen")
                a("s_add_u32 s50, s50, 0x80000")
                a.label("L_attn_nopf")
        def setprio(half):
            if not PRIO: return
            for it in range(8):
                k = 4*it + half
                if k == 0 or PRIO[k] == PRIO[k-1]: continue
                a(f"s_cmp_eq_u32 s32, {it}")
                a(f"s_cbranch_scc0 L_attn_p{tag}_{k}")
                a(f"s_setprio {PRIO[k]}")
                a.label(f"L_attn_p{tag}_{k}")
        if PRIO: a(f"s_setprio {PRIO[0]}")  if False else None
        for u in range(4):
            p = u & 1
            setprio(u)
            a("s_waitcnt lgkmcnt(0)")
            a(f"v_mfma_f32_32x32x16_bf16 {vr(S[p^1],16)}, {vr(KF[p^1],4)}, {vr(Q,4)}, {C}")
            a(f"ds_read_b128 {vr(KF[p],4)}, v2 offset:{(u+2)*1024}")
            for r in range(4):
                a(f"ds_read_b64_tr_b16 {vr(VF[p]+2*r,2)}, v3 offset:{u*1024 + r*256}")
            s = S[p]
            for i in range(8):
                a(f"v_exp_f32 v{s+2*i}, v{s+2*i}")
                a(f"v_exp_f32 v{s+2*i+1}, v{s+2*i+1}")
                if i > 0: a(f"v_cvt_pk_bf16_f32 v{P[p]+i-1}, v{s+2*i-2}, v{s+2*i-1}")
                if i == 2: a(f"v_mfma_f32_32x32x16_bf16 {vr(O,16)}, {vr(VF[p^1],4)}, {vr(P[p^1],4)}, {vr(O,16)}")
                if i == 5: a(f"v_mfma_f32_32x32x16_bf16 {vr(O,16)}, {vr(VF[p^1]+4,4)}, {vr(P[p^1]+4,4)}, {vr(O,16)}")
            a("s_nop 0")
            a(f"v_cvt_pk_bf16_f32 v{P[p]+7}, v{s+14}, v{s+15}")
        a("v_add_u32 v2, 4096, v2")
        a("v_add_u32 v3, v3, v7")
        a("s_add_u32 s32, s32, 1")
        a("s_cmp_lt_u32 s32, 8")
        a(f"s_cbranch_scc1 L_attn_loop{tag}")
        a("s_waitcnt lgkmcnt(0)")
        a(f"v_mfma_f32_32x32x16_bf16 {vr(O,16)}, {vr(VF[1],4)}, {vr(P[1],4)}, {vr(O,16)}")
        a(f"v_mfma_f32_32x32x16_bf16 {vr(O,16)}, {vr(VF[1]+4,4)}, {vr(P[1]+4,4)}, {vr(O,16)}")
        a("s_nop 15")
        a("s_nop 3")
    if M0:
        a(f"v_mov_b32 v{T0}, 0")
        zero_init()
    tk.tick()
    a("s_waitcnt vmcnt(0) lgkmcnt(0)")
    a("s_barrier")
    tk.tick()
    a("s_cmp_eq_u32 s35, 0")
    a("s_cbranch_scc1 L_attn_nodma1")
    kvdma()
    a.label("L_attn_nodma1")
    if M0:
        mainloop(True, "0", "")
    else:
        a(f"ds_read_b128 {vr(KF[0],4)}, v2")
        a("s_waitcnt lgkmcnt(0)")
        a(f"v_mfma_f32_32x32x16_bf16 {vr(S[0],16)}, {vr(KF[0],4)}, {vr(Q,4)}, 0")
        a("s_nop 15")
        a("s_nop 3")
        maxtree(T0, S[0], True)
        setmax()
        zero_init()
        mainloop(True, vr(NM,16), "")
    tk.tick()
    a("s_mov_b32 s34, 0x5f800000")
    a(f"v_cmp_nle_f32 s[36:37], v{O+8}, s34")
    a("s_mov_b32 s34, 0x21800000")
    a(f"v_cmp_nge_f32 vcc, v{O+8}, s34")
    a("s_or_b64 s[36:37], s[36:37], vcc")
    a("v_mov_b32 v%d, 0x207" % (T0+1))
    for r in range(8):
        a(f"v_cmp_class_f32 vcc, v{O+r}, v{T0+1}")
        a("s_or_b64 s[36:37], s[36:37], vcc")
    a("s_cmp_eq_u64 s[36:37], 0")
    if not FB: a("s_cbranch_scc1 L_attn_done")
    a("s_waitcnt vmcnt(0)")
    a("v_mov_b32 v2, v6")
    a(f"v_mov_b32 v{T0}, 0xff800000")
    a("s_mov_b32 s32, 0")
    a.label("L_attn_maxloop")
    a(f"ds_read_b128 {vr(KF[0],4)}, v2")
    a("s_waitcnt lgkmcnt(0)")
    a(f"v_mfma_f32_32x32x16_bf16 {vr(S[0],16)}, {vr(KF[0],4)}, {vr(Q,4)}, 0")
    a("s_nop 15")
    a("s_nop 3")
    maxtree(T0, S[0], False)
    a("v_add_u32 v2, 1024, v2")
    a("s_add_u32 s32, s32, 1")
    a("s_cmp_lt_u32 s32, 32")
    a("s_cbranch_scc1 L_attn_maxloop")
    setmax()
    zero_init()
    a("v_mov_b32 v2, v6")
    a("v_mov_b32 v3, v5")
    mainloop(False, vr(NM,16), "2")
    a.label("L_attn_done")
    a("s_mul_i32 s38, s21, 2560")
    a(f"s_add_u32 s38, s38, {SCR}")
    a("v_lshlrev_b32 v2, 2, v1")
    a("v_add_u32 v2, s38, v2")
    a(f"s_cmp_eq_u32 s22, {1 if SWP else 0}")
    a("s_cbranch_scc1 L_attn_h0")
    for r in range(9): a(f"ds_write_b32 v2, v{O+r} offset:{r*256}")
    a(f"ds_write_b32 v2, v{T0} offset:{9*256}")
    a("s_waitcnt lgkmcnt(0)")
    a("s_barrier")
    a(f"s_branch L_attn_fin")
    a.label("L_attn_h0")
    a("s_barrier")
    for r in range(10): a(f"ds_read_b32 v{S[0]+r}, v2 offset:{r*256}")
    a("s_waitcnt lgkmcnt(0)")
    m1 = S[0] + 9
    a(f"v_max_f32 v{T0+1}, v{T0}, v{m1}")
    a(f"v_sub_f32 v{T0+2}, v{T0}, v{T0+1}")
    a(f"v_sub_f32 v{T0+3}, v{m1}, v{T0+1}")
    a(f"v_exp_f32 v{T0+2}, v{T0+2}")
    a(f"v_exp_f32 v{T0+3}, v{T0+3}")
    a("s_nop 0")
    for r in range(9):
        a(f"v_mul_f32 v{O+r}, v{O+r}, v{T0+2}")
        a(f"v_fma_f32 v{O+r}, v{S[0]+r}, v{T0+3}, v{O+r}")
    a(f"v_rcp_f32 v{T0+4}, v{O+8}")
    a("s_nop 0")
    for r in range(8): a(f"v_mul_f32 v{O+r}, v{O+r}, v{T0+4}")
    for j in range(4): a(f"v_cvt_pk_bf16_f32 v{P[0]+j}, v{O+2*j}, v{O+2*j+1}")
    a("s_lshl_b32 s38, s27, 5")
    a("s_add_u32 s38, s38, s23")
    a("s_lshl_b32 s38, s38, 10")
    a(f"buffer_store_dwordx4 {vr(P[0],4)}, v4, s[12:15], s38 offen" + STF)
    a.label("L_attn_fin")
    tk.tick()
    a("s_waitcnt vmcnt(0)")
    tk.tick()
    tk.dump(20)
    a.label(f"L_{name}_end")
    a("s_endpgm")
    return name, kernel_wrap(name, a.text(), 128, 100 if TICK else 64), SCR + 8*2560
```

```python
from dsl import *

PF = int(os.environ.get("PF", "1"))
AD = 0
PRIO = os.environ.get("PRIO", "33333333333333333333333322221110")
SWP = int(os.environ.get("SWP", "1"))
OZ = int(os.environ.get("OZ", "1"))
M0 = int(os.environ.get("M0", "1"))
FB = int(os.environ.get("FB", "0"))
def attn():
    name = "k2_attn_kernel"
    a = Asm()
    tk = Ticks(a, 1)
    ONES = 131072; SCR = ONES + 4608
    Q, KF, VF, P, S, O, NM = 8, [12, 16], [20, 28], [36, 44], [52, 68], 84, 100
    T0 = 116
    a("s_cmp_ge_u32 s2, 256")
    a(f"s_cbranch_scc1 L_{name}_end")
    a("s_load_dwordx2 s[30:31], s[0:1], %d" % KA['ws'])
    a("s_load_dwordx2 s[44:45], s[0:1], %d" % KA['wo'])
    a("s_load_dwordx2 s[46:47], s[0:1], %d" % KA['w1'])
    a("s_load_dwordx2 s[48:49], s[0:1], %d" % KA['w2'])
    a("s_and_b32 s23, s2, 7")
    a("s_lshr_b32 s38, s2, 3")
    a("s_and_b32 s38, s38, 3")
    a("s_lshl_b32 s38, s38, 3")
    a("s_add_u32 s23, s23, s38")
    a("s_lshr_b32 s24, s2, 5")
    tk.tick()
    a("v_and_b32 v1, 63, v0")
    a("v_lshrrev_b32 v2, 6, v0")
    a("s_nop 0")
    a("v_readfirstlane_b32 s20, v2")
    a("s_nop 3")
    a("s_and_b32 s21, s20, 7")
    a("s_lshr_b32 s22, s20, 3")
    a("v_lshlrev_b32 v4, 4, v1")
    a("s_lshr_b32 s38, s20, 1")
    a("s_and_b32 s38, s38, 1")
    a("s_lshl_b32 s38, s38, 5")
    a("s_lshr_b32 s35, s20, 2")
    if AD:
        a("s_lshl_b32 s39, s35, 1")
        a("s_mul_i32 s52, s35, 4")
        a("s_add_u32 s52, s52, 8")
        a("s_lshl_b32 s52, s52, 10")
    else:
        a("s_lshl_b32 s39, s35, 3")
    a("s_add_u32 s38, s38, s39")
    a("s_lshl_b32 s38, s38, 10")
    a("s_and_b32 s39, s20, 1")
    a("s_lshl_b32 s25, s39, 16")
    a("s_add_u32 s25, s25, s38")
    a("s_lshl_b32 s26, s39, 21")
    a("s_add_u32 s26, s26, s38")
    a("s_lshl_b32 s39, s23, 16")
    a("s_add_u32 s26, s26, s39")
    a("s_lshl_b32 s27, s24, 3")
    a("s_add_u32 s27, s27, s21")
    a("s_lshl_b32 s28, s27, 10")
    a("s_add_u32 s28, s28, s39")
    a("s_waitcnt lgkmcnt(0)")
    srd(a, 4, 30, 4*MB, add=WS_KF)
    srd(a, 8, 30, 2*MB, add=WS_QF)
    srd(a, 12, 30, 2*MB, add=WS_OF)
    a(f"buffer_load_dwordx4 {vr(Q,4)}, v4, s[8:11], s28 offen")
    srd(a, 40, 44, 512*512*2)
    a("s_lshr_b32 s51, s2, 3")
    a("s_lshl_b32 s51, s51, 4")
    a("s_add_u32 s51, s51, s20")
    a("s_lshl_b32 s51, s51, 10")
    a("s_mov_b32 s50, s51")
    def kvdma():
        for r in range(8):
            a(f"s_add_u32 m0, s25, {(r&3)*1024 + (r>>2)*4096}")
            if (r & 3) == 0: a(f"s_add_u32 s38, s26, {(r>>2)*4096}")
            a(f"buffer_load_dwordx4 v4, s[4:7], s38 offen offset:{(r&3)*1024} lds" if False else f"buffer_load_dwordx4 v4, s[4:7], s38 offen lds")
            if (r & 3) != 3: a("s_add_u32 s38, s38, 1024")
    def kvdma2(n, ls, gs):
        for r in range(n):
            a(f"s_add_u32 m0, {ls}, {r*1024}")
            a(f"s_add_u32 s38, {gs}, {r*1024}")
            a(f"buffer_load_dwordx4 v4, s[4:7], s38 offen lds")
    if AD:
        kvdma2(2, "s25", "s26")
        a("s_barrier")
        a("s_add_u32 s25, s25, s52")
        a("s_add_u32 s26, s26, s52")
        kvdma2(6, "s25", "s26")
    else:
        a("s_cmp_eq_u32 s35, 0")
        a("s_cbranch_scc0 L_attn_nodma0")
        kvdma()
        a.label("L_attn_nodma0")
    if OZ:
        a("v_and_b32 v6, 5, v0")
        a("v_cmp_eq_u32 vcc, 0, v6")
        a("v_mov_b32 v5, 0x3f80")
        a("v_cndmask_b32 v5, 0, v5, vcc")
    else:
        a("v_mov_b32 v5, 0x3f803f80")
    a("v_lshlrev_b32 v6, 2, v0")
    a(f"v_add_u32 v6, {ONES}, v6")
    a("ds_write_b32 v6, v5")
    a("ds_write_b32 v6, v5 offset:512")
    a("s_lshl_b32 s29, s22, 15")
    a("v_add_u32 v2, s29, v4")
    a("v_lshrrev_b32 v5, 5, v1")
    a("v_and_b32 v6, 15, v1")
    a("v_lshlrev_b32 v6, 3, v6")
    a("v_lshlrev_b32 v3, 7, v5")
    a("v_add_u32 v3, v3, v6")
    a("v_xor_b32 v7, 128, v3")
    a(f"v_add_u32 v7, {ONES}, v7")
    a("s_add_u32 s38, s29, 65536")
    a("v_add_u32 v3, s38, v3")
    a("v_and_b32 v6, 16, v1")
    a("v_cmp_ne_u32 vcc, 0, v6")
    a("s_nop 1")
    a("v_cndmask_b32 v3, v3, v7, vcc")
    a("v_mov_b32 v6, 4096")
    a("v_cndmask_b32 v7, v6, 0, vcc")
    a("v_mov_b32 v5, v3")
    a("v_mov_b32 v6, v2")
    a("s_mov_b32 s33, 0")
    def maxtree(dst, src, init):
        if init:
            a(f"v_max3_f32 v{dst}, v{src}, v{src+1}, v{src+2}")
            rest = list(range(src+3, src+16))
        else:
            rest = list(range(src, src+16))
        while len(rest) >= 2:
            a(f"v_max3_f32 v{dst}, v{dst}, v{rest[0]}, v{rest[1]}"); rest = rest[2:]
        if rest: a(f"v_max_f32 v{dst}, v{dst}, v{rest[0]}")
    def zero_init():
        for r in range(16): a(f"v_mov_b32 v{O+r}, 0")
        for r in range(8):
            a(f"v_mov_b32 v{P[1]+r}, 0")
            a(f"v_mov_b32 v{VF[1]+r}, 0")
    def setmax():
        a(f"v_mov_b32 v{T0+1}, v{T0}")
        a("s_nop 1")
        a(f"v_permlane32_swap_b32 v{T0}, v{T0+1}")
        a("s_nop 1")
        a(f"v_max_f32 v{T0}, v{T0}, v{T0+1}")
        for r in range(16): a(f"v_sub_f32 v{NM+r}, 0, v{T0}")
    def mainloop(first, C, tag):
        a(f"ds_read_b128 {vr(KF[0],4)}, v2")
        a(f"ds_read_b128 {vr(KF[1],4)}, v2 offset:1024")
        a("s_waitcnt lgkmcnt(1)")
        a(f"v_mfma_f32_32x32x16_bf16 {vr(S[0],16)}, {vr(KF[0],4)}, {vr(Q,4)}, {C}")
        a("s_nop 7")
        a("s_mov_b32 s32, 0")
        if PRIO: a(f"s_setprio {PRIO[0]}")
        if first: tk.tick()
        a.label(f"L_attn_loop{tag}")
        if first:
            a("s_cmp_eq_u32 s32, 1")
            a("s_cbranch_scc0 L_attn_nosync")
            tk.tick()
            a("s_waitcnt vmcnt(0)")
            a("s_barrier")
            tk.tick()
            a.label("L_attn_nosync")
            if PF:
                a("s_cmp_eq_u32 s32, 0")
                a("s_cbranch_scc1 L_attn_nopf")
                a("s_cmp_eq_u32 s32, 2")
                a("s_cselect_b32 s40, s46, s40")
                a("s_cselect_b32 s41, s47, s41")
                a(f"s_cselect_b32 s42, {512*1376*2}, s42")
                a("s_cselect_b32 s50, s51, s50")
                a("s_cmp_eq_u32 s32, 5")
                a("s_cselect_b32 s40, s48, s40")
                a("s_cselect_b32 s41, s49, s41")
                a("s_cselect_b32 s50, s51, s50")
                a("buffer_load_dwordx4 v[124:127], v4, s[40:43], s50 offen")
                a("s_add_u32 s50, s50, 0x80000")
                a.label("L_attn_nopf")
        def setprio(half):
            if not PRIO: return
            for it in range(8):
                k = 4*it + half
                if k == 0 or PRIO[k] == PRIO[k-1]: continue
                a(f"s_cmp_eq_u32 s32, {it}")
                a(f"s_cbranch_scc0 L_attn_p{tag}_{k}")
                a(f"s_setprio {PRIO[k]}")
                a.label(f"L_attn_p{tag}_{k}")
        if PRIO: a(f"s_setprio {PRIO[0]}")  if False else None
        for u in range(4):
            p = u & 1
            setprio(u)
            a("s_waitcnt lgkmcnt(0)")
            a(f"v_mfma_f32_32x32x16_bf16 {vr(S[p^1],16)}, {vr(KF[p^1],4)}, {vr(Q,4)}, {C}")
            a(f"ds_read_b128 {vr(KF[p],4)}, v2 offset:{(u+2)*1024}")
            for r in range(4):
                a(f"ds_read_b64_tr_b16 {vr(VF[p]+2*r,2)}, v3 offset:{u*1024 + r*256}")
            s = S[p]
            for i in range(8):
                a(f"v_exp_f32 v{s+2*i}, v{s+2*i}")
                a(f"v_exp_f32 v{s+2*i+1}, v{s+2*i+1}")
                if i > 0: a(f"v_cvt_pk_bf16_f32 v{P[p]+i-1}, v{s+2*i-2}, v{s+2*i-1}")
                if i == 2: a(f"v_mfma_f32_32x32x16_bf16 {vr(O,16)}, {vr(VF[p^1],4)}, {vr(P[p^1],4)}, {vr(O,16)}")
                if i == 5: a(f"v_mfma_f32_32x32x16_bf16 {vr(O,16)}, {vr(VF[p^1]+4,4)}, {vr(P[p^1]+4,4)}, {vr(O,16)}")
            a("s_nop 0")
            a(f"v_cvt_pk_bf16_f32 v{P[p]+7}, v{s+14}, v{s+15}")
        a("v_add_u32 v2, 4096, v2")
        a("v_add_u32 v3, v3, v7")
        a("s_add_u32 s32, s32, 1")
        a("s_cmp_lt_u32 s32, 8")
        a(f"s_cbranch_scc1 L_attn_loop{tag}")
        a("s_waitcnt lgkmcnt(0)")
        a(f"v_mfma_f32_32x32x16_bf16 {vr(O,16)}, {vr(VF[1],4)}, {vr(P[1],4)}, {vr(O,16)}")
        a(f"v_mfma_f32_32x32x16_bf16 {vr(O,16)}, {vr(VF[1]+4,4)}, {vr(P[1]+4,4)}, {vr(O,16)}")
        a("s_nop 15")
        a("s_nop 3")
    if M0:
        a(f"v_mov_b32 v{T0}, 0")
        zero_init()
    tk.tick()
    a("s_waitcnt vmcnt(0) lgkmcnt(0)")
    a("s_barrier")
    tk.tick()
    a("s_cmp_eq_u32 s35, 0")
    a("s_cbranch_scc1 L_attn_nodma1")
    kvdma()
    a.label("L_attn_nodma1")
    if M0:
        mainloop(True, "0", "")
    else:
        a(f"ds_read_b128 {vr(KF[0],4)}, v2")
        a("s_waitcnt lgkmcnt(0)")
        a(f"v_mfma_f32_32x32x16_bf16 {vr(S[0],16)}, {vr(KF[0],4)}, {vr(Q,4)}, 0")
        a("s_nop 15")
        a("s_nop 3")
        maxtree(T0, S[0], True)
        setmax()
        zero_init()
        mainloop(True, vr(NM,16), "")
    tk.tick()
    a(f"v_mul_f32 v{T0+1}, 0, v{O}")
    a(f"v_mul_f32 v{T0+2}, 0, v{O+1}")
    a("s_mov_b32 s34, 0x5f800000")
    a(f"v_cmp_nle_f32 s[36:37], v{O+8}, s34")
    a("s_mov_b32 s34, 0x21800000")
    a(f"v_cmp_nge_f32 s[38:39], v{O+8}, s34")
    for r in range(2, 8):
        a(f"v_fma_f32 v{T0+1+(r&1)}, v{O+r}, 0, v{T0+1+(r&1)}")
    a(f"v_add_f32 v{T0+1}, v{T0+1}, v{T0+2}")
    a("s_or_b64 s[36:37], s[36:37], s[38:39]")
    a(f"v_cmp_u_f32 vcc, v{T0+1}, v{T0+1}")
    a("s_or_b64 s[36:37], s[36:37], vcc")
    a("s_cmp_eq_u64 s[36:37], 0")
    if not FB: a("s_cbranch_scc1 L_attn_done")
    a("s_waitcnt vmcnt(0)")
    a("v_mov_b32 v2, v6")
    a(f"v_mov_b32 v{T0}, 0xff800000")
    a("s_mov_b32 s32, 0")
    a.label("L_attn_maxloop")
    a(f"ds_read_b128 {vr(KF[0],4)}, v2")
    a("s_waitcnt lgkmcnt(0)")
    a(f"v_mfma_f32_32x32x16_bf16 {vr(S[0],16)}, {vr(KF[0],4)}, {vr(Q,4)}, 0")
    a("s_nop 15")
    a("s_nop 3")
    maxtree(T0, S[0], False)
    a("v_add_u32 v2, 1024, v2")
    a("s_add_u32 s32, s32, 1")
    a("s_cmp_lt_u32 s32, 32")
    a("s_cbranch_scc1 L_attn_maxloop")
    setmax()
    zero_init()
    a("v_mov_b32 v2, v6")
    a("v_mov_b32 v3, v5")
    mainloop(False, vr(NM,16), "2")
    a.label("L_attn_done")
    a("s_mul_i32 s38, s21, 2560")
    a(f"s_add_u32 s38, s38, {SCR}")
    a("v_add_u32 v2, s38, v4")
    a("v_lshlrev_b32 v3, 3, v1")
    a("v_add_u32 v3, s38, v3")
    a(f"v_mov_b32 v{O+9}, v{T0}")
    a("s_lshl_b32 s38, s27, 5")
    a("s_add_u32 s38, s38, s23")
    a("s_lshl_b32 s38, s38, 10")
    a("s_mov_b32 s33, s22")
    a("s_cmp_eq_u32 s22, 0")
    a("s_cselect_b64 exec, 0, -1")
    a(f"ds_write_b128 v2, {vr(O,4)}")
    a(f"ds_write_b128 v2, {vr(O+4,4)} offset:1024")
    a(f"ds_write_b64 v3, {vr(O+8,2)} offset:2048")
    a("s_waitcnt lgkmcnt(0)")
    a("s_cbranch_scc1 L_attn_comb")
    a("s_barrier")
    a(f"s_branch L_attn_fin")
    a.label("L_attn_comb")
    a(f"ds_read_b64 {vr(S[0]+8,2)}, v3 offset:2048")
    a(f"ds_read_b128 {vr(S[0],4)}, v2")
    a(f"ds_read_b128 {vr(S[0]+4,4)}, v2 offset:1024")
    a("s_waitcnt lgkmcnt(2)")
    m1 = S[0] + 9
    a(f"v_max_f32 v{T0+1}, v{T0}, v{m1}")
    a(f"v_sub_f32 v{T0+2}, v{T0}, v{T0+1}")
    a(f"v_sub_f32 v{T0+3}, v{m1}, v{T0+1}")
    a(f"v_exp_f32 v{T0+2}, v{T0+2}")
    a(f"v_exp_f32 v{T0+3}, v{T0+3}")
    a("s_nop 0")
    a(f"v_mul_f32 v{O+8}, v{O+8}, v{T0+2}")
    a(f"v_fma_f32 v{O+8}, v{S[0]+8}, v{T0+3}, v{O+8}")
    a(f"v_rcp_f32 v{T0+4}, v{O+8}")
    a("s_nop 0")
    a(f"v_mul_f32 v{T0+2}, v{T0+2}, v{T0+4}")
    a(f"v_mul_f32 v{T0+3}, v{T0+3}, v{T0+4}")
    for r in range(8): a(f"v_mul_f32 v{O+r}, v{O+r}, v{T0+2}")
    a("s_waitcnt lgkmcnt(0)")
    for r in range(8):
        a(f"v_fma_f32 v{O+r}, v{S[0]+r}, v{T0+3}, v{O+r}")
    for j in range(4): a(f"v_cvt_pk_bf16_f32 v{P[0]+j}, v{O+2*j}, v{O+2*j+1}")
    a(f"buffer_store_dwordx4 {vr(P[0],4)}, v4, s[12:15], s38 offen" + STF)
    a("s_cmp_eq_u32 s33, 2")
    a("s_cbranch_scc1 L_attn_fin")
    a("s_mov_b32 s33, 2")
    a("s_mov_b64 exec, -1")
    a("s_barrier")
    a("s_branch L_attn_comb")
    a.label("L_attn_fin")
    tk.tick()
    a("s_waitcnt vmcnt(0)")
    tk.tick()
    tk.dump(20)
    a.label(f"L_{name}_end")
    a("s_endpgm")
    return name, kernel_wrap(name, a.text(), 128, 100 if TICK else 64), SCR + 8*2560
```

```python
import os
from dsl import *

def gemm96(mode):
    qkv = mode == "qkv"
    name = "k1_qkv_kernel" if qkv else "k4_ffn1_kernel"
    NW = 1536 if qkv else 1376
    pitchW = NW * 2
    a = Asm()
    tk = Ticks(a, 0 if qkv else 3)
    SL = 28672; NS = 4; WOFF = 16384; NCH = 8; LOOK = 3
    a("s_cmp_ge_u32 s2, 256")
    a(f"s_cbranch_scc1 L_{name}_end")
    a("s_load_dwordx2 s[30:31], s[0:1], %d" % (KA['x'] if qkv else KA['ws']))
    a("s_load_dwordx2 s[32:33], s[0:1], %d" % (KA['wqkv'] if qkv else KA['w1']))
    a("s_load_dwordx2 s[34:35], s[0:1], %d" % KA['ws'])
    if not qkv: a("s_load_dwordx2 s[36:37], s[0:1], %d" % KA['b1'])
    a("s_and_b32 s3, s2, 7")
    a("s_lshr_b32 s38, s2, 3")
    a("s_lshr_b32 s23, s3, 1")
    a("s_lshl_b32 s23, s23, 2")
    a("s_and_b32 s39, s38, 3")
    a("s_add_u32 s23, s23, s39")
    a("s_and_b32 s24, s3, 1")
    a("s_lshl_b32 s24, s24, 3")
    a("s_lshr_b32 s39, s38, 2")
    a("s_add_u32 s24, s24, s39")
    if not qkv:
        a("s_cmp_ge_u32 s24, 15")
        a(f"s_cbranch_scc1 L_{name}_end")
    tk.tick()
    a("v_and_b32 v1, 63, v0")
    a("v_lshrrev_b32 v2, 6, v0")
    a("v_lshlrev_b32 v4, 4, v1")
    a("v_readfirstlane_b32 s20, v2")
    a("v_and_b32 v2, 31, v1")
    a("v_lshrrev_b32 v3, 5, v1")
    a("s_and_b32 s21, s20, 3")
    a("s_lshr_b32 s22, s20, 2")
    a("v_mul_u32_u24 v5, 43691, v1")
    a("v_lshrrev_b32 v5, 19, v5")
    a("v_mul_u32_u24 v6, 12, v5")
    a("v_sub_u32 v6, v1, v6")
    a("v_lshlrev_b32 v6, 4, v6")
    a("s_mul_i32 s39, s24, 192")
    a("v_add_u32 v6, s39, v6")
    if not qkv:
        a(f"v_min_u32 v6, {pitchW-16}, v6")
    a("s_lshl_b32 s38, s20, 3")
    a("v_add_u32 v5, s38, v5")
    a(f"v_mul_u32_u24 v5, {pitchW}, v5")
    a("v_add_u32 v14, v5, v6")
    if qkv:
        a("s_lshl_b32 s38, s23, 7")
        a("s_lshl_b32 s39, s20, 4")
        a("s_add_u32 s38, s38, s39")
        a("v_lshrrev_b32 v5, 3, v1")
        a("v_add_u32 v5, s38, v5")
        a("v_lshlrev_b32 v5, 10, v5")
        a("v_lshrrev_b32 v6, 4, v1")
        a("v_and_b32 v7, 7, v1")
        a("v_xor_b32 v6, v6, v7")
        a("v_lshlrev_b32 v7, 4, v6")
        a("v_add_u32 v10, v5, v7")
        a("v_xor_b32 v6, 4, v6")
        a("v_lshlrev_b32 v7, 4, v6")
        a("v_add_u32 v11, v5, v7")
        a("v_add_u32 v11, 8192, v11")
    else:
        a("s_lshl_b32 s38, s23, 2")
        a("s_lshr_b32 s39, s20, 1")
        a("s_add_u32 s38, s38, s39")
        a("s_lshl_b32 s38, s38, 5")
        a("s_and_b32 s39, s20, 1")
        a("s_lshl_b32 s39, s39, 1")
        a("s_add_u32 s38, s38, s39")
        a("s_lshl_b32 s38, s38, 10")
        a("v_add_u32 v10, s38, v4")
    a("s_lshl_b32 s25, s20, 11")
    a("s_mul_i32 s26, s20, 1536")
    a(f"s_add_u32 s26, s26, {WOFF}")
    a("s_mov_b32 s46, -1")
    a("s_mov_b32 s47, 0xffff")
    a("s_waitcnt lgkmcnt(0)")
    if qkv:
        srd(a, 4, 30, 2048*1024)
        srd(a, 12, 34, 6*MB)
    else:
        srd(a, 4, 30, 2*MB, add=WS_HF)
        srd(a, 12, 34, 64*AF_KS*1024, add=WS_AF)
        srd(a, 16, 36, 1376*2)
    srd(a, 8, 32, 512*pitchW)
    issued = []
    def piece(c, p):
        slot = (c % NS) * SL
        if p < 2:
            i = p
            if qkv:
                a(f"s_add_u32 m0, s25, {slot + i*1024}")
                a(f"s_movk_i32 s38, {c*128}")
                a(f"buffer_load_dwordx4 v{10+i}, s[4:7], s38 offen lds")
            else:
                a(f"s_add_u32 m0, s25, {slot}")
                a(f"s_movk_i32 s38, {c*4096}")
                a(f"buffer_load_dwordx4 v10, s[4:7], s38 offen offset:{i*1024} lds")
        else:
            i = p - 2
            a(f"s_add_u32 m0, s26, {slot + i*768}")
            a(f"s_mov_b32 s38, {(c*64 + 4*i)*pitchW}")
            a("s_mov_b64 exec, s[46:47]")
            a(f"buffer_load_dwordx4 v14, s[8:11], s38 offen lds")
            a("s_mov_b64 exec, -1")
        issued.append(c)
    def dma(c):
        for p in range(4): piece(c, p)
    def younger(c):
        last = max(i for i, x in enumerate(issued) if x == c)
        return len(issued) - 1 - last
    pend = []
    def slot_hook(n=1):
        for _ in range(n):
            if pend: piece(*pend.pop(0))
    dma(0)
    if not qkv:
        pass
    if int(os.environ.get("OB96", "0")): a("s_barrier")
    dma(1)
    tk.tick()
    for b in range(3):
        a(f"s_add_u32 s{27+b}, s21, {b}")
        a(f"s_cmp_ge_u32 s{27+b}, 3")
        a(f"s_cselect_b32 s38, 3, 0")
        a(f"s_sub_u32 s{27+b}, s{27+b}, s38")
    VA = 152
    if qkv:
        a("s_lshl_b32 s38, s21, 12")
        a("v_lshlrev_b32 v5, 7, v2")
        a("v_add_u32 v5, s38, v5")
        a("v_bfe_u32 v6, v2, 1, 3")
        a("v_xor_b32 v6, v6, v3")
        for s in range(4):
            a(f"v_xor_b32 v7, {2*s}, v6")
            a("v_lshlrev_b32 v7, 4, v7")
            a(f"v_add_u32 v{VA+s}, v5, v7")
            a(f"v_add_u32 v{VA+4+s}, {2*SL}, v{VA+s}")
    else:
        a("s_lshl_b32 s38, s21, 12")
        a(f"v_add_u32 v{VA}, s38, v4")
        a(f"v_add_u32 v{VA+1}, {2*SL}, v{VA}")
    a("v_and_b32 v5, 15, v1")
    a("v_lshrrev_b32 v6, 2, v5")
    a(f"v_lshlrev_b32 v7, {3 if qkv else 2}, v3")
    a("v_add_u32 v6, v6, v7")
    a("v_mul_u32_u24 v6, 192, v6")
    a("v_bfe_u32 v7, v1, 4, 1")
    a("v_lshlrev_b32 v8, 5, v7")
    a("v_add_u32 v6, v6, v8")
    a("v_and_b32 v8, 3, v5")
    a("v_lshlrev_b32 v8, 3, v8")
    a("v_add_u32 v6, v6, v8")
    for b in range(3):
        a(f"s_lshl_b32 s38, s{27+b}, 6")
        a(f"s_add_u32 s38, s38, {WOFF}")
        a(f"v_add_u32 v{20+b}, s38, v6")
        a(f"v_add_u32 v{23+b}, {2*SL}, v{20+b}")
    halfrow = 4 if qkv else 8
    SEL = 64; CSA = 68; TMP = 120
    S1 = 8; S2 = 12
    a("v_cmp_eq_u32 vcc, v5, v7")
    a("v_mov_b32 v9, 0x3f803f80")
    for r in range(4): a(f"v_cndmask_b32 v{SEL+r}, 0, v9, vcc")
    for r in (8, 9, 12, 13): a(f"v_mov_b32 v{r}, 0")
    for r in range(CSA, CSA+4): a(f"v_mov_b32 v{r}, 0")
    for r in range(72, 104): a(f"v_mov_b32 v{r}, 0")
    a("s_mov_b32 s45, 0xffff0000")
    AF = [40, 44]; ACC = 72
    WF = [128, 136]
    B1 = 104
    ST, CS = 0, 4096
    a("s_lshl_b32 s40, s23, 2")
    a("s_add_u32 s40, s40, s21")
    if not qkv:
        srd(a, 48, 34, 128*1024, add=WS_ST)
        a("s_lshl_b32 s38, s40, 11")
        a("v_lshlrev_b32 v5, 9, v3")
        a("v_lshlrev_b32 v6, 4, v2")
        a("v_add_u32 v5, v5, v6")
        for j in range(2):
            a(f"buffer_load_dwordx4 v[{120+4*j}:{123+4*j}], v5, s[48:51], s38 offen offset:{1024*j}")
            issued.append("st")
    a("s_cmp_eq_u32 s22, 1")
    a(f"s_cbranch_scc1 L_{name}_roleB")
    issued0 = list(issued)

    def prefetch(role):
        L = f"L_{name}_pf{role}"
        a("s_sub_u32 s38, s20, 2")
        a("s_cmp_lt_u32 s38, 4")
        a(f"s_cbranch_scc1 {L}w")
        a("s_and_b32 s39, s24, 7")
        a("s_lshr_b32 s38, s20, 2")
        a("s_lshl_b32 s38, s38, 2")
        a("s_xor_b32 s39, s39, s38")
        a("s_lshl_b32 s39, s39, 4")
        a("s_lshl_b32 s38, s23, 7")
        a("s_add_u32 s39, s39, s38")
        a("s_and_b32 s38, s20, 1")
        a("s_lshl_b32 s38, s38, 3")
        a("s_add_u32 s39, s39, s38")
        a("s_lshl_b32 s39, s39, 10")
        a("v_lshrrev_b32 v5, 3, v1")
        a("v_lshlrev_b32 v5, 10, v5")
        a("v_and_b32 v6, 7, v1")
        a("v_lshlrev_b32 v6, 7, v6")
        a("v_add_u32 v5, v5, v6")
        a("s_mov_b32 s42, 0xf8f8f8f8")
        a("s_mov_b32 s43, 0xf8f8f8f8")
        a("s_mov_b64 exec, s[42:43]")
        a("buffer_load_dword v127, v5, s[4:7], s39 offen")
        a(f"s_branch {L}d")
        a.label(f"{L}w")
        a("s_and_b32 s39, s23, 3")
        a("s_mul_i32 s39, s39, 80")
        a("s_mul_i32 s38, s38, 20")
        a("s_add_u32 s39, s39, s38")
        a("s_add_u32 s39, s39, 192")
        a(f"s_mul_i32 s39, s39, {pitchW}")
        a("s_mul_i32 s38, s24, 192")
        a("s_add_u32 s39, s39, s38")
        a("v_lshrrev_b32 v5, 1, v1")
        a(f"v_mul_u32_u24 v5, {pitchW}, v5")
        a("v_and_b32 v6, 1, v1")
        a("v_lshlrev_b32 v6, 7, v6")
        a("v_add_u32 v5, v5, v6")
        a("s_mov_b32 s42, -1")
        a("s_mov_b32 s43, 0xff")
        a("s_mov_b64 exec, s[42:43]")
        a("buffer_load_dword v127, v5, s[8:11], s39 offen")
        a.label(f"{L}d")
        a("s_mov_b64 exec, -1")
        issued.append("pf")
    PFX = int(os.environ.get("PFX", "1")) if qkv else 0
    def body(role):
        issued[:] = issued0
        del pend[:]
        blks = [0, 1] if role == 0 else [2]
        nb = len(blks); nrd = 1 + 2*nb
        if not qkv:
            a("s_mul_i32 s38, s24, 192")
            a("v_lshlrev_b32 v5, 3, v3")
            a("v_add_u32 v5, s38, v5")
            for k, b in enumerate(blks):
                a(f"s_lshl_b32 s38, s{27+b}, 6")
                for hq in range(4):
                    r = B1 + 8*k + 2*hq
                    a(f"buffer_load_dwordx2 v[{r}:{r+1}], v5, s[16:19], s38 offen offset:{16*hq}")
                    issued.append("b1")
        def reads(c, s, buf):
            slot = c % NS
            grp = slot // 2; off = (slot % 2) * SL
            if qkv:
                a(f"ds_read_b128 {vr(AF[buf],4)}, v{VA+4*grp+s} offset:{off}")
            else:
                a(f"ds_read_b128 {vr(AF[buf],4)}, v{VA+grp} offset:{off + s*1024}")
            for k, b in enumerate(blks):
                for hf in range(2):
                    a(f"ds_read_b64_tr_b16 {vr(WF[buf]+4*k+2*hf,2)}, v{20+3*grp+b} offset:{off + (16*s + halfrow*hf)*192}")
        def stats(reg, k):
            t = TMP + 2*(k & 1)
            a(f"v_lshlrev_b32 v{t}, 16, v{reg}")
            a(f"v_and_b32 v{t+1}, s45, v{reg}")
            a(f"v_add_f32 v{S1}, v{S1}, v{t}")
            a(f"v_fmac_f32 v{S2}, v{t}, v{t}")
            a(f"v_add_f32 v{S1+1}, v{S1+1}, v{t+1}")
            a(f"v_fmac_f32 v{S2+1}, v{t+1}, v{t+1}")
        SA = os.environ.get("SA", "02")
        first = [True]
        def compute(buf, ks):
            for k in range(nb):
                a(f"v_mfma_f32_32x32x16_bf16 {vr(ACC+16*k,16)}, {vr(WF[buf]+4*k,4)}, {vr(AF[buf],4)}, {vr(ACC+16*k,16)}")
                if k == 0:
                    slot_hook(2 if first[0] else 1); first[0] = False
            if role == 0:
                a(f"v_mfma_f32_16x16x32_bf16 {vr(CSA,4)}, {vr(WF[buf],4)}, {vr(SEL,4)}, {vr(CSA,4)}")
            if qkv and ((str(ks) in SA) == (role == 0)):
                for r in range(4): stats(AF[buf] + r, r)
        a(f"s_waitcnt vmcnt({younger(0)})")
        a("s_barrier")
        tk.tick()
        reads(0, 0, 0)
        if PFX == 1: prefetch(role)
        pend.extend((2, p) for p in range(4))
        for c in range(NCH):
            for s in range(4):
                buf = s & 1
                if s < 3:
                    reads(c, s+1, buf ^ 1)
                    a(f"s_waitcnt lgkmcnt({nrd})")
                elif c < NCH - 1:
                    a(f"s_waitcnt vmcnt({younger(c+1)})")
                    a("s_barrier")
                    if c in (1, 3, 5):
                        tk.tick()
                    assert not pend
                    if c + LOOK < NCH: pend.extend((c + LOOK, p) for p in range(4))
                    reads(c + 1, 0, buf ^ 1)
                    a(f"s_waitcnt lgkmcnt({nrd})")
                else:
                    a("s_waitcnt lgkmcnt(0)")
                compute(buf, s)
                if PFX == 2 and c == 0 and s == 2: prefetch(role)
        assert not pend
        tk.tick()
        if role == 0:
            a("v_and_b32 v10, 15, v1")
            a("v_lshlrev_b32 v10, 6, v10")
            a("v_lshrrev_b32 v11, 4, v1")
            a("v_lshlrev_b32 v11, 4, v11")
            a("v_add_u32 v10, v10, v11")
            a("s_lshl_b32 s39, s27, 7")
            a("v_add_u32 v10, s39, v10")
            a("s_mov_b32 s46, 0x00030003")
            a("s_mov_b32 s47, 0x00030003")
            a("s_nop 3")
            a("s_mov_b64 exec, s[46:47]")
            a(f"ds_write_b128 v10, {vr(CSA,4)} offset:{CS}")
            a("s_mov_b64 exec, -1")
        def statcalc():
            a("v_mul_f32 v22, 0x3b000000, v8")
            a("v_mul_f32 v23, 0x3b000000, v9")
            a("v_fma_f32 v23, -v22, v22, v23")
            a("v_max_f32 v23, 0, v23")
            a("v_add_f32 v23, 0x3727c5ac, v23")
            a("v_rsq_f32 v23, v23")
            a("s_nop 0")
            a("v_mul_f32 v22, v22, v23")
        def hcomb():
            a("v_mov_b32 v12, v8")
            a("v_mov_b32 v13, v9")
            a("s_nop 1")
            a("v_permlane32_swap_b32 v8, v12")
            a("v_permlane32_swap_b32 v9, v13")
            a("s_nop 1")
            a("v_add_f32 v8, v8, v12")
            a("v_add_f32 v9, v9, v13")
        a("s_lshl_b32 s38, s21, 8")
        a("v_lshlrev_b32 v7, 3, v2")
        a("v_add_u32 v7, s38, v7")
        if qkv:
            a("v_add_f32 v8, v8, v9")
            a("v_add_f32 v9, v12, v13")
            hcomb()
            a(f"ds_write_b64 v7, v[8:9] offset:{ST + role*1024}")
        else:
            a("v_add_f32 v8, v120, v122")
            a("v_add_f32 v9, v121, v123")
            a("v_add_f32 v12, v124, v126")
            a("v_add_f32 v13, v125, v127")
            a("v_add_f32 v8, v8, v12")
            a("v_add_f32 v9, v9, v13")
            hcomb()
            statcalc()
        a("v_lshlrev_b32 v10, 4, v3")
        a("v_lshlrev_b32 v15, 5, v2")
        a("v_add_u32 v15, v15, v10")
        for k, b in enumerate(blks):
            a(f"s_lshl_b32 s38, s{27+b}, 7")
            a(f"v_add_u32 v{16+k}, s38, v10")
        a("s_waitcnt lgkmcnt(0)")
        a("s_barrier")
        CSR = 144 if False else 160
        if qkv: a(f"ds_read_b64 v[12:13], v7 offset:{ST + (1-role)*1024}")
        for k, b in enumerate(blks):
            for hq in range(4):
                a(f"ds_read_b128 {vr(CSR+16*k+4*hq,4)}, v{16+k} offset:{CS + hq*32}")
        if qkv:
            a(f"s_waitcnt lgkmcnt({4*nb})")
            a("v_add_f32 v8, v8, v12")
            a("v_add_f32 v9, v9, v13")
            statcalc()
        tk.tick()
        PX = 40
        nst = 0
        for k, b in enumerate(blks):
            for hb in range(2):
                A0 = ACC + 16*k + 8*hb
                C0 = CSR + 16*k + 8*hb
                PK = PX + 4*(nst & 1); nst += 1
                a(f"s_waitcnt lgkmcnt({(nb - 1 - k)*4 + (1 - hb)*2})")
                a("s_mul_i32 s41, s24, 6")
                a(f"s_lshl_b32 s38, s{27+b}, 1")
                a(f"s_add_u32 s41, s41, s38")
                if hb: a("s_add_u32 s41, s41, 1")
                if qkv:
                    a("s_lshl_b32 s42, s41, 16")
                    a("s_lshl_b32 s43, s40, 10")
                    a("s_add_u32 s42, s42, s43")
                    a("s_cmp_lt_u32 s41, 32")
                    a("s_cselect_b32 s44, 0x3eb8aa3b, 1.0")
                    a("v_mul_f32 v11, s44, v23")
                    a("v_mul_f32 v12, s44, v22")
                    a("s_cmp_ge_u32 s41, 64")
                    a("s_cselect_b64 vcc, -1, 0")
                    a("v_cndmask_b32 v13, v4, v15, vcc")
                    for j in range(8):
                        a(f"v_mul_f32 v{C0+j}, v12, v{C0+j}")
                    for j in range(8):
                        a(f"v_fma_f32 v{A0+j}, v11, v{A0+j}, -v{C0+j}")
                    for j in range(4):
                        a(f"v_cvt_pk_bf16_f32 v{PK+j}, v{A0+2*j}, v{A0+2*j+1}")
                    a(f"buffer_store_dwordx4 {vr(PK,4)}, v13, s[12:15], s42 offen" + STF)
                else:
                    a(f"s_mul_i32 s42, s40, {AF_KS}")
                    a("s_add_u32 s42, s42, s41")
                    a("s_lshl_b32 s42, s42, 10")
                    T = 48
                    U = 56
                    for j in range(8):
                        bsrc = B1 + 8*k + 4*hb + (j >> 1)
                        if j & 1: a(f"v_and_b32 v{T+j}, s45, v{bsrc}")
                        else:     a(f"v_lshlrev_b32 v{T+j}, 16, v{bsrc}")
                    for j in range(8):
                        a(f"v_fma_f32 v{T+j}, -v22, v{C0+j}, v{T+j}")
                    for j in range(8):
                        a(f"v_fma_f32 v{A0+j}, v23, v{A0+j}, v{T+j}")
                    for j in range(8):
                        a(f"v_mul_f32 v{T+j}, 0x3fb8aa3b, v{A0+j}")
                    for j in range(8):
                        a(f"v_exp_f32 v{T+j}, v{T+j}")
                    for j in range(8):
                        a(f"v_add_f32 v{U+j}, 2.0, v{T+j}")
                    for j in range(8):
                        a(f"v_fma_f32 v{U+j}, v{T+j}, v{U+j}, 2.0")
                    for j in range(8):
                        a(f"v_rcp_f32 v{U+j}, v{U+j}")
                    for j in range(8):
                        a(f"v_mul_f32 v{U+j}, v{A0+j}, v{U+j}")
                    for j in range(8):
                        a(f"v_fma_f32 v{A0+j}, -2.0, v{U+j}, v{A0+j}")
                    for j in range(4):
                        a(f"v_cvt_pk_bf16_f32 v{PK+j}, v{A0+2*j}, v{A0+2*j+1}")
                    a(f"buffer_store_dwordx4 {vr(PK,4)}, v4, s[12:15], s42 offen" + STF)
        tk.tick()
    n0 = tk.n
    body(0)
    n1 = tk.n
    a(f"s_branch L_{name}_join")
    a.label(f"L_{name}_roleB")
    tk.n = n0
    body(1)
    tk.n = n1
    a.label(f"L_{name}_join")
    if TICK: a("s_waitcnt vmcnt(0)")
    tk.tick()
    tk.dump(20)
    a.label(f"L_{name}_end")
    a("s_endpgm")
    return name, kernel_wrap(name, a.text(), 200, 100 if TICK else 64), NS * SL
```

```python
import os
class Asm:
    def __init__(self):
        self.lines = []
        self.nlabel = 0
    def __call__(self, s):
        for l in s.strip("\n").split("\n"):
            self.lines.append("  " + l.strip())
    def label(self, name):
        self.lines.append(name + ":")
    def newlabel(self, base):
        self.nlabel += 1
        return f"{base}_{self.nlabel}"
    def comment(self, s):
        self.lines.append("  ; " + s)
    def text(self):
        return "\n".join(self.lines) + "\n"

def vr(a, n):
    return f"v[{a}:{a+n-1}]" if n > 1 else f"v{a}"
def sr(a, n):
    return f"s[{a}:{a+n-1}]" if n > 1 else f"s{a}"

def kernel_wrap(name, body, nvgpr, nsgpr=100):
    nv = (nvgpr + 7) // 8 * 8
    acc = (nvgpr + 3) // 4 * 4
    return f""".text
.globl {name}
.p2align 8
.type {name},@function
{name}:
{body}
.section .rodata,"a"
.p2align 6
.amdhsa_kernel {name}
  .amdhsa_next_free_vgpr {nvgpr}
  .amdhsa_next_free_sgpr {nsgpr}
  .amdhsa_accum_offset {acc}
  .amdhsa_group_segment_fixed_size 0
  .amdhsa_kernarg_size 80
  .amdhsa_user_sgpr_count 2
  .amdhsa_user_sgpr_kernarg_segment_ptr 1
  .amdhsa_system_sgpr_workgroup_id_x 1
.end_amdhsa_kernel
"""

KA = dict(x=0, wqkv=8, wo=16, bx=24, w1=32, b1=40, w2=48, out=56, dbg=64, ws=72)
MB = 1 << 20
WS_QF, WS_KF, WS_VV, WS_OF, WS_HF, WS_AF = 0, 2*MB, 4*MB, 6*MB, 8*MB, 10*MB
WS_ST = 16*MB
MERGE = int(os.environ.get('MERGE', '2'))
KS3 = int(os.environ.get('KS3', '1'))
AF_KS = 90

def srd(a, dst, ptr, nbytes, add=0):
    if add:
        a(f"s_add_u32 s{dst}, s{ptr}, {add}")
        a(f"s_addc_u32 s{dst+1}, s{ptr+1}, 0")
    else:
        a(f"s_mov_b32 s{dst}, s{ptr}")
        a(f"s_mov_b32 s{dst+1}, s{ptr+1}")
    a(f"s_mov_b32 s{dst+2}, {nbytes}")
    a(f"s_mov_b32 s{dst+3}, 0x00020000")

import os
TICK = int(os.environ.get("TICK", "0"))
class Ticks:
    def __init__(self, a, kid):
        self.a, self.kid, self.n, self.z = a, kid, 0, 2
    def tick(self):
        if not TICK: return
        i = self.n; self.n += 1
        assert i < 16
        self.a(f"s_memtime s[{64+2*i}:{65+2*i}]")
        if i == 0: self.a("s_memrealtime s[60:61]")
    def dump(self, wave_sgpr):
        if not TICK: return
        a = self.a
        a("s_memrealtime s[58:59]")
        a("s_load_dwordx2 s[96:97], s[0:1], %d" % KA['ws'])
        a("s_waitcnt lgkmcnt(0)")
        a(f"s_add_u32 s96, s96, {64*MB}")
        a("s_addc_u32 s97, s97, 0")
        a(f"s_mov_b32 s98, {16*MB}")
        a("s_mov_b32 s99, 0x00020000")
        a(f"s_add_u32 s62, s2, {self.kid*256}")
        a("s_lshl_b32 s62, s62, 4")
        a(f"s_add_u32 s62, s62, s{wave_sgpr}")
        a("s_lshl_b32 s62, s62, 7")
        z, d = self.z, self.z + 1
        a(f"v_mov_b32 v{z}, 0")
        a(f"v_mov_b32 v{d}, s60")
        a(f"buffer_store_dword v{d}, v{z}, s[96:99], s62 offen offset:120")
        a(f"v_mov_b32 v{d}, s58")
        a(f"buffer_store_dword v{d}, v{z}, s[96:99], s62 offen offset:124")
        for i in range(self.n):
            a(f"v_mov_b32 v{d}, s{64+2*i}")
            a(f"buffer_store_dword v{d}, v{z}, s[96:99], s62 offen offset:{4*i}")

STF = os.environ.get("STF", " sc1")

SLP = int(os.environ.get('SLP', '0'))
WS_CNT = 17*MB
def cnt_srd(a, wsptr):
    srd(a, 52, wsptr, 8192, add=WS_CNT)
def sig(a, tag, idx_sgpr, base):
    a("s_waitcnt vmcnt(0)")
    a("s_barrier")
    a("s_cmp_eq_u32 s20, 0")
    a(f"s_cbranch_scc0 L_sig_{tag}")
    a(f"s_lshl_b32 s56, s{idx_sgpr}, 7")
    a(f"s_add_u32 s56, s56, {base}")
    a("v_mov_b32 v5, 0")
    a("v_mov_b32 v6, 1")
    a("s_mov_b64 exec, 1")
    a("buffer_atomic_add v6, v5, s[52:55], s56 offen sc1")
    a("s_mov_b64 exec, -1")
    a.label(f"L_sig_{tag}")
def waitcnt(a, tag, idx_sgpr, base, target):
    a("s_cmp_eq_u32 s20, 0")
    a(f"s_cbranch_scc0 L_wt_{tag}")
    a(f"s_lshl_b32 s56, s{idx_sgpr}, 7")
    a(f"s_add_u32 s56, s56, {base}")
    a("v_mov_b32 v5, 0")
    a("s_mov_b32 s57, 0")
    a.label(f"L_spin_{tag}")
    if SLP: a(f"s_sleep {SLP}")
    a("buffer_load_dword v6, v5, s[52:55], s56 offen sc1")
    a("s_add_u32 s57, s57, 1")
    a("s_waitcnt vmcnt(0)")
    a("v_readfirstlane_b32 s38, v6")
    a("s_cmp_ge_u32 s57, 40000")
    a(f"s_cbranch_scc1 L_wt_{tag}")
    a(f"s_cmp_lt_u32 s38, {target}")
    a(f"s_cbranch_scc1 L_spin_{tag}")
    a.label(f"L_wt_{tag}")
    a("s_barrier")
```

```python
import os
from dsl import *

def gemm64(mode, a=None):
    op = mode == "oproj"
    name = "k3_oproj_kernel" if op else "k5_ffn2_kernel"
    nks = 32 if op else 86
    nchunk = (nks + 7) // 8
    nslot = 4 if op else 5
    kspitch = 32 if op else AF_KS
    MG = a is not None
    if not MG: a = Asm()
    tk = Ticks(a, 2 if op else 4)
    if MG: tk.z = 198
    if not MG:
        a("s_cmp_ge_u32 s2, 256")
        a(f"s_cbranch_scc1 L_{name}_end")
    a("s_load_dwordx2 s[30:31], s[0:1], %d" % KA['ws'])
    a("s_load_dwordx2 s[32:33], s[0:1], %d" % (KA['wo'] if op else KA['w2']))
    a("s_load_dwordx2 s[34:35], s[0:1], %d" % (KA['x'] if op else KA['out']))
    a("s_and_b32 s3, s2, 7")
    a("s_lshr_b32 s38, s2, 3")
    a("s_lshl_b32 s23, s3, 2")
    a("s_and_b32 s39, s38, 3")
    a("s_add_u32 s23, s23, s39")
    a("s_lshr_b32 s24, s38, 2")
    tk.tick()
    a("v_and_b32 v1, 63, v0")
    a("v_lshrrev_b32 v2, 6, v0")
    a("s_nop 0")
    a("v_readfirstlane_b32 s20, v2")
    a("s_nop 3")
    a("s_and_b32 s21, s20, 1")
    a("s_lshr_b32 s22, s20, 2")
    a("s_lshr_b32 s25, s20, 1")
    a("s_and_b32 s25, s25, 1")
    a("v_and_b32 v2, 31, v1")
    a("v_lshrrev_b32 v3, 5, v1")
    a("s_lshl_b32 s38, s23, 1")
    a(f"s_mul_i32 s38, s38, {kspitch}")
    a("s_add_u32 s38, s38, s20")
    a("s_lshl_b32 s38, s38, 10")
    a("v_lshlrev_b32 v4, 4, v1")
    a("v_add_u32 v10, s38, v4")
    a(f"v_add_u32 v11, {kspitch*1024}, v10")
    a("v_lshrrev_b32 v5, 3, v1")
    a("s_lshl_b32 s38, s20, 4")
    a("v_add_u32 v5, s38, v5")
    a("v_lshlrev_b32 v5, 10, v5")
    a("v_lshrrev_b32 v6, 4, v1")
    a("v_and_b32 v6, 1, v6")
    a("v_lshlrev_b32 v6, 2, v6")
    a("v_and_b32 v7, 7, v1")
    a("v_xor_b32 v6, v6, v7")
    a("v_lshlrev_b32 v6, 4, v6")
    a("v_add_u32 v5, v5, v6")
    a("s_lshl_b32 s38, s24, 7")
    a("v_add_u32 v12, s38, v5")
    a("s_lshl_b32 s40, s23, 1")
    a("s_add_u32 s40, s40, s21")
    a("s_lshl_b32 s41, s24, 2")
    a("s_lshl_b32 s38, s25, 1")
    a("s_add_u32 s41, s41, s38")
    a("s_add_u32 s41, s41, s22")
    a("s_lshl_b32 s42, s40, 5")
    a("s_add_u32 s42, s42, s41")
    a("s_lshl_b32 s42, s42, 10")
    a("s_lshl_b32 s43, s40, 15")
    a("s_lshl_b32 s38, s41, 5")
    a("s_add_u32 s43, s43, s38")
    a("v_lshlrev_b32 v8, 10, v2")
    a("s_waitcnt lgkmcnt(0)")
    if op:
        srd(a, 4, 30, 2*MB, add=WS_OF)
        srd(a, 12, 30, 2*MB, add=WS_HF)
        srd(a, 16, 34, 2*MB)
    else:
        srd(a, 4, 30, 64*AF_KS*1024, add=WS_AF)
        srd(a, 12, 34, 2*MB)
        srd(a, 16, 30, 2*MB, add=WS_HF)
    srd(a, 8, 32, nks*16*1024)
    RES = 28
    if op:
        a("v_lshlrev_b32 v13, 4, v3")
        a("v_add_u32 v13, v13, v8")
    else:
        a(f"buffer_load_dwordx4 v[{RES}:{RES+3}], v4, s[16:19], s42 offen")
    a("s_lshl_b32 s26, s20, 11")
    issued = []
    def piece(c, p):
        slot = c % nslot
        i = p & 1
        if p < 2:
            a(f"s_add_u32 m0, s26, {slot*32768 + i*1024}")
            a(f"s_movk_i32 s38, {c*8192}" if c*8192 < 32768 else f"s_mov_b32 s38, {c*8192}")
            a(f"buffer_load_dwordx4 v{10+i}, s[4:7], s38 offen lds")
        else:
            a(f"s_add_u32 m0, s26, {slot*32768 + 16384 + i*1024}")
            a(f"s_mov_b32 s38, {c*131072 + i*8192}")
            a(f"buffer_load_dwordx4 v12, s[8:11], s38 offen lds")
        issued.append(c)
    def younger(c):
        last = max(i for i, x in enumerate(issued) if x == c)
        return len(issued) - 1 - last
    PRO = 4 if op else int(os.environ.get("PRO64", "3"))
    if MG: cnt_srd(a, 30)
    if MG and not op:
        for c in range(PRO):
            for p in (2, 3): piece(c, p)
        a("s_lshr_b32 s39, s23, 1")
        waitcnt(a, "c4", 39, 2048, 15)
        for c in range(PRO):
            for p in (0, 1): piece(c, p)
    else:
        for c in range(PRO):
            for p in range(4): piece(c, p)
    nextc = [PRO]
    tk.tick()
    a("s_lshl_b32 s38, s22, 13")
    a("s_lshl_b32 s39, s21, 10")
    a("s_add_u32 s38, s38, s39")
    a("v_add_u32 v17, s38, v4")
    a("v_and_b32 v5, 15, v1")
    a("v_lshrrev_b32 v6, 2, v5")
    a(f"v_lshlrev_b32 v7, {3 if op else 2}, v3")
    a("v_add_u32 v6, v6, v7")
    a("s_lshl_b32 s38, s22, 6")
    a("v_add_u32 v6, s38, v6")
    a("v_lshlrev_b32 v6, 7, v6")
    a("v_lshrrev_b32 v7, 4, v1")
    a("v_and_b32 v7, 1, v7")
    a("v_xor_b32 v7, s22, v7")
    a("v_lshlrev_b32 v7, 1, v7")
    a("v_bfe_u32 v9, v5, 1, 1")
    a("v_add_u32 v7, v7, v9")
    a("s_lshl_b32 s38, s25, 2")
    a("v_add_u32 v7, s38, v7")
    a("v_lshrrev_b32 v9, 3, v5")
    a("v_lshlrev_b32 v9, 2, v9")
    a("v_xor_b32 v7, v7, v9")
    a("v_lshlrev_b32 v7, 4, v7")
    a("v_add_u32 v6, v6, v7")
    a("v_and_b32 v7, 1, v5")
    a("v_lshlrev_b32 v7, 3, v7")
    a("v_add_u32 v6, v6, v7")
    a("v_add_u32 v21, 16384, v6")
    a("v_add_u32 v18, 0x10000, v17")
    a("v_add_u32 v22, 0x10000, v21")
    a("v_add_u32 v19, 0x20000, v17")
    a("v_add_u32 v23, 0x20000, v21")
    halfrow = 4 if op else 8
    ACC = 48
    for r in range(ACC, ACC+16): a(f"v_mov_b32 v{r}, 0")
    AF = [32, 36]; WF = [40, 44]
    def reads(c, s, buf):
        slot = c % nslot
        hi = slot // 2; off = (slot % 2) * 32768
        a(f"ds_read_b128 {vr(AF[buf],4)}, v{17+hi} offset:{off + s*2048}")
        for hf in range(2):
            a(f"ds_read_b64_tr_b16 {vr(WF[buf]+2*hf,2)}, v{21+hi} offset:{off + (16*s + halfrow*hf)*128}")
    def compute(buf):
        a(f"v_mfma_f32_32x32x16_bf16 {vr(ACC,16)}, {vr(WF[buf],4)}, {vr(AF[buf],4)}, {vr(ACC,16)}")
    for c in range(nchunk):
        a(f"s_waitcnt vmcnt({younger(c)})")
        a("s_barrier")
        tk.tick()
        pend = []
        while nextc[0] < nchunk and nextc[0] <= c + nslot - 1:
            pend += [(nextc[0], p) for p in range(4)]
            nextc[0] += 1
        per = (len(pend) + 3) // 4
        last = (c == nchunk - 1) and (nks % 8 != 0)
        reads(c, 0, 0)
        for s in range(4):
            if last and s == 2:
                a("s_waitcnt lgkmcnt(0)")
                a("s_cmp_eq_u32 s22, 1")
                a(f"s_cbranch_scc1 L_{name}_kdone")
            if s < 3:
                reads(c, s+1, (s+1) & 1)
                a("s_waitcnt lgkmcnt(3)")
            else:
                a("s_waitcnt lgkmcnt(0)")
            compute(s & 1)
            for _ in range(per):
                if pend: piece(*pend.pop(0))
        assert not pend
        if op and c == 0:
            a(f"buffer_load_dwordx4 v[{RES}:{RES+3}], v13, s[16:19], s43 offen")
            issued.append("res")
    a.label(f"L_{name}_kdone")
    tk.tick()
    a("s_barrier")
    a("s_lshl_b32 s38, s20, 11")
    a("v_add_u32 v5, s38, v4")
    a("s_nop 7")
    a("s_nop 3")
    for q in range(2):
        a(f"ds_write_b128 v5, {vr(ACC+8+4*q,4)} offset:{q*1024}")
    a("s_waitcnt lgkmcnt(0)")
    a("s_barrier")
    a("s_xor_b32 s39, s20, 4")
    a("s_lshl_b32 s38, s39, 11")
    a("v_add_u32 v5, s38, v4")
    for q in range(2):
        a(f"ds_read_b128 {vr(32+4*q,4)}, v5 offset:{q*1024}")
    a("s_waitcnt vmcnt(0) lgkmcnt(0)")
    if op:
        a(f"v_permlane32_swap_b32 v{RES}, v{RES+2}")
        a(f"v_permlane32_swap_b32 v{RES+1}, v{RES+3}")
    for j in range(8):
        src = RES + (j >> 1)
        if j & 1: a(f"v_and_b32 v{40+j}, 0xffff0000, v{src}")
        else:     a(f"v_lshlrev_b32 v{40+j}, 16, v{src}")
        a(f"v_add_f32 v{ACC+j}, v{ACC+j}, v{32+j}")
        a(f"v_add_f32 v{ACC+j}, v{ACC+j}, v{40+j}")
    for j in range(4):
        a(f"v_cvt_pk_bf16_f32 v{32+j}, v{ACC+2*j}, v{ACC+2*j+1}")
    if op:
        a(f"buffer_store_dwordx4 v[32:35], v4, s[12:15], s42 offen" + STF)
        if KS3:
            STX = 16384
            a(f"v_mul_f32 v25, v{ACC}, v{ACC}")
            a(f"v_add_f32 v24, v{ACC}, v{ACC+1}")
            a(f"v_fmac_f32 v25, v{ACC+1}, v{ACC+1}")
            for j in range(2, 8):
                a(f"v_add_f32 v24, v24, v{ACC+j}")
                a(f"v_fmac_f32 v25, v{ACC+j}, v{ACC+j}")
            a("s_lshl_b32 s38, s20, 9")
            a("v_lshlrev_b32 v6, 3, v1")
            a("v_add_u32 v6, s38, v6")
            a(f"ds_write_b64 v6, v[24:25] offset:{STX}")
            srd(a, 4, 30, 128*1024, add=WS_ST)
            a("s_lshl_b32 s44, s40, 11")
            a("s_lshr_b32 s38, s24, 1")
            a("s_lshl_b32 s38, s38, 9")
            a("s_add_u32 s44, s44, s38")
            a("s_and_b32 s38, s24, 1")
            a("s_lshl_b32 s38, s38, 3")
            a("s_add_u32 s44, s44, s38")
            a("v_lshlrev_b32 v7, 4, v2")
            a("v_lshlrev_b32 v9, 2, v3")
            a("v_add_u32 v7, v7, v9")
            a("s_waitcnt lgkmcnt(0)")
            a("s_barrier")
            a("s_cmp_ge_u32 s20, 2")
            a(f"s_cbranch_scc1 L_{name}_nost")
            for q in range(4):
                a(f"ds_read_b64 v[{40+2*q}:{41+2*q}], v6 offset:{STX + q*1024}")
            a("v_cmp_eq_u32 vcc, 0, v3")
            a("s_waitcnt lgkmcnt(0)")
            a("v_add_f32 v40, v40, v42")
            a("v_add_f32 v41, v41, v43")
            a("v_add_f32 v44, v44, v46")
            a("v_add_f32 v45, v45, v47")
            a("v_add_f32 v40, v40, v44")
            a("v_add_f32 v41, v41, v45")
            a("v_mov_b32 v42, v40")
            a("v_mov_b32 v43, v41")
            a("s_nop 1")
            a("v_permlane32_swap_b32 v40, v42")
            a("v_permlane32_swap_b32 v41, v43")
            a("s_nop 1")
            a("v_add_f32 v40, v40, v42")
            a("v_add_f32 v41, v41, v43")
            a("v_cndmask_b32 v40, v41, v40, vcc")
            a("buffer_store_dword v40, v7, s[4:7], s44 offen" + STF)
            a.label(f"L_{name}_nost")
    else:
        a("v_lshlrev_b32 v9, 4, v3")
        a("v_add_u32 v9, v9, v8")
        a("v_permlane32_swap_b32 v32, v34")
        a("v_permlane32_swap_b32 v33, v35")
        a("s_nop 1")
        a(f"buffer_store_dwordx4 v[32:35], v9, s[12:15], s43 offen" + STF)
    tk.tick()
    if MG and op:
        a("s_lshr_b32 s39, s23, 1")
        sig(a, "c3", 39, 0)
    else:
        a("s_waitcnt vmcnt(0)")
    tk.tick()
    tk.dump(20)
    a.label(f"L_{name}_end")
    if MG: return
    a("s_endpgm")
    return name, kernel_wrap(name, a.text(), 64, 100 if TICK else 64), nslot * 32768
```

```python
import os
from dsl import *

def gemm96(mode, a=None):
    qkv = mode == "qkv"
    name = "k1_qkv_kernel" if qkv else "k4_ffn1_kernel"
    NW = 1536 if qkv else 1376
    pitchW = NW * 2
    MG = a is not None
    if not MG: a = Asm()
    tk = Ticks(a, 0 if qkv else 3)
    if MG: tk.z = 198
    SL = 28672; NS = 4; WOFF = 16384; NCH = 8; LOOK = 3
    if not MG:
        a("s_cmp_ge_u32 s2, 256")
        a(f"s_cbranch_scc1 L_{name}_end")
    a("s_load_dwordx2 s[30:31], s[0:1], %d" % (KA['x'] if qkv else KA['ws']))
    a("s_load_dwordx2 s[32:33], s[0:1], %d" % (KA['wqkv'] if qkv else KA['w1']))
    a("s_load_dwordx2 s[34:35], s[0:1], %d" % KA['ws'])
    if not qkv: a("s_load_dwordx2 s[36:37], s[0:1], %d" % KA['b1'])
    a("s_and_b32 s3, s2, 7")
    a("s_lshr_b32 s38, s2, 3")
    a("s_lshr_b32 s23, s3, 1")
    a("s_lshl_b32 s23, s23, 2")
    a("s_and_b32 s39, s38, 3")
    a("s_add_u32 s23, s23, s39")
    a("s_and_b32 s24, s3, 1")
    a("s_lshl_b32 s24, s24, 3")
    a("s_lshr_b32 s39, s38, 2")
    a("s_add_u32 s24, s24, s39")
    if not qkv:
        a("s_cmp_ge_u32 s24, 15")
        a(f"s_cbranch_scc1 L_{name}_end")
    tk.tick()
    a("v_and_b32 v1, 63, v0")
    a("v_lshrrev_b32 v2, 6, v0")
    a("v_lshlrev_b32 v4, 4, v1")
    a("v_readfirstlane_b32 s20, v2")
    a("v_and_b32 v2, 31, v1")
    a("v_lshrrev_b32 v3, 5, v1")
    a("s_and_b32 s21, s20, 3")
    a("s_lshr_b32 s22, s20, 2")
    a("v_mul_u32_u24 v5, 43691, v1")
    a("v_lshrrev_b32 v5, 19, v5")
    a("v_mul_u32_u24 v6, 12, v5")
    a("v_sub_u32 v6, v1, v6")
    a("v_lshlrev_b32 v6, 4, v6")
    a("s_mul_i32 s39, s24, 192")
    a("v_add_u32 v6, s39, v6")
    if not qkv:
        a(f"v_min_u32 v6, {pitchW-16}, v6")
    a("s_lshl_b32 s38, s20, 3")
    a("v_add_u32 v5, s38, v5")
    a(f"v_mul_u32_u24 v5, {pitchW}, v5")
    a("v_add_u32 v14, v5, v6")
    if qkv:
        a("s_lshl_b32 s38, s23, 7")
        a("s_lshl_b32 s39, s20, 4")
        a("s_add_u32 s38, s38, s39")
        a("v_lshrrev_b32 v5, 3, v1")
        a("v_add_u32 v5, s38, v5")
        a("v_lshlrev_b32 v5, 10, v5")
        a("v_lshrrev_b32 v6, 4, v1")
        a("v_and_b32 v7, 7, v1")
        a("v_xor_b32 v6, v6, v7")
        a("v_lshlrev_b32 v7, 4, v6")
        a("v_add_u32 v10, v5, v7")
        a("v_xor_b32 v6, 4, v6")
        a("v_lshlrev_b32 v7, 4, v6")
        a("v_add_u32 v11, v5, v7")
        a("v_add_u32 v11, 8192, v11")
    else:
        a("s_lshl_b32 s38, s23, 2")
        a("s_lshr_b32 s39, s20, 1")
        a("s_add_u32 s38, s38, s39")
        a("s_lshl_b32 s38, s38, 5")
        a("s_and_b32 s39, s20, 1")
        a("s_lshl_b32 s39, s39, 1")
        a("s_add_u32 s38, s38, s39")
        a("s_lshl_b32 s38, s38, 10")
        a("v_add_u32 v10, s38, v4")
    a("s_lshl_b32 s25, s20, 11")
    a("s_mul_i32 s26, s20, 1536")
    a(f"s_add_u32 s26, s26, {WOFF}")
    a("s_mov_b32 s46, -1")
    a("s_mov_b32 s47, 0xffff")
    a("s_waitcnt lgkmcnt(0)")
    if qkv:
        srd(a, 4, 30, 2048*1024)
        srd(a, 12, 34, 6*MB)
    else:
        srd(a, 4, 30, 2*MB, add=WS_HF)
        srd(a, 12, 34, 64*AF_KS*1024, add=WS_AF)
        srd(a, 16, 36, 1376*2)
    srd(a, 8, 32, 512*pitchW)
    issued = []
    def piece(c, p):
        slot = (c % NS) * SL
        if p < 2:
            i = p
            if qkv:
                a(f"s_add_u32 m0, s25, {slot + i*1024}")
                a(f"s_movk_i32 s38, {c*128}")
                a(f"buffer_load_dwordx4 v{10+i}, s[4:7], s38 offen lds")
            else:
                a(f"s_add_u32 m0, s25, {slot}")
                a(f"s_movk_i32 s38, {c*4096}")
                a(f"buffer_load_dwordx4 v10, s[4:7], s38 offen offset:{i*1024} lds")
        else:
            i = p - 2
            a(f"s_add_u32 m0, s26, {slot + i*768}")
            a(f"s_mov_b32 s38, {(c*64 + 4*i)*pitchW}")
            a("s_mov_b64 exec, s[46:47]")
            a(f"buffer_load_dwordx4 v14, s[8:11], s38 offen lds")
            a("s_mov_b64 exec, -1")
        issued.append(c)
    def dma(c):
        for p in range(4): piece(c, p)
    def younger(c):
        last = max(i for i, x in enumerate(issued) if x == c)
        return len(issued) - 1 - last
    pend = []
    def slot_hook(n=1):
        for _ in range(n):
            if pend: piece(*pend.pop(0))
    REP = int(os.environ.get('REP', '0'))
    if REP:
        a('s_mov_b32 s55, 0')
        a.label(f'L_{name}_rep')
        a('s_mov_b32 s46, -1')
        a('s_mov_b32 s47, 0xffff')
    if MG:
        cnt_srd(a, 34)
        for c in range(2):
            for p in (2, 3): piece(c, p)
        waitcnt(a, "c3", 23, 0, 16)
        for c in range(2):
            for p in (0, 1): piece(c, p)
    else: dma(0)
    if not qkv:
        pass
    if int(os.environ.get("OB96", "0")): a("s_barrier")
    if not MG: dma(1)
    tk.tick()
    for b in range(3):
        a(f"s_add_u32 s{27+b}, s21, {b}")
        a(f"s_cmp_ge_u32 s{27+b}, 3")
        a(f"s_cselect_b32 s38, 3, 0")
        a(f"s_sub_u32 s{27+b}, s{27+b}, s38")
    VA = 152
    if qkv:
        a("s_lshl_b32 s38, s21, 12")
        a("v_lshlrev_b32 v5, 7, v2")
        a("v_add_u32 v5, s38, v5")
        a("v_bfe_u32 v6, v2, 1, 3")
        a("v_xor_b32 v6, v6, v3")
        for s in range(4):
            a(f"v_xor_b32 v7, {2*s}, v6")
            a("v_lshlrev_b32 v7, 4, v7")
            a(f"v_add_u32 v{VA+s}, v5, v7")
            a(f"v_add_u32 v{VA+4+s}, {2*SL}, v{VA+s}")
    else:
        a("s_lshl_b32 s38, s21, 12")
        a(f"v_add_u32 v{VA}, s38, v4")
        a(f"v_add_u32 v{VA+1}, {2*SL}, v{VA}")
    a("v_and_b32 v5, 15, v1")
    a("v_lshrrev_b32 v6, 2, v5")
    a(f"v_lshlrev_b32 v7, {3 if qkv else 2}, v3")
    a("v_add_u32 v6, v6, v7")
    a("v_mul_u32_u24 v6, 192, v6")
    a("v_bfe_u32 v7, v1, 4, 1")
    a("v_lshlrev_b32 v8, 5, v7")
    a("v_add_u32 v6, v6, v8")
    a("v_and_b32 v8, 3, v5")
    a("v_lshlrev_b32 v8, 3, v8")
    a("v_add_u32 v6, v6, v8")
    for b in range(3):
        a(f"s_lshl_b32 s38, s{27+b}, 6")
        a(f"s_add_u32 s38, s38, {WOFF}")
        a(f"v_add_u32 v{20+b}, s38, v6")
        a(f"v_add_u32 v{23+b}, {2*SL}, v{20+b}")
    halfrow = 4 if qkv else 8
    SEL = 64; CSA = 68; TMP = 120
    S1 = 8; S2 = 12
    a("v_cmp_eq_u32 vcc, v5, v7")
    a("v_mov_b32 v9, 0x3f803f80")
    for r in range(4): a(f"v_cndmask_b32 v{SEL+r}, 0, v9, vcc")
    for r in (8, 9, 12, 13): a(f"v_mov_b32 v{r}, 0")
    for r in range(CSA, CSA+4): a(f"v_mov_b32 v{r}, 0")
    for r in range(72, 104): a(f"v_mov_b32 v{r}, 0")
    a("s_mov_b32 s45, 0xffff0000")
    AF = [40, 44]; ACC = 72
    WF = [128, 136]
    B1 = 104
    ST, CS = 0, 4096
    a("s_lshl_b32 s40, s23, 2")
    a("s_add_u32 s40, s40, s21")
    if not qkv:
        srd(a, 48, 34, 128*1024, add=WS_ST)
        a("s_lshl_b32 s38, s40, 11")
        a("v_lshlrev_b32 v5, 9, v3")
        a("v_lshlrev_b32 v6, 4, v2")
        a("v_add_u32 v5, v5, v6")
        for j in range(2):
            a(f"buffer_load_dwordx4 v[{120+4*j}:{123+4*j}], v5, s[48:51], s38 offen offset:{1024*j}")
            issued.append("st")
    a("s_cmp_eq_u32 s22, 1")
    a(f"s_cbranch_scc1 L_{name}_roleB")
    issued0 = list(issued)

    def prefetch(role):
        L = f"L_{name}_pf{role}"
        a("s_sub_u32 s38, s20, 2")
        a("s_cmp_lt_u32 s38, 4")
        a(f"s_cbranch_scc1 {L}w")
        a("s_and_b32 s39, s24, 7")
        a("s_lshr_b32 s38, s20, 2")
        a("s_lshl_b32 s38, s38, 2")
        a("s_xor_b32 s39, s39, s38")
        a("s_lshl_b32 s39, s39, 4")
        a("s_lshl_b32 s38, s23, 7")
        a("s_add_u32 s39, s39, s38")
        a("s_and_b32 s38, s20, 1")
        a("s_lshl_b32 s38, s38, 3")
        a("s_add_u32 s39, s39, s38")
        a("s_lshl_b32 s39, s39, 10")
        a("v_lshrrev_b32 v5, 3, v1")
        a("v_lshlrev_b32 v5, 10, v5")
        a("v_and_b32 v6, 7, v1")
        a("v_lshlrev_b32 v6, 7, v6")
        a("v_add_u32 v5, v5, v6")
        a("s_mov_b32 s42, 0xf8f8f8f8")
        a("s_mov_b32 s43, 0xf8f8f8f8")
        a("s_mov_b64 exec, s[42:43]")
        a("buffer_load_dword v127, v5, s[4:7], s39 offen")
        a(f"s_branch {L}d")
        a.label(f"{L}w")
        a("s_and_b32 s39, s23, 3")
        a("s_mul_i32 s39, s39, 80")
        a("s_mul_i32 s38, s38, 20")
        a("s_add_u32 s39, s39, s38")
        a("s_add_u32 s39, s39, 192")
        a(f"s_mul_i32 s39, s39, {pitchW}")
        a("s_mul_i32 s38, s24, 192")
        a("s_add_u32 s39, s39, s38")
        a("v_lshrrev_b32 v5, 1, v1")
        a(f"v_mul_u32_u24 v5, {pitchW}, v5")
        a("v_and_b32 v6, 1, v1")
        a("v_lshlrev_b32 v6, 7, v6")
        a("v_add_u32 v5, v5, v6")
        a("s_mov_b32 s42, -1")
        a("s_mov_b32 s43, 0xff")
        a("s_mov_b64 exec, s[42:43]")
        a("buffer_load_dword v127, v5, s[8:11], s39 offen")
        a.label(f"{L}d")
        a("s_mov_b64 exec, -1")
        issued.append("pf")
    PFX = int(os.environ.get("PFX", "0")) if qkv else 0
    def body(role):
        issued[:] = issued0
        del pend[:]
        blks = [0, 1] if role == 0 else [2]
        nb = len(blks); nrd = 1 + 2*nb
        if not qkv:
            a("s_mul_i32 s38, s24, 192")
            a("v_lshlrev_b32 v5, 3, v3")
            a("v_add_u32 v5, s38, v5")
            for k, b in enumerate(blks):
                a(f"s_lshl_b32 s38, s{27+b}, 6")
                for hq in range(4):
                    r = B1 + 8*k + 2*hq
                    a(f"buffer_load_dwordx2 v[{r}:{r+1}], v5, s[16:19], s38 offen offset:{16*hq}")
                    issued.append("b1")
        def reads(c, s, buf):
            slot = c % NS
            grp = slot // 2; off = (slot % 2) * SL
            if qkv:
                a(f"ds_read_b128 {vr(AF[buf],4)}, v{VA+4*grp+s} offset:{off}")
            else:
                a(f"ds_read_b128 {vr(AF[buf],4)}, v{VA+grp} offset:{off + s*1024}")
            for k, b in enumerate(blks):
                for hf in range(2):
                    a(f"ds_read_b64_tr_b16 {vr(WF[buf]+4*k+2*hf,2)}, v{20+3*grp+b} offset:{off + (16*s + halfrow*hf)*192}")
        def stats(reg, k):
            t = TMP + 2*(k & 1)
            a(f"v_lshlrev_b32 v{t}, 16, v{reg}")
            a(f"v_and_b32 v{t+1}, s45, v{reg}")
            a(f"v_add_f32 v{S1}, v{S1}, v{t}")
            a(f"v_fmac_f32 v{S2}, v{t}, v{t}")
            a(f"v_add_f32 v{S1+1}, v{S1+1}, v{t+1}")
            a(f"v_fmac_f32 v{S2+1}, v{t+1}, v{t+1}")
        SA = os.environ.get("SA", "02")
        first = [True]
        def compute(buf, ks):
            for k in range(nb):
                a(f"v_mfma_f32_32x32x16_bf16 {vr(ACC+16*k,16)}, {vr(WF[buf]+4*k,4)}, {vr(AF[buf],4)}, {vr(ACC+16*k,16)}")
                if k == 0:
                    slot_hook(2 if first[0] else 1); first[0] = False
            if role == 0:
                a(f"v_mfma_f32_16x16x32_bf16 {vr(CSA,4)}, {vr(WF[buf],4)}, {vr(SEL,4)}, {vr(CSA,4)}")
            if qkv and ((str(ks) in SA) == (role == 0)):
                for r in range(4): stats(AF[buf] + r, r)
        a(f"s_waitcnt vmcnt({younger(0)})")
        a("s_barrier")
        tk.tick()
        reads(0, 0, 0)
        if PFX == 1: prefetch(role)
        pend.extend((2, p) for p in range(4))
        for c in range(NCH):
            for s in range(4):
                buf = s & 1
                if s < 3:
                    reads(c, s+1, buf ^ 1)
                    a(f"s_waitcnt lgkmcnt({nrd})")
                elif c < NCH - 1:
                    a(f"s_waitcnt vmcnt({younger(c+1)})")
                    a("s_barrier")
                    if c in (1, 3, 5):
                        tk.tick()
                    assert not pend
                    if c + LOOK < NCH: pend.extend((c + LOOK, p) for p in range(4))
                    reads(c + 1, 0, buf ^ 1)
                    a(f"s_waitcnt lgkmcnt({nrd})")
                else:
                    a("s_waitcnt lgkmcnt(0)")
                compute(buf, s)
                if PFX == 2 and c == 0 and s == 2: prefetch(role)
        assert not pend
        tk.tick()
        if REP:
            a("s_cmp_eq_u32 s55, 0")
            a("s_mov_b32 s55, 1")
            a("s_barrier")
            a(f"s_cbranch_scc1 L_{name}_rep")
        if role == 0:
            a("v_and_b32 v10, 15, v1")
            a("v_lshlrev_b32 v10, 6, v10")
            a("v_lshrrev_b32 v11, 4, v1")
            a("v_lshlrev_b32 v11, 4, v11")
            a("v_add_u32 v10, v10, v11")
            a("s_lshl_b32 s39, s27, 7")
            a("v_add_u32 v10, s39, v10")
            a("s_mov_b32 s46, 0x00030003")
            a("s_mov_b32 s47, 0x00030003")
            a("s_nop 3")
            a("s_mov_b64 exec, s[46:47]")
            a(f"ds_write_b128 v10, {vr(CSA,4)} offset:{CS}")
            a("s_mov_b64 exec, -1")
        def statcalc():
            a("v_mul_f32 v22, 0x3b000000, v8")
            a("v_mul_f32 v23, 0x3b000000, v9")
            a("v_fma_f32 v23, -v22, v22, v23")
            a("v_max_f32 v23, 0, v23")
            a("v_add_f32 v23, 0x3727c5ac, v23")
            a("v_rsq_f32 v23, v23")
            a("s_nop 0")
            a("v_mul_f32 v22, v22, v23")
        def hcomb():
            a("v_mov_b32 v12, v8")
            a("v_mov_b32 v13, v9")
            a("s_nop 1")
            a("v_permlane32_swap_b32 v8, v12")
            a("v_permlane32_swap_b32 v9, v13")
            a("s_nop 1")
            a("v_add_f32 v8, v8, v12")
            a("v_add_f32 v9, v9, v13")
        a("s_lshl_b32 s38, s21, 8")
        a("v_lshlrev_b32 v7, 3, v2")
        a("v_add_u32 v7, s38, v7")
        if qkv:
            a("v_add_f32 v8, v8, v9")
            a("v_add_f32 v9, v12, v13")
            hcomb()
            a(f"ds_write_b64 v7, v[8:9] offset:{ST + role*1024}")
        else:
            a("v_add_f32 v8, v120, v122")
            a("v_add_f32 v9, v121, v123")
            a("v_add_f32 v12, v124, v126")
            a("v_add_f32 v13, v125, v127")
            a("v_add_f32 v8, v8, v12")
            a("v_add_f32 v9, v9, v13")
            hcomb()
            statcalc()
        a("v_lshlrev_b32 v10, 4, v3")
        a("v_lshlrev_b32 v15, 5, v2")
        a("v_add_u32 v15, v15, v10")
        for k, b in enumerate(blks):
            a(f"s_lshl_b32 s38, s{27+b}, 7")
            a(f"v_add_u32 v{16+k}, s38, v10")
        a("s_waitcnt lgkmcnt(0)")
        a("s_barrier")
        CSR = 144 if False else 160
        if qkv: a(f"ds_read_b64 v[12:13], v7 offset:{ST + (1-role)*1024}")
        for k, b in enumerate(blks):
            for hq in range(4):
                a(f"ds_read_b128 {vr(CSR+16*k+4*hq,4)}, v{16+k} offset:{CS + hq*32}")
        if qkv:
            a(f"s_waitcnt lgkmcnt({4*nb})")
            a("v_add_f32 v8, v8, v12")
            a("v_add_f32 v9, v9, v13")
            statcalc()
        tk.tick()
        PX = 40
        nst = 0
        for k, b in enumerate(blks):
            for hb in range(2):
                A0 = ACC + 16*k + 8*hb
                C0 = CSR + 16*k + 8*hb
                PK = PX + 4*(nst & 1); nst += 1
                a(f"s_waitcnt lgkmcnt({(nb - 1 - k)*4 + (1 - hb)*2})")
                a("s_mul_i32 s41, s24, 6")
                a(f"s_lshl_b32 s38, s{27+b}, 1")
                a(f"s_add_u32 s41, s41, s38")
                if hb: a("s_add_u32 s41, s41, 1")
                if qkv:
                    a("s_lshl_b32 s42, s41, 16")
                    a("s_lshl_b32 s43, s40, 10")
                    a("s_add_u32 s42, s42, s43")
                    a("s_cmp_lt_u32 s41, 32")
                    a("s_cselect_b32 s44, 0x3eb8aa3b, 1.0")
                    a("v_mul_f32 v11, s44, v23")
                    a("v_mul_f32 v12, s44, v22")
                    a("s_cmp_ge_u32 s41, 64")
                    a("s_cselect_b64 vcc, -1, 0")
                    a("v_cndmask_b32 v13, v4, v15, vcc")
                    for j in range(8):
                        a(f"v_mul_f32 v{C0+j}, v12, v{C0+j}")
                    for j in range(8):
                        a(f"v_fma_f32 v{A0+j}, v11, v{A0+j}, -v{C0+j}")
                    for j in range(4):
                        a(f"v_cvt_pk_bf16_f32 v{PK+j}, v{A0+2*j}, v{A0+2*j+1}")
                    a(f"buffer_store_dwordx4 {vr(PK,4)}, v13, s[12:15], s42 offen" + STF)
                else:
                    a(f"s_mul_i32 s42, s40, {AF_KS}")
                    a("s_add_u32 s42, s42, s41")
                    a("s_lshl_b32 s42, s42, 10")
                    T = 48
                    U = 56
                    for j in range(8):
                        bsrc = B1 + 8*k + 4*hb + (j >> 1)
                        if j & 1: a(f"v_and_b32 v{T+j}, s45, v{bsrc}")
                        else:     a(f"v_lshlrev_b32 v{T+j}, 16, v{bsrc}")
                    for j in range(8):
                        a(f"v_fma_f32 v{T+j}, -v22, v{C0+j}, v{T+j}")
                    for j in range(8):
                        a(f"v_fma_f32 v{A0+j}, v23, v{A0+j}, v{T+j}")
                    for j in range(8):
                        a(f"v_mul_f32 v{T+j}, 0x3fb8aa3b, v{A0+j}")
                    for j in range(8):
                        a(f"v_exp_f32 v{T+j}, v{T+j}")
                    for j in range(8):
                        a(f"v_add_f32 v{U+j}, 2.0, v{T+j}")
                    for j in range(8):
                        a(f"v_fma_f32 v{U+j}, v{T+j}, v{U+j}, 2.0")
                    for j in range(8):
                        a(f"v_rcp_f32 v{U+j}, v{U+j}")
                    for j in range(8):
                        a(f"v_mul_f32 v{U+j}, v{A0+j}, v{U+j}")
                    for j in range(8):
                        a(f"v_fma_f32 v{A0+j}, -2.0, v{U+j}, v{A0+j}")
                    for j in range(4):
                        a(f"v_cvt_pk_bf16_f32 v{PK+j}, v{A0+2*j}, v{A0+2*j+1}")
                    a(f"buffer_store_dwordx4 {vr(PK,4)}, v4, s[12:15], s42 offen" + STF)
        tk.tick()
    n0 = tk.n
    body(0)
    n1 = tk.n
    a(f"s_branch L_{name}_join")
    a.label(f"L_{name}_roleB")
    tk.n = n0
    body(1)
    tk.n = n1
    a.label(f"L_{name}_join")
    if MG: sig(a, "c4", 23, 2048)
    if qkv and MERGE:
        a("s_cmp_eq_u32 s2, 0")
        a(f"s_cbranch_scc0 L_{name}_nz")
        a("s_cmp_eq_u32 s20, 0")
        a(f"s_cbranch_scc0 L_{name}_nz")
        cnt_srd(a, 34)
        a("v_lshlrev_b32 v5, 7, v1")
        a("v_mov_b32 v6, 0")
        a("buffer_store_dword v6, v5, s[52:55], 0 offen" + STF)
        a.label(f"L_{name}_nz")
    if TICK: a("s_waitcnt vmcnt(0)")
    tk.tick()
    tk.dump(20)
    a.label(f"L_{name}_end")
    if MG: return
    a("s_endpgm")
    return name, kernel_wrap(name, a.text(), 200, 100 if TICK else 64), NS * SL
```

```python
import sys
from dsl import *
import k_gemm96, k_gemm64, k_attn, k_gemm96b
if int(os.environ.get('G96B', '1')): k_gemm96 = k_gemm96b
import importlib
hdr = open("sequential_preLN__mha_block__dense_activation_mish__prompt.s.ref").read().split("; Override launch")[0]
def merged():
    name = "k345_kernel"
    a = Asm()
    a("s_cmp_ge_u32 s2, 256")
    a(f"s_cbranch_scc1 L_{name}_end")
    k_gemm64.gemm64("oproj", a)
    k_gemm96.gemm96("ffn1", a)
    k_gemm64.gemm64("ffn2", a)
    a.label(f"L_{name}_end")
    a("s_endpgm")
    return name, kernel_wrap(name, a.text(), 200, 100 if TICK else 64), 163840
if MERGE:
    ks = [(k_gemm96.gemm96("qkv"), 512), (k_attn.attn(), 1024), (merged(), 512)]
else:
    ks = [(k_gemm96.gemm96("qkv"), 512), (k_attn.attn(), 1024), (k_gemm64.gemm64("oproj"), 512), (k_gemm96.gemm96("ffn1"), 512), (k_gemm64.gemm64("ffn2"), 512)]
out = hdr
for (name, text, lds), threads in ks:
    out += f"; @launch kernel={name} grid=(256,1,1) block=({threads},1,1) lds={lds}\n"
out += '.amdgcn_target "amdgcn-amd-amdhsa--gfx950"\n'
for (name, text, lds), threads in ks:
    out += text
dst = sys.argv[1] if len(sys.argv) > 1 else "sequential_preLN__mha_block__dense_activation_mish__prompt.s"
open(dst, "w").write(out)
print("wrote", dst, len(out))
```

```python
from dsl import *

PF = int(os.environ.get("PF", "1"))
AD = 0
PRIO = os.environ.get("PRIO", "33333333333333333333333322221110")
SWP = int(os.environ.get("SWP", "1"))
OZ = int(os.environ.get("OZ", "1"))
M0 = int(os.environ.get("M0", "1"))
FB = int(os.environ.get("FB", "0"))
def attn(a=None):
    name = "k2_attn_kernel"
    MG = a is not None
    if not MG: a = Asm()
    tk = Ticks(a, 1)
    ONES = 131072; SCR = ONES + 4608
    Q, KF, VF, P, S, O, NM = 8, [12, 16], [20, 28], [36, 44], [52, 68], 84, 100
    T0 = 116
    if not MG:
        a("s_cmp_ge_u32 s2, 256")
        a(f"s_cbranch_scc1 L_{name}_end")
    a("s_load_dwordx2 s[30:31], s[0:1], %d" % KA['ws'])
    a("s_load_dwordx2 s[44:45], s[0:1], %d" % KA['wo'])
    a("s_load_dwordx2 s[46:47], s[0:1], %d" % KA['w1'])
    a("s_load_dwordx2 s[48:49], s[0:1], %d" % KA['w2'])
    a("s_and_b32 s23, s2, 7")
    a("s_lshr_b32 s38, s2, 3")
    a("s_and_b32 s38, s38, 3")
    a("s_lshl_b32 s38, s38, 3")
    a("s_add_u32 s23, s23, s38")
    a("s_lshr_b32 s24, s2, 5")
    tk.tick()
    a("v_and_b32 v1, 63, v0")
    a("v_lshrrev_b32 v2, 6, v0")
    a("s_nop 0")
    a("v_readfirstlane_b32 s20, v2")
    a("s_nop 3")
    a("s_and_b32 s21, s20, 7")
    a("s_lshr_b32 s22, s20, 3")
    a("v_lshlrev_b32 v4, 4, v1")
    a("s_lshr_b32 s38, s20, 1")
    a("s_and_b32 s38, s38, 1")
    a("s_lshl_b32 s38, s38, 5")
    a("s_lshr_b32 s35, s20, 2")
    if AD:
        a("s_lshl_b32 s39, s35, 1")
        a("s_mul_i32 s52, s35, 4")
        a("s_add_u32 s52, s52, 8")
        a("s_lshl_b32 s52, s52, 10")
    else:
        a("s_lshl_b32 s39, s35, 3")
    a("s_add_u32 s38, s38, s39")
    a("s_lshl_b32 s38, s38, 10")
    a("s_and_b32 s39, s20, 1")
    a("s_lshl_b32 s25, s39, 16")
    a("s_add_u32 s25, s25, s38")
    a("s_lshl_b32 s26, s39, 21")
    a("s_add_u32 s26, s26, s38")
    a("s_lshl_b32 s39, s23, 16")
    a("s_add_u32 s26, s26, s39")
    a("s_lshl_b32 s27, s24, 3")
    a("s_add_u32 s27, s27, s21")
    a("s_lshl_b32 s28, s27, 10")
    a("s_add_u32 s28, s28, s39")
    a("s_waitcnt lgkmcnt(0)")
    srd(a, 4, 30, 4*MB, add=WS_KF)
    srd(a, 8, 30, 2*MB, add=WS_QF)
    srd(a, 12, 30, 2*MB, add=WS_OF)
    a(f"buffer_load_dwordx4 {vr(Q,4)}, v4, s[8:11], s28 offen")
    srd(a, 40, 44, 512*512*2)
    a("s_lshr_b32 s51, s2, 3")
    a("s_lshl_b32 s51, s51, 4")
    a("s_add_u32 s51, s51, s20")
    a("s_lshl_b32 s51, s51, 10")
    a("s_mov_b32 s50, s51")
    def kvdma():
        for r in range(8):
            a(f"s_add_u32 m0, s25, {(r&3)*1024 + (r>>2)*4096}")
            if (r & 3) == 0: a(f"s_add_u32 s38, s26, {(r>>2)*4096}")
            a(f"buffer_load_dwordx4 v4, s[4:7], s38 offen offset:{(r&3)*1024} lds" if False else f"buffer_load_dwordx4 v4, s[4:7], s38 offen lds")
            if (r & 3) != 3: a("s_add_u32 s38, s38, 1024")
    def kvdma2(n, ls, gs):
        for r in range(n):
            a(f"s_add_u32 m0, {ls}, {r*1024}")
            a(f"s_add_u32 s38, {gs}, {r*1024}")
            a(f"buffer_load_dwordx4 v4, s[4:7], s38 offen lds")
    if AD:
        kvdma2(2, "s25", "s26")
        a("s_barrier")
        a("s_add_u32 s25, s25, s52")
        a("s_add_u32 s26, s26, s52")
        kvdma2(6, "s25", "s26")
    else:
        a("s_cmp_eq_u32 s35, 0")
        a("s_cbranch_scc0 L_attn_nodma0")
        kvdma()
        a.label("L_attn_nodma0")
    if OZ:
        a("v_and_b32 v6, 5, v0")
        a("v_cmp_eq_u32 vcc, 0, v6")
        a("v_mov_b32 v5, 0x3f80")
        a("v_cndmask_b32 v5, 0, v5, vcc")
    else:
        a("v_mov_b32 v5, 0x3f803f80")
    a("v_lshlrev_b32 v6, 2, v0")
    a(f"v_add_u32 v6, {ONES}, v6")
    a("ds_write_b32 v6, v5")
    a("ds_write_b32 v6, v5 offset:512")
    a("s_lshl_b32 s29, s22, 15")
    a("v_add_u32 v2, s29, v4")
    a("v_lshrrev_b32 v5, 5, v1")
    a("v_and_b32 v6, 15, v1")
    a("v_lshlrev_b32 v6, 3, v6")
    a("v_lshlrev_b32 v3, 7, v5")
    a("v_add_u32 v3, v3, v6")
    a("v_xor_b32 v7, 128, v3")
    a(f"v_add_u32 v7, {ONES}, v7")
    a("s_add_u32 s38, s29, 65536")
    a("v_add_u32 v3, s38, v3")
    a("v_and_b32 v6, 16, v1")
    a("v_cmp_ne_u32 vcc, 0, v6")
    a("s_nop 1")
    a("v_cndmask_b32 v3, v3, v7, vcc")
    a("v_mov_b32 v6, 4096")
    a("v_cndmask_b32 v7, v6, 0, vcc")
    a("v_mov_b32 v5, v3")
    a("v_mov_b32 v6, v2")
    a("s_mov_b32 s33, 0")
    def maxtree(dst, src, init):
        if init:
            a(f"v_max3_f32 v{dst}, v{src}, v{src+1}, v{src+2}")
            rest = list(range(src+3, src+16))
        else:
            rest = list(range(src, src+16))
        while len(rest) >= 2:
            a(f"v_max3_f32 v{dst}, v{dst}, v{rest[0]}, v{rest[1]}"); rest = rest[2:]
        if rest: a(f"v_max_f32 v{dst}, v{dst}, v{rest[0]}")
    def zero_init():
        for r in range(16): a(f"v_mov_b32 v{O+r}, 0")
        for r in range(8):
            a(f"v_mov_b32 v{P[1]+r}, 0")
            a(f"v_mov_b32 v{VF[1]+r}, 0")
    def setmax():
        a(f"v_mov_b32 v{T0+1}, v{T0}")
        a("s_nop 1")
        a(f"v_permlane32_swap_b32 v{T0}, v{T0+1}")
        a("s_nop 1")
        a(f"v_max_f32 v{T0}, v{T0}, v{T0+1}")
        for r in range(16): a(f"v_sub_f32 v{NM+r}, 0, v{T0}")
    def mainloop(first, C, tag):
        a(f"ds_read_b128 {vr(KF[0],4)}, v2")
        a(f"ds_read_b128 {vr(KF[1],4)}, v2 offset:1024")
        a("s_waitcnt lgkmcnt(1)")
        a(f"v_mfma_f32_32x32x16_bf16 {vr(S[0],16)}, {vr(KF[0],4)}, {vr(Q,4)}, {C}")
        a("s_nop 7")
        a("s_mov_b32 s32, 0")
        if PRIO: a(f"s_setprio {PRIO[0]}")
        if first: tk.tick()
        a.label(f"L_attn_loop{tag}")
        if first:
            a("s_cmp_eq_u32 s32, 1")
            a("s_cbranch_scc0 L_attn_nosync")
            tk.tick()
            a("s_waitcnt vmcnt(0)")
            a("s_barrier")
            tk.tick()
            a.label("L_attn_nosync")
            if PF:
                a("s_cmp_eq_u32 s32, 0")
                a("s_cbranch_scc1 L_attn_nopf")
                a("s_cmp_eq_u32 s32, 2")
                a("s_cselect_b32 s40, s46, s40")
                a("s_cselect_b32 s41, s47, s41")
                a(f"s_cselect_b32 s42, {512*1376*2}, s42")
                a("s_cselect_b32 s50, s51, s50")
                a("s_cmp_eq_u32 s32, 5")
                a("s_cselect_b32 s40, s48, s40")
                a("s_cselect_b32 s41, s49, s41")
                a("s_cselect_b32 s50, s51, s50")
                a("buffer_load_dwordx4 v[124:127], v4, s[40:43], s50 offen")
                a("s_add_u32 s50, s50, 0x80000")
                a.label("L_attn_nopf")
        def setprio(half):
            if not PRIO: return
            for it in range(8):
                k = 4*it + half
                if k == 0 or PRIO[k] == PRIO[k-1]: continue
                a(f"s_cmp_eq_u32 s32, {it}")
                a(f"s_cbranch_scc0 L_attn_p{tag}_{k}")
                a(f"s_setprio {PRIO[k]}")
                a.label(f"L_attn_p{tag}_{k}")
        if PRIO: a(f"s_setprio {PRIO[0]}")  if False else None
        for u in range(4):
            p = u & 1
            setprio(u)
            a("s_waitcnt lgkmcnt(0)")
            a(f"v_mfma_f32_32x32x16_bf16 {vr(S[p^1],16)}, {vr(KF[p^1],4)}, {vr(Q,4)}, {C}")
            a(f"ds_read_b128 {vr(KF[p],4)}, v2 offset:{(u+2)*1024}")
            for r in range(4):
                a(f"ds_read_b64_tr_b16 {vr(VF[p]+2*r,2)}, v3 offset:{u*1024 + r*256}")
            s = S[p]
            for i in range(8):
                a(f"v_exp_f32 v{s+2*i}, v{s+2*i}")
                a(f"v_exp_f32 v{s+2*i+1}, v{s+2*i+1}")
                if i > 0: a(f"v_cvt_pk_bf16_f32 v{P[p]+i-1}, v{s+2*i-2}, v{s+2*i-1}")
                if i == 2: a(f"v_mfma_f32_32x32x16_bf16 {vr(O,16)}, {vr(VF[p^1],4)}, {vr(P[p^1],4)}, {vr(O,16)}")
                if i == 5: a(f"v_mfma_f32_32x32x16_bf16 {vr(O,16)}, {vr(VF[p^1]+4,4)}, {vr(P[p^1]+4,4)}, {vr(O,16)}")
            a("s_nop 0")
            a(f"v_cvt_pk_bf16_f32 v{P[p]+7}, v{s+14}, v{s+15}")
        a("v_add_u32 v2, 4096, v2")
        a("v_add_u32 v3, v3, v7")
        a("s_add_u32 s32, s32, 1")
        a("s_cmp_lt_u32 s32, 8")
        a(f"s_cbranch_scc1 L_attn_loop{tag}")
        a("s_waitcnt lgkmcnt(0)")
        a(f"v_mfma_f32_32x32x16_bf16 {vr(O,16)}, {vr(VF[1],4)}, {vr(P[1],4)}, {vr(O,16)}")
        a(f"v_mfma_f32_32x32x16_bf16 {vr(O,16)}, {vr(VF[1]+4,4)}, {vr(P[1]+4,4)}, {vr(O,16)}")
        a("s_nop 15")
        a("s_nop 3")
    if M0:
        a(f"v_mov_b32 v{T0}, 0")
        zero_init()
    tk.tick()
    a("s_waitcnt vmcnt(0) lgkmcnt(0)")
    a("s_barrier")
    tk.tick()
    a("s_cmp_eq_u32 s35, 0")
    a("s_cbranch_scc1 L_attn_nodma1")
    kvdma()
    a.label("L_attn_nodma1")
    if M0:
        mainloop(True, "0", "")
    else:
        a(f"ds_read_b128 {vr(KF[0],4)}, v2")
        a("s_waitcnt lgkmcnt(0)")
        a(f"v_mfma_f32_32x32x16_bf16 {vr(S[0],16)}, {vr(KF[0],4)}, {vr(Q,4)}, 0")
        a("s_nop 15")
        a("s_nop 3")
        maxtree(T0, S[0], True)
        setmax()
        zero_init()
        mainloop(True, vr(NM,16), "")
    tk.tick()
    a(f"v_mul_f32 v{T0+1}, 0, v{O}")
    a(f"v_mul_f32 v{T0+2}, 0, v{O+1}")
    a("s_mov_b32 s34, 0x5f800000")
    a(f"v_cmp_nle_f32 s[36:37], v{O+8}, s34")
    a("s_mov_b32 s34, 0x21800000")
    a(f"v_cmp_nge_f32 s[38:39], v{O+8}, s34")
    for r in range(2, 8):
        a(f"v_fma_f32 v{T0+1+(r&1)}, v{O+r}, 0, v{T0+1+(r&1)}")
    a(f"v_add_f32 v{T0+1}, v{T0+1}, v{T0+2}")
    a("s_or_b64 s[36:37], s[36:37], s[38:39]")
    a(f"v_cmp_u_f32 vcc, v{T0+1}, v{T0+1}")
    a("s_or_b64 s[36:37], s[36:37], vcc")
    a("s_cmp_eq_u64 s[36:37], 0")
    if not FB: a("s_cbranch_scc1 L_attn_done")
    a("s_waitcnt vmcnt(0)")
    a("v_mov_b32 v2, v6")
    a(f"v_mov_b32 v{T0}, 0xff800000")
    a("s_mov_b32 s32, 0")
    a.label("L_attn_maxloop")
    a(f"ds_read_b128 {vr(KF[0],4)}, v2")
    a("s_waitcnt lgkmcnt(0)")
    a(f"v_mfma_f32_32x32x16_bf16 {vr(S[0],16)}, {vr(KF[0],4)}, {vr(Q,4)}, 0")
    a("s_nop 15")
    a("s_nop 3")
    maxtree(T0, S[0], False)
    a("v_add_u32 v2, 1024, v2")
    a("s_add_u32 s32, s32, 1")
    a("s_cmp_lt_u32 s32, 32")
    a("s_cbranch_scc1 L_attn_maxloop")
    setmax()
    zero_init()
    a("v_mov_b32 v2, v6")
    a("v_mov_b32 v3, v5")
    mainloop(False, vr(NM,16), "2")
    a.label("L_attn_done")
    a("s_mul_i32 s38, s21, 2560")
    a(f"s_add_u32 s38, s38, {SCR}")
    a("v_add_u32 v2, s38, v4")
    a("v_lshlrev_b32 v3, 3, v1")
    a("v_add_u32 v3, s38, v3")
    a(f"v_mov_b32 v{O+9}, v{T0}")
    a("s_lshl_b32 s38, s27, 5")
    a("s_add_u32 s38, s38, s23")
    a("s_lshl_b32 s38, s38, 10")
    a("s_mov_b32 s33, s22")
    a("s_cmp_eq_u32 s22, 0")
    a("s_cselect_b64 exec, 0, -1")
    a(f"ds_write_b128 v2, {vr(O,4)}")
    a(f"ds_write_b128 v2, {vr(O+4,4)} offset:1024")
    a(f"ds_write_b64 v3, {vr(O+8,2)} offset:2048")
    a("s_waitcnt lgkmcnt(0)")
    a("s_cbranch_scc1 L_attn_comb")
    a("s_barrier")
    a(f"s_branch L_attn_fin")
    a.label("L_attn_comb")
    a(f"ds_read_b64 {vr(S[0]+8,2)}, v3 offset:2048")
    a(f"ds_read_b128 {vr(S[0],4)}, v2")
    a(f"ds_read_b128 {vr(S[0]+4,4)}, v2 offset:1024")
    a("s_waitcnt lgkmcnt(2)")
    m1 = S[0] + 9
    a(f"v_max_f32 v{T0+1}, v{T0}, v{m1}")
    a(f"v_sub_f32 v{T0+2}, v{T0}, v{T0+1}")
    a(f"v_sub_f32 v{T0+3}, v{m1}, v{T0+1}")
    a(f"v_exp_f32 v{T0+2}, v{T0+2}")
    a(f"v_exp_f32 v{T0+3}, v{T0+3}")
    a("s_nop 0")
    a(f"v_mul_f32 v{O+8}, v{O+8}, v{T0+2}")
    a(f"v_fma_f32 v{O+8}, v{S[0]+8}, v{T0+3}, v{O+8}")
    a(f"v_rcp_f32 v{T0+4}, v{O+8}")
    a("s_nop 0")
    a(f"v_mul_f32 v{T0+2}, v{T0+2}, v{T0+4}")
    a(f"v_mul_f32 v{T0+3}, v{T0+3}, v{T0+4}")
    for r in range(8): a(f"v_mul_f32 v{O+r}, v{O+r}, v{T0+2}")
    a("s_waitcnt lgkmcnt(0)")
    for r in range(8):
        a(f"v_fma_f32 v{O+r}, v{S[0]+r}, v{T0+3}, v{O+r}")
    for j in range(4): a(f"v_cvt_pk_bf16_f32 v{P[0]+j}, v{O+2*j}, v{O+2*j+1}")
    a(f"buffer_store_dwordx4 {vr(P[0],4)}, v4, s[12:15], s38 offen" + STF)
    a("s_cmp_eq_u32 s33, 2")
    a("s_cbranch_scc1 L_attn_fin")
    a("s_mov_b32 s33, 2")
    a("s_mov_b64 exec, -1")
    a("s_barrier")
    a("s_branch L_attn_comb")
    a.label("L_attn_fin")
    tk.tick()
    if MG:
        a("s_cmp_eq_u32 s22, 0")
        a("s_cbranch_scc1 L_attn_cont")
        tk.z = 2
        n = tk.n
        tk.tick(); tk.dump(20)
        a("s_endpgm")
        a.label("L_attn_cont")
        tk.n = n
        cnt_srd(a, 30)
        sig(a, "c2", 24, 4096)
        tk.z = 8
        tk.tick(); tk.dump(20)
        return
    a("s_waitcnt vmcnt(0)")
    tk.tick()
    tk.dump(20)
    a.label(f"L_{name}_end")
    a("s_endpgm")
    return name, kernel_wrap(name, a.text(), 128, 100 if TICK else 64), SCR + 8*2560
```

```python
import os
from dsl import *

def gemm64(mode, a=None):
    op = mode == "oproj"
    name = "k3_oproj_kernel" if op else "k5_ffn2_kernel"
    nks = 32 if op else 86
    nchunk = (nks + 7) // 8
    nslot = 4 if op else 5
    kspitch = 32 if op else AF_KS
    MG = a is not None
    if not MG: a = Asm()
    tk = Ticks(a, 2 if op else 4)
    if MG: tk.z = 26
    if not MG:
        a("s_cmp_ge_u32 s2, 256")
        a(f"s_cbranch_scc1 L_{name}_end")
    a("s_load_dwordx2 s[30:31], s[0:1], %d" % KA['ws'])
    a("s_load_dwordx2 s[32:33], s[0:1], %d" % (KA['wo'] if op else KA['w2']))
    a("s_load_dwordx2 s[34:35], s[0:1], %d" % (KA['x'] if op else KA['out']))
    a("s_and_b32 s3, s2, 7")
    a("s_lshr_b32 s38, s2, 3")
    a("s_lshl_b32 s23, s3, 2")
    a("s_and_b32 s39, s38, 3")
    a("s_add_u32 s23, s23, s39")
    a("s_lshr_b32 s24, s38, 2")
    tk.tick()
    a("v_and_b32 v1, 63, v0")
    a("v_lshrrev_b32 v2, 6, v0")
    a("s_nop 0")
    a("v_readfirstlane_b32 s20, v2")
    a("s_nop 3")
    a("s_and_b32 s21, s20, 1")
    a("s_lshr_b32 s22, s20, 2")
    a("s_lshr_b32 s25, s20, 1")
    a("s_and_b32 s25, s25, 1")
    a("v_and_b32 v2, 31, v1")
    a("v_lshrrev_b32 v3, 5, v1")
    a("s_lshl_b32 s38, s23, 1")
    a(f"s_mul_i32 s38, s38, {kspitch}")
    a("s_add_u32 s38, s38, s20")
    a("s_lshl_b32 s38, s38, 10")
    a("v_lshlrev_b32 v4, 4, v1")
    a("v_add_u32 v10, s38, v4")
    a(f"v_add_u32 v11, {kspitch*1024}, v10")
    a("v_lshrrev_b32 v5, 3, v1")
    a("s_lshl_b32 s38, s20, 4")
    a("v_add_u32 v5, s38, v5")
    a("v_lshlrev_b32 v5, 10, v5")
    a("v_lshrrev_b32 v6, 4, v1")
    a("v_and_b32 v6, 1, v6")
    a("v_lshlrev_b32 v6, 2, v6")
    a("v_and_b32 v7, 7, v1")
    a("v_xor_b32 v6, v6, v7")
    a("v_lshlrev_b32 v6, 4, v6")
    a("v_add_u32 v5, v5, v6")
    a("s_lshl_b32 s38, s24, 7")
    a("v_add_u32 v12, s38, v5")
    a("s_lshl_b32 s40, s23, 1")
    a("s_add_u32 s40, s40, s21")
    a("s_lshl_b32 s41, s24, 2")
    a("s_lshl_b32 s38, s25, 1")
    a("s_add_u32 s41, s41, s38")
    a("s_add_u32 s41, s41, s22")
    a("s_lshl_b32 s42, s40, 5")
    a("s_add_u32 s42, s42, s41")
    a("s_lshl_b32 s42, s42, 10")
    a("s_lshl_b32 s43, s40, 15")
    a("s_lshl_b32 s38, s41, 5")
    a("s_add_u32 s43, s43, s38")
    a("v_lshlrev_b32 v8, 10, v2")
    a("s_waitcnt lgkmcnt(0)")
    if op:
        srd(a, 4, 30, 2*MB, add=WS_OF)
        srd(a, 12, 30, 2*MB, add=WS_HF)
        srd(a, 16, 34, 2*MB)
    else:
        srd(a, 4, 30, 64*AF_KS*1024, add=WS_AF)
        srd(a, 12, 34, 2*MB)
        srd(a, 16, 30, 2*MB, add=WS_HF)
    srd(a, 8, 32, nks*16*1024)
    RES = 28
    if op:
        a("v_lshlrev_b32 v13, 4, v3")
        a("v_add_u32 v13, v13, v8")
    else:
        a(f"buffer_load_dwordx4 v[{RES}:{RES+3}], v4, s[16:19], s42 offen")
    a("s_lshl_b32 s26, s20, 11")
    issued = []
    def piece(c, p):
        slot = c % nslot
        i = p & 1
        if p < 2:
            a(f"s_add_u32 m0, s26, {slot*32768 + i*1024}")
            a(f"s_movk_i32 s38, {c*8192}" if c*8192 < 32768 else f"s_mov_b32 s38, {c*8192}")
            a(f"buffer_load_dwordx4 v{10+i}, s[4:7], s38 offen lds")
        else:
            a(f"s_add_u32 m0, s26, {slot*32768 + 16384 + i*1024}")
            a(f"s_mov_b32 s38, {c*131072 + i*8192}")
            a(f"buffer_load_dwordx4 v12, s[8:11], s38 offen lds")
        issued.append(c)
    def younger(c):
        last = max(i for i, x in enumerate(issued) if x == c)
        return len(issued) - 1 - last
    PRO = 4 if op else int(os.environ.get("PRO64", "3"))
    if MG: cnt_srd(a, 30)
    if MG and (not op or MERGE >= 2):
        for c in range(PRO):
            for p in (2, 3): piece(c, p)
        if op:
            a("s_lshr_b32 s39, s23, 2")
            waitcnt(a, "c2", 39, 4096, 32, preg=127)
        else:
            a("s_lshr_b32 s39, s23, 1")
            waitcnt(a, "c4", 39, 2048, 15, preg=127)
        for c in range(PRO):
            for p in (0, 1): piece(c, p)
    else:
        for c in range(PRO):
            for p in range(4): piece(c, p)
    nextc = [PRO]
    tk.tick()
    a("s_lshl_b32 s38, s22, 13")
    a("s_lshl_b32 s39, s21, 10")
    a("s_add_u32 s38, s38, s39")
    a("v_add_u32 v17, s38, v4")
    a("v_and_b32 v5, 15, v1")
    a("v_lshrrev_b32 v6, 2, v5")
    a(f"v_lshlrev_b32 v7, {3 if op else 2}, v3")
    a("v_add_u32 v6, v6, v7")
    a("s_lshl_b32 s38, s22, 6")
    a("v_add_u32 v6, s38, v6")
    a("v_lshlrev_b32 v6, 7, v6")
    a("v_lshrrev_b32 v7, 4, v1")
    a("v_and_b32 v7, 1, v7")
    a("v_xor_b32 v7, s22, v7")
    a("v_lshlrev_b32 v7, 1, v7")
    a("v_bfe_u32 v9, v5, 1, 1")
    a("v_add_u32 v7, v7, v9")
    a("s_lshl_b32 s38, s25, 2")
    a("v_add_u32 v7, s38, v7")
    a("v_lshrrev_b32 v9, 3, v5")
    a("v_lshlrev_b32 v9, 2, v9")
    a("v_xor_b32 v7, v7, v9")
    a("v_lshlrev_b32 v7, 4, v7")
    a("v_add_u32 v6, v6, v7")
    a("v_and_b32 v7, 1, v5")
    a("v_lshlrev_b32 v7, 3, v7")
    a("v_add_u32 v6, v6, v7")
    a("v_add_u32 v21, 16384, v6")
    a("v_add_u32 v18, 0x10000, v17")
    a("v_add_u32 v22, 0x10000, v21")
    a("v_add_u32 v19, 0x20000, v17")
    a("v_add_u32 v23, 0x20000, v21")
    halfrow = 4 if op else 8
    ACC = 48
    for r in range(ACC, ACC+16): a(f"v_mov_b32 v{r}, 0")
    AF = [32, 36]; WF = [40, 44]
    def reads(c, s, buf):
        slot = c % nslot
        hi = slot // 2; off = (slot % 2) * 32768
        a(f"ds_read_b128 {vr(AF[buf],4)}, v{17+hi} offset:{off + s*2048}")
        for hf in range(2):
            a(f"ds_read_b64_tr_b16 {vr(WF[buf]+2*hf,2)}, v{21+hi} offset:{off + (16*s + halfrow*hf)*128}")
    def compute(buf):
        a(f"v_mfma_f32_32x32x16_bf16 {vr(ACC,16)}, {vr(WF[buf],4)}, {vr(AF[buf],4)}, {vr(ACC,16)}")
    for c in range(nchunk):
        a(f"s_waitcnt vmcnt({younger(c)})")
        a("s_barrier")
        tk.tick()
        pend = []
        while nextc[0] < nchunk and nextc[0] <= c + nslot - 1:
            pend += [(nextc[0], p) for p in range(4)]
            nextc[0] += 1
        per = (len(pend) + 3) // 4
        last = (c == nchunk - 1) and (nks % 8 != 0)
        reads(c, 0, 0)
        for s in range(4):
            if last and s == 2:
                a("s_waitcnt lgkmcnt(0)")
                a("s_cmp_eq_u32 s22, 1")
                a(f"s_cbranch_scc1 L_{name}_kdone")
            if s < 3:
                reads(c, s+1, (s+1) & 1)
                a("s_waitcnt lgkmcnt(3)")
            else:
                a("s_waitcnt lgkmcnt(0)")
            compute(s & 1)
            for _ in range(per):
                if pend: piece(*pend.pop(0))
        assert not pend
        if op and c == 0:
            a(f"buffer_load_dwordx4 v[{RES}:{RES+3}], v13, s[16:19], s43 offen")
            issued.append("res")
    a.label(f"L_{name}_kdone")
    tk.tick()
    a("s_barrier")
    a("s_lshl_b32 s38, s20, 11")
    a("v_add_u32 v5, s38, v4")
    a("s_nop 7")
    a("s_nop 3")
    for q in range(2):
        a(f"ds_write_b128 v5, {vr(ACC+8+4*q,4)} offset:{q*1024}")
    a("s_waitcnt lgkmcnt(0)")
    a("s_barrier")
    a("s_xor_b32 s39, s20, 4")
    a("s_lshl_b32 s38, s39, 11")
    a("v_add_u32 v5, s38, v4")
    for q in range(2):
        a(f"ds_read_b128 {vr(32+4*q,4)}, v5 offset:{q*1024}")
    a("s_waitcnt vmcnt(0) lgkmcnt(0)")
    if op:
        a(f"v_permlane32_swap_b32 v{RES}, v{RES+2}")
        a(f"v_permlane32_swap_b32 v{RES+1}, v{RES+3}")
    for j in range(8):
        src = RES + (j >> 1)
        if j & 1: a(f"v_and_b32 v{40+j}, 0xffff0000, v{src}")
        else:     a(f"v_lshlrev_b32 v{40+j}, 16, v{src}")
        a(f"v_add_f32 v{ACC+j}, v{ACC+j}, v{32+j}")
        a(f"v_add_f32 v{ACC+j}, v{ACC+j}, v{40+j}")
    for j in range(4):
        a(f"v_cvt_pk_bf16_f32 v{32+j}, v{ACC+2*j}, v{ACC+2*j+1}")
    if op:
        a(f"buffer_store_dwordx4 v[32:35], v4, s[12:15], s42 offen" + STF)
        if KS3:
            STX = 16384
            a(f"v_mul_f32 v25, v{ACC}, v{ACC}")
            a(f"v_add_f32 v24, v{ACC}, v{ACC+1}")
            a(f"v_fmac_f32 v25, v{ACC+1}, v{ACC+1}")
            for j in range(2, 8):
                a(f"v_add_f32 v24, v24, v{ACC+j}")
                a(f"v_fmac_f32 v25, v{ACC+j}, v{ACC+j}")
            a("s_lshl_b32 s38, s20, 9")
            a("v_lshlrev_b32 v6, 3, v1")
            a("v_add_u32 v6, s38, v6")
            a(f"ds_write_b64 v6, v[24:25] offset:{STX}")
            srd(a, 4, 30, 128*1024, add=WS_ST)
            a("s_lshl_b32 s44, s40, 11")
            a("s_lshr_b32 s38, s24, 1")
            a("s_lshl_b32 s38, s38, 9")
            a("s_add_u32 s44, s44, s38")
            a("s_and_b32 s38, s24, 1")
            a("s_lshl_b32 s38, s38, 3")
            a("s_add_u32 s44, s44, s38")
            a("v_lshlrev_b32 v7, 4, v2")
            a("v_lshlrev_b32 v9, 2, v3")
            a("v_add_u32 v7, v7, v9")
            a("s_waitcnt lgkmcnt(0)")
            a("s_barrier")
            a("s_cmp_ge_u32 s20, 2")
            a(f"s_cbranch_scc1 L_{name}_nost")
            for q in range(4):
                a(f"ds_read_b64 v[{40+2*q}:{41+2*q}], v6 offset:{STX + q*1024}")
            a("v_cmp_eq_u32 vcc, 0, v3")
            a("s_waitcnt lgkmcnt(0)")
            a("v_add_f32 v40, v40, v42")
            a("v_add_f32 v41, v41, v43")
            a("v_add_f32 v44, v44, v46")
            a("v_add_f32 v45, v45, v47")
            a("v_add_f32 v40, v40, v44")
            a("v_add_f32 v41, v41, v45")
            a("v_mov_b32 v42, v40")
            a("v_mov_b32 v43, v41")
            a("s_nop 1")
            a("v_permlane32_swap_b32 v40, v42")
            a("v_permlane32_swap_b32 v41, v43")
            a("s_nop 1")
            a("v_add_f32 v40, v40, v42")
            a("v_add_f32 v41, v41, v43")
            a("v_cndmask_b32 v40, v41, v40, vcc")
            a("buffer_store_dword v40, v7, s[4:7], s44 offen" + STF)
            a.label(f"L_{name}_nost")
    else:
        a("v_lshlrev_b32 v9, 4, v3")
        a("v_add_u32 v9, v9, v8")
        a("v_permlane32_swap_b32 v32, v34")
        a("v_permlane32_swap_b32 v33, v35")
        a("s_nop 1")
        a(f"buffer_store_dwordx4 v[32:35], v9, s[12:15], s43 offen" + STF)
    tk.tick()
    if MG and op:
        a("s_lshr_b32 s39, s23, 1")
        sig(a, "c3", 39, 0)
    else:
        a("s_waitcnt vmcnt(0)")
    tk.tick()
    tk.dump(20)
    a.label(f"L_{name}_end")
    if MG: return
    a("s_endpgm")
    return name, kernel_wrap(name, a.text(), 64, 100 if TICK else 64), nslot * 32768
```

```python
import os
from dsl import *

def gemm96(mode, a=None):
    qkv = mode == "qkv"
    name = "k1_qkv_kernel" if qkv else "k4_ffn1_kernel"
    NW = 1536 if qkv else 1376
    pitchW = NW * 2
    MG = a is not None
    if not MG: a = Asm()
    tk = Ticks(a, 0 if qkv else 3)
    if MG: tk.z = 36
    SL = 28672; NS = 4; WOFF = 16384; NCH = 8; LOOK = 3
    if not MG:
        a("s_cmp_ge_u32 s2, 256")
        a(f"s_cbranch_scc1 L_{name}_end")
    a("s_load_dwordx2 s[30:31], s[0:1], %d" % (KA['x'] if qkv else KA['ws']))
    a("s_load_dwordx2 s[32:33], s[0:1], %d" % (KA['wqkv'] if qkv else KA['w1']))
    a("s_load_dwordx2 s[34:35], s[0:1], %d" % KA['ws'])
    if not qkv: a("s_load_dwordx2 s[36:37], s[0:1], %d" % KA['b1'])
    a("s_and_b32 s3, s2, 7")
    a("s_lshr_b32 s38, s2, 3")
    a("s_lshr_b32 s23, s3, 1")
    a("s_lshl_b32 s23, s23, 2")
    a("s_and_b32 s39, s38, 3")
    a("s_add_u32 s23, s23, s39")
    a("s_and_b32 s24, s3, 1")
    a("s_lshl_b32 s24, s24, 3")
    a("s_lshr_b32 s39, s38, 2")
    a("s_add_u32 s24, s24, s39")
    if not qkv:
        a("s_cmp_ge_u32 s24, 15")
        a(f"s_cbranch_scc1 L_{name}_end")
    tk.tick()
    a("v_and_b32 v1, 63, v0")
    a("v_lshrrev_b32 v2, 6, v0")
    a("v_lshlrev_b32 v4, 4, v1")
    a("v_readfirstlane_b32 s20, v2")
    a("v_and_b32 v2, 31, v1")
    a("v_lshrrev_b32 v3, 5, v1")
    a("s_and_b32 s21, s20, 3")
    a("s_lshr_b32 s22, s20, 2")
    a("v_mul_u32_u24 v5, 43691, v1")
    a("v_lshrrev_b32 v5, 19, v5")
    a("v_mul_u32_u24 v6, 12, v5")
    a("v_sub_u32 v6, v1, v6")
    a("v_lshlrev_b32 v6, 4, v6")
    a("s_mul_i32 s39, s24, 192")
    a("v_add_u32 v6, s39, v6")
    if not qkv:
        a(f"v_min_u32 v6, {pitchW-16}, v6")
    a("s_lshl_b32 s38, s20, 3")
    a("v_add_u32 v5, s38, v5")
    a(f"v_mul_u32_u24 v5, {pitchW}, v5")
    a("v_add_u32 v14, v5, v6")
    if qkv:
        a("s_lshl_b32 s38, s23, 7")
        a("s_lshl_b32 s39, s20, 4")
        a("s_add_u32 s38, s38, s39")
        a("v_lshrrev_b32 v5, 3, v1")
        a("v_add_u32 v5, s38, v5")
        a("v_lshlrev_b32 v5, 10, v5")
        a("v_lshrrev_b32 v6, 4, v1")
        a("v_and_b32 v7, 7, v1")
        a("v_xor_b32 v6, v6, v7")
        a("v_lshlrev_b32 v7, 4, v6")
        a("v_add_u32 v10, v5, v7")
        a("v_xor_b32 v6, 4, v6")
        a("v_lshlrev_b32 v7, 4, v6")
        a("v_add_u32 v11, v5, v7")
        a("v_add_u32 v11, 8192, v11")
    else:
        a("s_lshl_b32 s38, s23, 2")
        a("s_lshr_b32 s39, s20, 1")
        a("s_add_u32 s38, s38, s39")
        a("s_lshl_b32 s38, s38, 5")
        a("s_and_b32 s39, s20, 1")
        a("s_lshl_b32 s39, s39, 1")
        a("s_add_u32 s38, s38, s39")
        a("s_lshl_b32 s38, s38, 10")
        a("v_add_u32 v10, s38, v4")
    a("s_lshl_b32 s25, s20, 11")
    a("s_mul_i32 s26, s20, 1536")
    a(f"s_add_u32 s26, s26, {WOFF}")
    a("s_mov_b32 s46, -1")
    a("s_mov_b32 s47, 0xffff")
    a("s_waitcnt lgkmcnt(0)")
    if qkv:
        srd(a, 4, 30, 2048*1024)
        srd(a, 12, 34, 6*MB)
    else:
        srd(a, 4, 30, 2*MB, add=WS_HF)
        srd(a, 12, 34, 64*AF_KS*1024, add=WS_AF)
        srd(a, 16, 36, 1376*2)
    srd(a, 8, 32, 512*pitchW)
    issued = []
    def piece(c, p):
        slot = (c % NS) * SL
        if p < 2:
            i = p
            if qkv:
                a(f"s_add_u32 m0, s25, {slot + i*1024}")
                a(f"s_movk_i32 s38, {c*128}")
                a(f"buffer_load_dwordx4 v{10+i}, s[4:7], s38 offen lds")
            else:
                a(f"s_add_u32 m0, s25, {slot}")
                a(f"s_movk_i32 s38, {c*4096}")
                a(f"buffer_load_dwordx4 v10, s[4:7], s38 offen offset:{i*1024} lds")
        else:
            i = p - 2
            a(f"s_add_u32 m0, s26, {slot + i*768}")
            a(f"s_mov_b32 s38, {(c*64 + 4*i)*pitchW}")
            a("s_mov_b64 exec, s[46:47]")
            a(f"buffer_load_dwordx4 v14, s[8:11], s38 offen lds")
            a("s_mov_b64 exec, -1")
        issued.append(c)
    def dma(c):
        for p in range(4): piece(c, p)
    def younger(c):
        last = max(i for i, x in enumerate(issued) if x == c)
        return len(issued) - 1 - last
    pend = []
    def slot_hook(n=1):
        for _ in range(n):
            if pend: piece(*pend.pop(0))
    REP = int(os.environ.get('REP', '0'))
    if REP:
        a('s_mov_b32 s55, 0')
        a.label(f'L_{name}_rep')
        a('s_mov_b32 s46, -1')
        a('s_mov_b32 s47, 0xffff')
    if MG:
        cnt_srd(a, 34)
        for c in range(2):
            for p in (2, 3): piece(c, p)
        waitcnt(a, "c3", 23, 0, 16)
        for c in range(2):
            for p in (0, 1): piece(c, p)
    else: dma(0)
    if not qkv:
        pass
    if int(os.environ.get("OB96", "0")): a("s_barrier")
    if not MG: dma(1)
    tk.tick()
    for b in range(3):
        a(f"s_add_u32 s{27+b}, s21, {b}")
        a(f"s_cmp_ge_u32 s{27+b}, 3")
        a(f"s_cselect_b32 s38, 3, 0")
        a(f"s_sub_u32 s{27+b}, s{27+b}, s38")
    VA = 26
    if qkv:
        a("s_lshl_b32 s38, s21, 12")
        a("v_lshlrev_b32 v5, 7, v2")
        a("v_add_u32 v5, s38, v5")
        a("v_bfe_u32 v6, v2, 1, 3")
        a("v_xor_b32 v6, v6, v3")
        for s in range(4):
            a(f"v_xor_b32 v7, {2*s}, v6")
            a("v_lshlrev_b32 v7, 4, v7")
            a(f"v_add_u32 v{VA+s}, v5, v7")
            a(f"v_add_u32 v{VA+4+s}, {2*SL}, v{VA+s}")
    else:
        a("s_lshl_b32 s38, s21, 12")
        a(f"v_add_u32 v{VA}, s38, v4")
        a(f"v_add_u32 v{VA+1}, {2*SL}, v{VA}")
    a("v_and_b32 v5, 15, v1")
    a("v_lshrrev_b32 v6, 2, v5")
    a(f"v_lshlrev_b32 v7, {3 if qkv else 2}, v3")
    a("v_add_u32 v6, v6, v7")
    a("v_mul_u32_u24 v6, 192, v6")
    a("v_bfe_u32 v7, v1, 4, 1")
    a("v_lshlrev_b32 v8, 5, v7")
    a("v_add_u32 v6, v6, v8")
    a("v_and_b32 v8, 3, v5")
    a("v_lshlrev_b32 v8, 3, v8")
    a("v_add_u32 v6, v6, v8")
    for b in range(3):
        a(f"s_lshl_b32 s38, s{27+b}, 6")
        a(f"s_add_u32 s38, s38, {WOFF}")
        a(f"v_add_u32 v{20+b}, s38, v6")
        a(f"v_add_u32 v{23+b}, {2*SL}, v{20+b}")
    halfrow = 4 if qkv else 8
    SEL = 64; CSA = 68; TMP = 120
    S1 = 8; S2 = 12
    a("v_cmp_eq_u32 vcc, v5, v7")
    a("v_mov_b32 v9, 0x3f803f80")
    for r in range(4): a(f"v_cndmask_b32 v{SEL+r}, 0, v9, vcc")
    for r in (8, 9, 12, 13): a(f"v_mov_b32 v{r}, 0")
    for r in range(CSA, CSA+4): a(f"v_mov_b32 v{r}, 0")
    for r in range(72, 104): a(f"v_mov_b32 v{r}, 0")
    a("s_mov_b32 s45, 0xffff0000")
    AF = [40, 44]; ACC = 72
    WF = [48, 56]
    B1 = 104
    ST, CS = 0, 4096
    a("s_lshl_b32 s40, s23, 2")
    a("s_add_u32 s40, s40, s21")
    if not qkv:
        srd(a, 48, 34, 128*1024, add=WS_ST)
        a("s_lshl_b32 s38, s40, 11")
        a("v_lshlrev_b32 v5, 9, v3")
        a("v_lshlrev_b32 v6, 4, v2")
        a("v_add_u32 v5, v5, v6")
        for j in range(2):
            a(f"buffer_load_dwordx4 v[{120+4*j}:{123+4*j}], v5, s[48:51], s38 offen offset:{1024*j}")
            issued.append("st")
    a("s_cmp_eq_u32 s22, 1")
    a(f"s_cbranch_scc1 L_{name}_roleB")
    issued0 = list(issued)

    def prefetch(role):
        L = f"L_{name}_pf{role}"
        a("s_sub_u32 s38, s20, 2")
        a("s_cmp_lt_u32 s38, 4")
        a(f"s_cbranch_scc1 {L}w")
        a("s_and_b32 s39, s24, 7")
        a("s_lshr_b32 s38, s20, 2")
        a("s_lshl_b32 s38, s38, 2")
        a("s_xor_b32 s39, s39, s38")
        a("s_lshl_b32 s39, s39, 4")
        a("s_lshl_b32 s38, s23, 7")
        a("s_add_u32 s39, s39, s38")
        a("s_and_b32 s38, s20, 1")
        a("s_lshl_b32 s38, s38, 3")
        a("s_add_u32 s39, s39, s38")
        a("s_lshl_b32 s39, s39, 10")
        a("v_lshrrev_b32 v5, 3, v1")
        a("v_lshlrev_b32 v5, 10, v5")
        a("v_and_b32 v6, 7, v1")
        a("v_lshlrev_b32 v6, 7, v6")
        a("v_add_u32 v5, v5, v6")
        a("s_mov_b32 s42, 0xf8f8f8f8")
        a("s_mov_b32 s43, 0xf8f8f8f8")
        a("s_mov_b64 exec, s[42:43]")
        a("buffer_load_dword v127, v5, s[4:7], s39 offen")
        a(f"s_branch {L}d")
        a.label(f"{L}w")
        a("s_and_b32 s39, s23, 3")
        a("s_mul_i32 s39, s39, 80")
        a("s_mul_i32 s38, s38, 20")
        a("s_add_u32 s39, s39, s38")
        a("s_add_u32 s39, s39, 192")
        a(f"s_mul_i32 s39, s39, {pitchW}")
        a("s_mul_i32 s38, s24, 192")
        a("s_add_u32 s39, s39, s38")
        a("v_lshrrev_b32 v5, 1, v1")
        a(f"v_mul_u32_u24 v5, {pitchW}, v5")
        a("v_and_b32 v6, 1, v1")
        a("v_lshlrev_b32 v6, 7, v6")
        a("v_add_u32 v5, v5, v6")
        a("s_mov_b32 s42, -1")
        a("s_mov_b32 s43, 0xff")
        a("s_mov_b64 exec, s[42:43]")
        a("buffer_load_dword v127, v5, s[8:11], s39 offen")
        a.label(f"{L}d")
        a("s_mov_b64 exec, -1")
        issued.append("pf")
    PFX = int(os.environ.get("PFX", "0")) if qkv else 0
    def body(role):
        issued[:] = issued0
        del pend[:]
        blks = [0, 1] if role == 0 else [2]
        nb = len(blks); nrd = 1 + 2*nb
        if not qkv:
            a("s_mul_i32 s38, s24, 192")
            a("v_lshlrev_b32 v5, 3, v3")
            a("v_add_u32 v5, s38, v5")
            for k, b in enumerate(blks):
                a(f"s_lshl_b32 s38, s{27+b}, 6")
                for hq in range(4):
                    r = B1 + 8*k + 2*hq
                    a(f"buffer_load_dwordx2 v[{r}:{r+1}], v5, s[16:19], s38 offen offset:{16*hq}")
                    issued.append("b1")
        def reads(c, s, buf):
            slot = c % NS
            grp = slot // 2; off = (slot % 2) * SL
            if qkv:
                a(f"ds_read_b128 {vr(AF[buf],4)}, v{VA+4*grp+s} offset:{off}")
            else:
                a(f"ds_read_b128 {vr(AF[buf],4)}, v{VA+grp} offset:{off + s*1024}")
            for k, b in enumerate(blks):
                for hf in range(2):
                    a(f"ds_read_b64_tr_b16 {vr(WF[buf]+4*k+2*hf,2)}, v{20+3*grp+b} offset:{off + (16*s + halfrow*hf)*192}")
        def stats(reg, k):
            t = TMP + 2*(k & 1)
            a(f"v_lshlrev_b32 v{t}, 16, v{reg}")
            a(f"v_and_b32 v{t+1}, s45, v{reg}")
            a(f"v_add_f32 v{S1}, v{S1}, v{t}")
            a(f"v_fmac_f32 v{S2}, v{t}, v{t}")
            a(f"v_add_f32 v{S1+1}, v{S1+1}, v{t+1}")
            a(f"v_fmac_f32 v{S2+1}, v{t+1}, v{t+1}")
        SA = os.environ.get("SA", "02")
        first = [True]
        def compute(buf, ks):
            for k in range(nb):
                a(f"v_mfma_f32_32x32x16_bf16 {vr(ACC+16*k,16)}, {vr(WF[buf]+4*k,4)}, {vr(AF[buf],4)}, {vr(ACC+16*k,16)}")
                if k == 0:
                    slot_hook(2 if first[0] else 1); first[0] = False
            if role == 0:
                a(f"v_mfma_f32_16x16x32_bf16 {vr(CSA,4)}, {vr(WF[buf],4)}, {vr(SEL,4)}, {vr(CSA,4)}")
            if qkv and ((str(ks) in SA) == (role == 0)):
                for r in range(4): stats(AF[buf] + r, r)
        a(f"s_waitcnt vmcnt({younger(0)})")
        a("s_barrier")
        tk.tick()
        reads(0, 0, 0)
        if PFX == 1: prefetch(role)
        pend.extend((2, p) for p in range(4))
        for c in range(NCH):
            for s in range(4):
                buf = s & 1
                if s < 3:
                    reads(c, s+1, buf ^ 1)
                    a(f"s_waitcnt lgkmcnt({nrd})")
                elif c < NCH - 1:
                    a(f"s_waitcnt vmcnt({younger(c+1)})")
                    a("s_barrier")
                    if c in (1, 3, 5):
                        tk.tick()
                    assert not pend
                    if c + LOOK < NCH: pend.extend((c + LOOK, p) for p in range(4))
                    reads(c + 1, 0, buf ^ 1)
                    a(f"s_waitcnt lgkmcnt({nrd})")
                else:
                    a("s_waitcnt lgkmcnt(0)")
                compute(buf, s)
                if PFX == 2 and c == 0 and s == 2: prefetch(role)
        assert not pend
        tk.tick()
        if REP:
            a("s_cmp_eq_u32 s55, 0")
            a("s_mov_b32 s55, 1")
            a("s_barrier")
            a(f"s_cbranch_scc1 L_{name}_rep")
        if role == 0:
            a("v_and_b32 v10, 15, v1")
            a("v_lshlrev_b32 v10, 6, v10")
            a("v_lshrrev_b32 v11, 4, v1")
            a("v_lshlrev_b32 v11, 4, v11")
            a("v_add_u32 v10, v10, v11")
            a("s_lshl_b32 s39, s27, 7")
            a("v_add_u32 v10, s39, v10")
            a("s_mov_b32 s46, 0x00030003")
            a("s_mov_b32 s47, 0x00030003")
            a("s_nop 3")
            a("s_mov_b64 exec, s[46:47]")
            a(f"ds_write_b128 v10, {vr(CSA,4)} offset:{CS}")
            a("s_mov_b64 exec, -1")
        def statcalc():
            a("v_mul_f32 v22, 0x3b000000, v8")
            a("v_mul_f32 v23, 0x3b000000, v9")
            a("v_fma_f32 v23, -v22, v22, v23")
            a("v_max_f32 v23, 0, v23")
            a("v_add_f32 v23, 0x3727c5ac, v23")
            a("v_rsq_f32 v23, v23")
            a("s_nop 0")
            a("v_mul_f32 v22, v22, v23")
        def hcomb():
            a("v_mov_b32 v12, v8")
            a("v_mov_b32 v13, v9")
            a("s_nop 1")
            a("v_permlane32_swap_b32 v8, v12")
            a("v_permlane32_swap_b32 v9, v13")
            a("s_nop 1")
            a("v_add_f32 v8, v8, v12")
            a("v_add_f32 v9, v9, v13")
        a("s_lshl_b32 s38, s21, 8")
        a("v_lshlrev_b32 v7, 3, v2")
        a("v_add_u32 v7, s38, v7")
        if qkv:
            a("v_add_f32 v8, v8, v9")
            a("v_add_f32 v9, v12, v13")
            hcomb()
            a(f"ds_write_b64 v7, v[8:9] offset:{ST + role*1024}")
        else:
            a("v_add_f32 v8, v120, v122")
            a("v_add_f32 v9, v121, v123")
            a("v_add_f32 v12, v124, v126")
            a("v_add_f32 v13, v125, v127")
            a("v_add_f32 v8, v8, v12")
            a("v_add_f32 v9, v9, v13")
            hcomb()
            statcalc()
        a("v_lshlrev_b32 v10, 4, v3")
        a("v_lshlrev_b32 v15, 5, v2")
        a("v_add_u32 v15, v15, v10")
        for k, b in enumerate(blks):
            a(f"s_lshl_b32 s38, s{27+b}, 7")
            a(f"v_add_u32 v{16+k}, s38, v10")
        a("s_waitcnt lgkmcnt(0)")
        a("s_barrier")
        CB = [120, 26]
        hbs = [(k, hb) for k in range(nb) for hb in range(2)]
        def csread(i):
            k, hb = hbs[i]
            for q in range(2):
                a(f"ds_read_b128 {vr(CB[i & 1]+4*q,4)}, v{16+k} offset:{CS + (2*hb+q)*32}")
        if qkv: a(f"ds_read_b64 v[12:13], v7 offset:{ST + (1-role)*1024}")
        csread(0); csread(1)
        if qkv:
            a(f"s_waitcnt lgkmcnt(4)")
            a("v_add_f32 v8, v8, v12")
            a("v_add_f32 v9, v9, v13")
            statcalc()
        tk.tick()
        PX = 40
        nst = 0
        for i, (k, hb) in enumerate(hbs):
            b = blks[k]
            if True:
                A0 = ACC + 16*k + 8*hb
                C0 = CB[i & 1]
                PK = PX + 4*(nst & 1); nst += 1
                a(f"s_waitcnt lgkmcnt({2 if i + 1 < len(hbs) else 0})")
                a("s_mul_i32 s41, s24, 6")
                a(f"s_lshl_b32 s38, s{27+b}, 1")
                a(f"s_add_u32 s41, s41, s38")
                if hb: a("s_add_u32 s41, s41, 1")
                if qkv:
                    a("s_lshl_b32 s42, s41, 16")
                    a("s_lshl_b32 s43, s40, 10")
                    a("s_add_u32 s42, s42, s43")
                    a("s_cmp_lt_u32 s41, 32")
                    a("s_cselect_b32 s44, 0x3eb8aa3b, 1.0")
                    a("v_mul_f32 v11, s44, v23")
                    a("v_mul_f32 v12, s44, v22")
                    a("s_cmp_ge_u32 s41, 64")
                    a("s_cselect_b64 vcc, -1, 0")
                    a("v_cndmask_b32 v13, v4, v15, vcc")
                    for j in range(8):
                        a(f"v_mul_f32 v{C0+j}, v12, v{C0+j}")
                    for j in range(8):
                        a(f"v_fma_f32 v{A0+j}, v11, v{A0+j}, -v{C0+j}")
                    if i + 2 < len(hbs): csread(i + 2)
                    for j in range(4):
                        a(f"v_cvt_pk_bf16_f32 v{PK+j}, v{A0+2*j}, v{A0+2*j+1}")
                    a(f"buffer_store_dwordx4 {vr(PK,4)}, v13, s[12:15], s42 offen" + STF)
                else:
                    a(f"s_mul_i32 s42, s40, {AF_KS}")
                    a("s_add_u32 s42, s42, s41")
                    a("s_lshl_b32 s42, s42, 10")
                    T = 48
                    U = 56
                    for j in range(8):
                        bsrc = B1 + 8*k + 4*hb + (j >> 1)
                        if j & 1: a(f"v_and_b32 v{T+j}, s45, v{bsrc}")
                        else:     a(f"v_lshlrev_b32 v{T+j}, 16, v{bsrc}")
                    for j in range(8):
                        a(f"v_fma_f32 v{T+j}, -v22, v{C0+j}, v{T+j}")
                    if i + 2 < len(hbs): csread(i + 2)
                    for j in range(8):
                        a(f"v_fma_f32 v{A0+j}, v23, v{A0+j}, v{T+j}")
                    for j in range(8):
                        a(f"v_mul_f32 v{T+j}, 0x3fb8aa3b, v{A0+j}")
                    for j in range(8):
                        a(f"v_exp_f32 v{T+j}, v{T+j}")
                    for j in range(8):
                        a(f"v_add_f32 v{U+j}, 2.0, v{T+j}")
                    for j in range(8):
                        a(f"v_fma_f32 v{U+j}, v{T+j}, v{U+j}, 2.0")
                    for j in range(8):
                        a(f"v_rcp_f32 v{U+j}, v{U+j}")
                    for j in range(8):
                        a(f"v_mul_f32 v{U+j}, v{A0+j}, v{U+j}")
                    for j in range(8):
                        a(f"v_fma_f32 v{A0+j}, -2.0, v{U+j}, v{A0+j}")
                    for j in range(4):
                        a(f"v_cvt_pk_bf16_f32 v{PK+j}, v{A0+2*j}, v{A0+2*j+1}")
                    a(f"buffer_store_dwordx4 {vr(PK,4)}, v4, s[12:15], s42 offen" + STF)
        tk.tick()
    n0 = tk.n
    body(0)
    n1 = tk.n
    a(f"s_branch L_{name}_join")
    a.label(f"L_{name}_roleB")
    tk.n = n0
    body(1)
    tk.n = n1
    a.label(f"L_{name}_join")
    if MG: sig(a, "c4", 23, 2048)
    if qkv and MERGE:
        a("s_cmp_eq_u32 s2, 0")
        a(f"s_cbranch_scc0 L_{name}_nz")
        a("s_cmp_eq_u32 s20, 0")
        a(f"s_cbranch_scc0 L_{name}_nz")
        cnt_srd(a, 34)
        a("v_lshlrev_b32 v5, 7, v1")
        a("v_mov_b32 v6, 0")
        a("buffer_store_dword v6, v5, s[52:55], 0 offen" + STF)
        a.label(f"L_{name}_nz")
    if TICK: a("s_waitcnt vmcnt(0)")
    tk.tick()
    tk.dump(20)
    a.label(f"L_{name}_end")
    if MG: return
    a("s_endpgm")
    return name, kernel_wrap(name, a.text(), 128, 100 if TICK else 64), NS * SL
```

```python
import sys
from dsl import *
import k_gemm96, k_gemm64, k_attn, k_gemm96b
if int(os.environ.get('G96B', '1')): k_gemm96 = k_gemm96b
import importlib
hdr = open("sequential_preLN__mha_block__dense_activation_mish__prompt.s.ref").read().split("; Override launch")[0]
def merged():
    name = "k345_kernel"
    a = Asm()
    a("s_cmp_ge_u32 s2, 256")
    a(f"s_cbranch_scc1 L_{name}_end")
    if MERGE >= 2: k_attn.attn(a)
    k_gemm64.gemm64("oproj", a)
    k_gemm96.gemm96("ffn1", a)
    k_gemm64.gemm64("ffn2", a)
    a.label(f"L_{name}_end")
    a("s_endpgm")
    return name, kernel_wrap(name, a.text(), 128, 100 if TICK else 64), 163840
if MERGE >= 2:
    ks = [(k_gemm96.gemm96("qkv"), 512), (merged(), 1024)]
elif MERGE:
    ks = [(k_gemm96.gemm96("qkv"), 512), (k_attn.attn(), 1024), (merged(), 512)]
else:
    ks = [(k_gemm96.gemm96("qkv"), 512), (k_attn.attn(), 1024), (k_gemm64.gemm64("oproj"), 512), (k_gemm96.gemm96("ffn1"), 512), (k_gemm64.gemm64("ffn2"), 512)]
out = hdr
for (name, text, lds), threads in ks:
    out += f"; @launch kernel={name} grid=(256,1,1) block=({threads},1,1) lds={lds}\n"
out += '.amdgcn_target "amdgcn-amd-amdhsa--gfx950"\n'
for (name, text, lds), threads in ks:
    out += text
dst = sys.argv[1] if len(sys.argv) > 1 else "sequential_preLN__mha_block__dense_activation_mish__prompt.s"
open(dst, "w").write(out)
print("wrote", dst, len(out))
```

```python
from dsl import *

PF = int(os.environ.get("PF", "1"))
AD = 0
PRIO = os.environ.get("PRIO", "33333333333333333333333322221110")
SWP = int(os.environ.get("SWP", "1"))
OZ = int(os.environ.get("OZ", "1"))
M0 = int(os.environ.get("M0", "1"))
FB = int(os.environ.get("FB", "0"))
def attn(a=None):
    name = "k2_attn_kernel"
    MG = a is not None
    if not MG: a = Asm()
    M3 = MG and MERGE >= 3
    tk = Ticks(a, 1)
    ONES = 131072; SCR = ONES + 4608
    Q, KF, VF, P, S, O, NM = 8, [12, 16], [20, 28], [36, 44], [52, 68], 84, 100
    T0 = 116
    if not MG:
        a("s_cmp_ge_u32 s2, 256")
        a(f"s_cbranch_scc1 L_{name}_end")
    a("s_load_dwordx2 s[30:31], s[0:1], %d" % KA['ws'])
    a("s_load_dwordx2 s[44:45], s[0:1], %d" % KA['wo'])
    a("s_load_dwordx2 s[46:47], s[0:1], %d" % KA['w1'])
    a("s_load_dwordx2 s[48:49], s[0:1], %d" % KA['w2'])
    a("s_and_b32 s23, s2, 7")
    a("s_lshr_b32 s38, s2, 3")
    a("s_and_b32 s38, s38, 3")
    a("s_lshl_b32 s38, s38, 3")
    a("s_add_u32 s23, s23, s38")
    a("s_lshr_b32 s24, s2, 5")
    tk.tick()
    a("v_and_b32 v1, 63, v0")
    a("v_lshrrev_b32 v2, 6, v0")
    a("s_nop 0")
    a("v_readfirstlane_b32 s20, v2")
    a("s_nop 3")
    a("s_and_b32 s21, s20, 7")
    a("s_lshr_b32 s22, s20, 3")
    a("v_lshlrev_b32 v4, 4, v1")
    a("s_lshr_b32 s38, s20, 1")
    a("s_and_b32 s38, s38, 1")
    a("s_lshl_b32 s38, s38, 5")
    a("s_lshr_b32 s35, s20, 2")
    if AD:
        a("s_lshl_b32 s39, s35, 1")
        a("s_mul_i32 s52, s35, 4")
        a("s_add_u32 s52, s52, 8")
        a("s_lshl_b32 s52, s52, 10")
    else:
        a("s_lshl_b32 s39, s35, 3")
    a("s_add_u32 s38, s38, s39")
    a("s_lshl_b32 s38, s38, 10")
    a("s_and_b32 s39, s20, 1")
    a("s_lshl_b32 s25, s39, 16")
    a("s_add_u32 s25, s25, s38")
    a("s_lshl_b32 s26, s39, 21")
    a("s_add_u32 s26, s26, s38")
    a("s_lshl_b32 s39, s23, 16")
    a("s_add_u32 s26, s26, s39")
    a("s_lshl_b32 s27, s24, 3")
    a("s_add_u32 s27, s27, s21")
    a("s_lshl_b32 s28, s27, 10")
    a("s_add_u32 s28, s28, s39")
    a("s_waitcnt lgkmcnt(0)")
    srd(a, 4, 30, 4*MB, add=WS_KF)
    srd(a, 8, 30, 2*MB, add=WS_QF)
    srd(a, 12, 30, 2*MB, add=WS_OF)
    if not M3: a(f"buffer_load_dwordx4 {vr(Q,4)}, v4, s[8:11], s28 offen")
    srd(a, 40, 44, 512*512*2)
    a("s_lshr_b32 s51, s2, 3")
    a("s_lshl_b32 s51, s51, 4")
    a("s_add_u32 s51, s51, s20")
    a("s_lshl_b32 s51, s51, 10")
    a("s_mov_b32 s50, s51")
    def kvdma():
        for r in range(8):
            a(f"s_add_u32 m0, s25, {(r&3)*1024 + (r>>2)*4096}")
            if (r & 3) == 0: a(f"s_add_u32 s38, s26, {(r>>2)*4096}")
            a(f"buffer_load_dwordx4 v4, s[4:7], s38 offen offset:{(r&3)*1024} lds" if False else f"buffer_load_dwordx4 v4, s[4:7], s38 offen lds")
            if (r & 3) != 3: a("s_add_u32 s38, s38, 1024")
    def kvdma2(n, ls, gs):
        for r in range(n):
            a(f"s_add_u32 m0, {ls}, {r*1024}")
            a(f"s_add_u32 s38, {gs}, {r*1024}")
            a(f"buffer_load_dwordx4 v4, s[4:7], s38 offen lds")
    if AD:
        kvdma2(2, "s25", "s26")
        a("s_barrier")
        a("s_add_u32 s25, s25, s52")
        a("s_add_u32 s26, s26, s52")
        kvdma2(6, "s25", "s26")
    elif not M3:
        a("s_cmp_eq_u32 s35, 0")
        a("s_cbranch_scc0 L_attn_nodma0")
        kvdma()
        a.label("L_attn_nodma0")
    if OZ:
        a("v_and_b32 v6, 5, v0")
        a("v_cmp_eq_u32 vcc, 0, v6")
        a("v_mov_b32 v5, 0x3f80")
        a("v_cndmask_b32 v5, 0, v5, vcc")
    else:
        a("v_mov_b32 v5, 0x3f803f80")
    a("v_lshlrev_b32 v6, 2, v0")
    a(f"v_add_u32 v6, {ONES}, v6")
    a("ds_write_b32 v6, v5")
    a("ds_write_b32 v6, v5 offset:512")
    a("s_lshl_b32 s29, s22, 15")
    a("v_add_u32 v2, s29, v4")
    a("v_lshrrev_b32 v5, 5, v1")
    a("v_and_b32 v6, 15, v1")
    a("v_lshlrev_b32 v6, 3, v6")
    a("v_lshlrev_b32 v3, 7, v5")
    a("v_add_u32 v3, v3, v6")
    a("v_xor_b32 v7, 128, v3")
    a(f"v_add_u32 v7, {ONES}, v7")
    a("s_add_u32 s38, s29, 65536")
    a("v_add_u32 v3, s38, v3")
    a("v_and_b32 v6, 16, v1")
    a("v_cmp_ne_u32 vcc, 0, v6")
    a("s_nop 1")
    a("v_cndmask_b32 v3, v3, v7, vcc")
    a("v_mov_b32 v6, 4096")
    a("v_cndmask_b32 v7, v6, 0, vcc")
    a("v_mov_b32 v5, v3")
    a("v_mov_b32 v6, v2")
    a("s_mov_b32 s33, 0")
    def maxtree(dst, src, init):
        if init:
            a(f"v_max3_f32 v{dst}, v{src}, v{src+1}, v{src+2}")
            rest = list(range(src+3, src+16))
        else:
            rest = list(range(src, src+16))
        while len(rest) >= 2:
            a(f"v_max3_f32 v{dst}, v{dst}, v{rest[0]}, v{rest[1]}"); rest = rest[2:]
        if rest: a(f"v_max_f32 v{dst}, v{dst}, v{rest[0]}")
    def zero_init():
        for r in range(16): a(f"v_mov_b32 v{O+r}, 0")
        for r in range(8):
            a(f"v_mov_b32 v{P[1]+r}, 0")
            a(f"v_mov_b32 v{VF[1]+r}, 0")
    def setmax():
        a(f"v_mov_b32 v{T0+1}, v{T0}")
        a("s_nop 1")
        a(f"v_permlane32_swap_b32 v{T0}, v{T0+1}")
        a("s_nop 1")
        a(f"v_max_f32 v{T0}, v{T0}, v{T0+1}")
        for r in range(16): a(f"v_sub_f32 v{NM+r}, 0, v{T0}")
    def mainloop(first, C, tag):
        a(f"ds_read_b128 {vr(KF[0],4)}, v2")
        a(f"ds_read_b128 {vr(KF[1],4)}, v2 offset:1024")
        a("s_waitcnt lgkmcnt(1)")
        a(f"v_mfma_f32_32x32x16_bf16 {vr(S[0],16)}, {vr(KF[0],4)}, {vr(Q,4)}, {C}")
        a("s_nop 7")
        a("s_mov_b32 s32, 0")
        if PRIO: a(f"s_setprio {PRIO[0]}")
        if first: tk.tick()
        a.label(f"L_attn_loop{tag}")
        if first:
            a("s_cmp_eq_u32 s32, 1")
            a("s_cbranch_scc0 L_attn_nosync")
            tk.tick()
            a("s_waitcnt vmcnt(0)")
            a("s_barrier")
            tk.tick()
            a.label("L_attn_nosync")
            if PF:
                a("s_cmp_eq_u32 s32, 0")
                a("s_cbranch_scc1 L_attn_nopf")
                a("s_cmp_eq_u32 s32, 2")
                a("s_cselect_b32 s40, s46, s40")
                a("s_cselect_b32 s41, s47, s41")
                a(f"s_cselect_b32 s42, {512*1376*2}, s42")
                a("s_cselect_b32 s50, s51, s50")
                a("s_cmp_eq_u32 s32, 5")
                a("s_cselect_b32 s40, s48, s40")
                a("s_cselect_b32 s41, s49, s41")
                a("s_cselect_b32 s50, s51, s50")
                a("buffer_load_dwordx4 v[124:127], v4, s[40:43], s50 offen")
                a("s_add_u32 s50, s50, 0x80000")
                a.label("L_attn_nopf")
        def setprio(half):
            if not PRIO: return
            for it in range(8):
                k = 4*it + half
                if k == 0 or PRIO[k] == PRIO[k-1]: continue
                a(f"s_cmp_eq_u32 s32, {it}")
                a(f"s_cbranch_scc0 L_attn_p{tag}_{k}")
                a(f"s_setprio {PRIO[k]}")
                a.label(f"L_attn_p{tag}_{k}")
        if PRIO: a(f"s_setprio {PRIO[0]}")  if False else None
        for u in range(4):
            p = u & 1
            setprio(u)
            a("s_waitcnt lgkmcnt(0)")
            a(f"v_mfma_f32_32x32x16_bf16 {vr(S[p^1],16)}, {vr(KF[p^1],4)}, {vr(Q,4)}, {C}")
            a(f"ds_read_b128 {vr(KF[p],4)}, v2 offset:{(u+2)*1024}")
            for r in range(4):
                a(f"ds_read_b64_tr_b16 {vr(VF[p]+2*r,2)}, v3 offset:{u*1024 + r*256}")
            s = S[p]
            for i in range(8):
                a(f"v_exp_f32 v{s+2*i}, v{s+2*i}")
                a(f"v_exp_f32 v{s+2*i+1}, v{s+2*i+1}")
                if i > 0: a(f"v_cvt_pk_bf16_f32 v{P[p]+i-1}, v{s+2*i-2}, v{s+2*i-1}")
                if i == 2: a(f"v_mfma_f32_32x32x16_bf16 {vr(O,16)}, {vr(VF[p^1],4)}, {vr(P[p^1],4)}, {vr(O,16)}")
                if i == 5: a(f"v_mfma_f32_32x32x16_bf16 {vr(O,16)}, {vr(VF[p^1]+4,4)}, {vr(P[p^1]+4,4)}, {vr(O,16)}")
            a("s_nop 0")
            a(f"v_cvt_pk_bf16_f32 v{P[p]+7}, v{s+14}, v{s+15}")
        a("v_add_u32 v2, 4096, v2")
        a("v_add_u32 v3, v3, v7")
        a("s_add_u32 s32, s32, 1")
        a("s_cmp_lt_u32 s32, 8")
        a(f"s_cbranch_scc1 L_attn_loop{tag}")
        a("s_waitcnt lgkmcnt(0)")
        a(f"v_mfma_f32_32x32x16_bf16 {vr(O,16)}, {vr(VF[1],4)}, {vr(P[1],4)}, {vr(O,16)}")
        a(f"v_mfma_f32_32x32x16_bf16 {vr(O,16)}, {vr(VF[1]+4,4)}, {vr(P[1]+4,4)}, {vr(O,16)}")
        a("s_nop 15")
        a("s_nop 3")
    if M0:
        a(f"v_mov_b32 v{T0}, 0")
        zero_init()
    if M3:
        cnt_srd(a, 30)
        a("s_cmp_eq_u32 s20, 0")
        a("s_cbranch_scc0 L_wt_c1")
        a("v_lshlrev_b32 v52, 5, v1")
        a("v_add_u32 v52, s23, v52")
        a("v_mul_u32_u24 v52, 43, v52")
        a("v_lshrrev_b32 v52, 8, v52")
        a("v_lshlrev_b32 v52, 7, v52")
        a("s_movk_i32 s56, 6144")
        a("s_mov_b32 s57, 0")
        a("s_mov_b64 exec, 7")
        a.label("L_spin_c1")
        a("buffer_load_dword v53, v52, s[52:55], s56 offen sc1")
        a("s_add_u32 s57, s57, 1")
        a("s_waitcnt vmcnt(0)")
        a("v_cmp_gt_u32 vcc, 16, v53")
        a("s_cmp_ge_u32 s57, 40000")
        a("s_cbranch_scc1 L_spun_c1")
        a("s_cmp_eq_u64 vcc, 0")
        a("s_cbranch_scc0 L_spin_c1")
        a.label("L_spun_c1")
        a("s_mov_b64 exec, -1")
        a.label("L_wt_c1")
        a("s_barrier")
        a(f"buffer_load_dwordx4 {vr(Q,4)}, v4, s[8:11], s28 offen")
        a("s_cmp_eq_u32 s35, 0")
        a("s_cbranch_scc0 L_attn_nodma0")
        kvdma()
        a.label("L_attn_nodma0")
    tk.tick()
    a("s_waitcnt vmcnt(0) lgkmcnt(0)")
    a("s_barrier")
    tk.tick()
    a("s_cmp_eq_u32 s35, 0")
    a("s_cbranch_scc1 L_attn_nodma1")
    kvdma()
    a.label("L_attn_nodma1")
    if M0:
        mainloop(True, "0", "")
    else:
        a(f"ds_read_b128 {vr(KF[0],4)}, v2")
        a("s_waitcnt lgkmcnt(0)")
        a(f"v_mfma_f32_32x32x16_bf16 {vr(S[0],16)}, {vr(KF[0],4)}, {vr(Q,4)}, 0")
        a("s_nop 15")
        a("s_nop 3")
        maxtree(T0, S[0], True)
        setmax()
        zero_init()
        mainloop(True, vr(NM,16), "")
    tk.tick()
    a(f"v_mul_f32 v{T0+1}, 0, v{O}")
    a(f"v_mul_f32 v{T0+2}, 0, v{O+1}")
    a("s_mov_b32 s34, 0x5f800000")
    a(f"v_cmp_nle_f32 s[36:37], v{O+8}, s34")
    a("s_mov_b32 s34, 0x21800000")
    a(f"v_cmp_nge_f32 s[38:39], v{O+8}, s34")
    for r in range(2, 8):
        a(f"v_fma_f32 v{T0+1+(r&1)}, v{O+r}, 0, v{T0+1+(r&1)}")
    a(f"v_add_f32 v{T0+1}, v{T0+1}, v{T0+2}")
    a("s_or_b64 s[36:37], s[36:37], s[38:39]")
    a(f"v_cmp_u_f32 vcc, v{T0+1}, v{T0+1}")
    a("s_or_b64 s[36:37], s[36:37], vcc")
    a("s_cmp_eq_u64 s[36:37], 0")
    if not FB: a("s_cbranch_scc1 L_attn_done")
    a("s_waitcnt vmcnt(0)")
    a("v_mov_b32 v2, v6")
    a(f"v_mov_b32 v{T0}, 0xff800000")
    a("s_mov_b32 s32, 0")
    a.label("L_attn_maxloop")
    a(f"ds_read_b128 {vr(KF[0],4)}, v2")
    a("s_waitcnt lgkmcnt(0)")
    a(f"v_mfma_f32_32x32x16_bf16 {vr(S[0],16)}, {vr(KF[0],4)}, {vr(Q,4)}, 0")
    a("s_nop 15")
    a("s_nop 3")
    maxtree(T0, S[0], False)
    a("v_add_u32 v2, 1024, v2")
    a("s_add_u32 s32, s32, 1")
    a("s_cmp_lt_u32 s32, 32")
    a("s_cbranch_scc1 L_attn_maxloop")
    setmax()
    zero_init()
    a("v_mov_b32 v2, v6")
    a("v_mov_b32 v3, v5")
    mainloop(False, vr(NM,16), "2")
    a.label("L_attn_done")
    a("s_mul_i32 s38, s21, 2560")
    a(f"s_add_u32 s38, s38, {SCR}")
    a("v_add_u32 v2, s38, v4")
    a("v_lshlrev_b32 v3, 3, v1")
    a("v_add_u32 v3, s38, v3")
    a(f"v_mov_b32 v{O+9}, v{T0}")
    a("s_lshl_b32 s38, s27, 5")
    a("s_add_u32 s38, s38, s23")
    a("s_lshl_b32 s38, s38, 10")
    a("s_mov_b32 s33, s22")
    a("s_cmp_eq_u32 s22, 0")
    a("s_cselect_b64 exec, 0, -1")
    a(f"ds_write_b128 v2, {vr(O,4)}")
    a(f"ds_write_b128 v2, {vr(O+4,4)} offset:1024")
    a(f"ds_write_b64 v3, {vr(O+8,2)} offset:2048")
    a("s_waitcnt lgkmcnt(0)")
    a("s_cbranch_scc1 L_attn_comb")
    a("s_barrier")
    a(f"s_branch L_attn_fin")
    a.label("L_attn_comb")
    a(f"ds_read_b64 {vr(S[0]+8,2)}, v3 offset:2048")
    a(f"ds_read_b128 {vr(S[0],4)}, v2")
    a(f"ds_read_b128 {vr(S[0]+4,4)}, v2 offset:1024")
    a("s_waitcnt lgkmcnt(2)")
    m1 = S[0] + 9
    a(f"v_max_f32 v{T0+1}, v{T0}, v{m1}")
    a(f"v_sub_f32 v{T0+2}, v{T0}, v{T0+1}")
    a(f"v_sub_f32 v{T0+3}, v{m1}, v{T0+1}")
    a(f"v_exp_f32 v{T0+2}, v{T0+2}")
    a(f"v_exp_f32 v{T0+3}, v{T0+3}")
    a("s_nop 0")
    a(f"v_mul_f32 v{O+8}, v{O+8}, v{T0+2}")
    a(f"v_fma_f32 v{O+8}, v{S[0]+8}, v{T0+3}, v{O+8}")
    a(f"v_rcp_f32 v{T0+4}, v{O+8}")
    a("s_nop 0")
    a(f"v_mul_f32 v{T0+2}, v{T0+2}, v{T0+4}")
    a(f"v_mul_f32 v{T0+3}, v{T0+3}, v{T0+4}")
    for r in range(8): a(f"v_mul_f32 v{O+r}, v{O+r}, v{T0+2}")
    a("s_waitcnt lgkmcnt(0)")
    for r in range(8):
        a(f"v_fma_f32 v{O+r}, v{S[0]+r}, v{T0+3}, v{O+r}")
    for j in range(4): a(f"v_cvt_pk_bf16_f32 v{P[0]+j}, v{O+2*j}, v{O+2*j+1}")
    a(f"buffer_store_dwordx4 {vr(P[0],4)}, v4, s[12:15], s38 offen" + STF)
    a("s_cmp_eq_u32 s33, 2")
    a("s_cbranch_scc1 L_attn_fin")
    a("s_mov_b32 s33, 2")
    a("s_mov_b64 exec, -1")
    a("s_barrier")
    a("s_branch L_attn_comb")
    a.label("L_attn_fin")
    tk.tick()
    if MG:
        a("s_cmp_eq_u32 s22, 0")
        a("s_cbranch_scc1 L_attn_cont")
        tk.z = 2
        n = tk.n
        tk.tick(); tk.dump(20)
        a("s_endpgm")
        a.label("L_attn_cont")
        tk.n = n
        cnt_srd(a, 30)
        sig(a, "c2", 24, 4096)
        tk.z = 8
        tk.tick(); tk.dump(20)
        return
    a("s_waitcnt vmcnt(0)")
    tk.tick()
    tk.dump(20)
    a.label(f"L_{name}_end")
    a("s_endpgm")
    return name, kernel_wrap(name, a.text(), 128, 100 if TICK else 64), SCR + 8*2560
```

```python
import os
from dsl import *

def gemm96(mode, a=None):
    qkv = mode == "qkv"
    name = "k1_qkv_kernel" if qkv else "k4_ffn1_kernel"
    NW = 1536 if qkv else 1376
    pitchW = NW * 2
    MG = a is not None
    if not MG: a = Asm()
    M3 = MG and qkv
    if M3:
        MG = False
        pos0 = len(a.lines)
        a("v_lshrrev_b32 v2, 6, v0")
        a("s_nop 0")
        a("v_readfirstlane_b32 s20, v2")
        a("s_nop 3")
        a("s_cmp_ge_u32 s20, 8")
        a("s_cbranch_scc1 L_helper")
    tk = Ticks(a, 0 if qkv else 3)
    if MG: tk.z = 36
    SL = 28672; NS = 4; WOFF = 16384; NCH = 8; LOOK = 3
    if not MG and not M3:
        a("s_cmp_ge_u32 s2, 256")
        a(f"s_cbranch_scc1 L_{name}_end")
    a("s_load_dwordx2 s[30:31], s[0:1], %d" % (KA['x'] if qkv else KA['ws']))
    a("s_load_dwordx2 s[32:33], s[0:1], %d" % (KA['wqkv'] if qkv else KA['w1']))
    a("s_load_dwordx2 s[34:35], s[0:1], %d" % KA['ws'])
    if not qkv: a("s_load_dwordx2 s[36:37], s[0:1], %d" % KA['b1'])
    a("s_and_b32 s3, s2, 7")
    a("s_lshr_b32 s38, s2, 3")
    a("s_lshr_b32 s23, s3, 1")
    a("s_lshl_b32 s23, s23, 2")
    a("s_and_b32 s39, s38, 3")
    a("s_add_u32 s23, s23, s39")
    a("s_and_b32 s24, s3, 1")
    a("s_lshl_b32 s24, s24, 3")
    a("s_lshr_b32 s39, s38, 2")
    a("s_add_u32 s24, s24, s39")
    if not qkv:
        a("s_cmp_ge_u32 s24, 15")
        a(f"s_cbranch_scc1 L_{name}_end")
    tk.tick()
    a("v_and_b32 v1, 63, v0")
    a("v_lshrrev_b32 v2, 6, v0")
    a("v_lshlrev_b32 v4, 4, v1")
    a("v_readfirstlane_b32 s20, v2")
    a("v_and_b32 v2, 31, v1")
    a("v_lshrrev_b32 v3, 5, v1")
    a("s_and_b32 s21, s20, 3")
    a("s_lshr_b32 s22, s20, 2")
    a("v_mul_u32_u24 v5, 43691, v1")
    a("v_lshrrev_b32 v5, 19, v5")
    a("v_mul_u32_u24 v6, 12, v5")
    a("v_sub_u32 v6, v1, v6")
    a("v_lshlrev_b32 v6, 4, v6")
    a("s_mul_i32 s39, s24, 192")
    a("v_add_u32 v6, s39, v6")
    if not qkv:
        a(f"v_min_u32 v6, {pitchW-16}, v6")
    a("s_lshl_b32 s38, s20, 3")
    a("v_add_u32 v5, s38, v5")
    a(f"v_mul_u32_u24 v5, {pitchW}, v5")
    a("v_add_u32 v14, v5, v6")
    if qkv:
        a("s_lshl_b32 s38, s23, 7")
        a("s_lshl_b32 s39, s20, 4")
        a("s_add_u32 s38, s38, s39")
        a("v_lshrrev_b32 v5, 3, v1")
        a("v_add_u32 v5, s38, v5")
        a("v_lshlrev_b32 v5, 10, v5")
        a("v_lshrrev_b32 v6, 4, v1")
        a("v_and_b32 v7, 7, v1")
        a("v_xor_b32 v6, v6, v7")
        a("v_lshlrev_b32 v7, 4, v6")
        a("v_add_u32 v10, v5, v7")
        a("v_xor_b32 v6, 4, v6")
        a("v_lshlrev_b32 v7, 4, v6")
        a("v_add_u32 v11, v5, v7")
        a("v_add_u32 v11, 8192, v11")
    else:
        a("s_lshl_b32 s38, s23, 2")
        a("s_lshr_b32 s39, s20, 1")
        a("s_add_u32 s38, s38, s39")
        a("s_lshl_b32 s38, s38, 5")
        a("s_and_b32 s39, s20, 1")
        a("s_lshl_b32 s39, s39, 1")
        a("s_add_u32 s38, s38, s39")
        a("s_lshl_b32 s38, s38, 10")
        a("v_add_u32 v10, s38, v4")
    a("s_lshl_b32 s25, s20, 11")
    a("s_mul_i32 s26, s20, 1536")
    a(f"s_add_u32 s26, s26, {WOFF}")
    a("s_mov_b32 s46, -1")
    a("s_mov_b32 s47, 0xffff")
    a("s_waitcnt lgkmcnt(0)")
    if qkv:
        srd(a, 4, 30, 2048*1024)
        srd(a, 12, 34, 6*MB)
    else:
        srd(a, 4, 30, 2*MB, add=WS_HF)
        srd(a, 12, 34, 64*AF_KS*1024, add=WS_AF)
        srd(a, 16, 36, 1376*2)
    srd(a, 8, 32, 512*pitchW)
    issued = []
    def piece(c, p):
        slot = (c % NS) * SL
        if p < 2:
            i = p
            if qkv:
                a(f"s_add_u32 m0, s25, {slot + i*1024}")
                a(f"s_movk_i32 s38, {c*128}")
                a(f"buffer_load_dwordx4 v{10+i}, s[4:7], s38 offen lds")
            else:
                a(f"s_add_u32 m0, s25, {slot}")
                a(f"s_movk_i32 s38, {c*4096}")
                a(f"buffer_load_dwordx4 v10, s[4:7], s38 offen offset:{i*1024} lds")
        else:
            i = p - 2
            a(f"s_add_u32 m0, s26, {slot + i*768}")
            a(f"s_mov_b32 s38, {(c*64 + 4*i)*pitchW}")
            a("s_mov_b64 exec, s[46:47]")
            a(f"buffer_load_dwordx4 v14, s[8:11], s38 offen lds")
            a("s_mov_b64 exec, -1")
        issued.append(c)
    def dma(c):
        for p in range(4): piece(c, p)
    def younger(c):
        last = max(i for i, x in enumerate(issued) if x == c)
        return len(issued) - 1 - last
    pend = []
    def slot_hook(n=1):
        for _ in range(n):
            if pend: piece(*pend.pop(0))
    REP = int(os.environ.get('REP', '0'))
    if REP:
        a('s_mov_b32 s55, 0')
        a.label(f'L_{name}_rep')
        a('s_mov_b32 s46, -1')
        a('s_mov_b32 s47, 0xffff')
    if MG:
        cnt_srd(a, 34)
        for c in range(2):
            for p in (2, 3): piece(c, p)
        waitcnt(a, "c3", 23, 0, 16)
        for c in range(2):
            for p in (0, 1): piece(c, p)
    else: dma(0)
    if not qkv:
        pass
    if int(os.environ.get("OB96", "1")): a("s_barrier")
    if not MG: dma(1)
    tk.tick()
    for b in range(3):
        a(f"s_add_u32 s{27+b}, s21, {b}")
        a(f"s_cmp_ge_u32 s{27+b}, 3")
        a(f"s_cselect_b32 s38, 3, 0")
        a(f"s_sub_u32 s{27+b}, s{27+b}, s38")
    VA = 26
    if qkv:
        a("s_lshl_b32 s38, s21, 12")
        a("v_lshlrev_b32 v5, 7, v2")
        a("v_add_u32 v5, s38, v5")
        a("v_bfe_u32 v6, v2, 1, 3")
        a("v_xor_b32 v6, v6, v3")
        for s in range(4):
            a(f"v_xor_b32 v7, {2*s}, v6")
            a("v_lshlrev_b32 v7, 4, v7")
            a(f"v_add_u32 v{VA+s}, v5, v7")
            a(f"v_add_u32 v{VA+4+s}, {2*SL}, v{VA+s}")
    else:
        a("s_lshl_b32 s38, s21, 12")
        a(f"v_add_u32 v{VA}, s38, v4")
        a(f"v_add_u32 v{VA+1}, {2*SL}, v{VA}")
    a("v_and_b32 v5, 15, v1")
    a("v_lshrrev_b32 v6, 2, v5")
    a(f"v_lshlrev_b32 v7, {3 if qkv else 2}, v3")
    a("v_add_u32 v6, v6, v7")
    a("v_mul_u32_u24 v6, 192, v6")
    a("v_bfe_u32 v7, v1, 4, 1")
    a("v_lshlrev_b32 v8, 5, v7")
    a("v_add_u32 v6, v6, v8")
    a("v_and_b32 v8, 3, v5")
    a("v_lshlrev_b32 v8, 3, v8")
    a("v_add_u32 v6, v6, v8")
    for b in range(3):
        a(f"s_lshl_b32 s38, s{27+b}, 6")
        a(f"s_add_u32 s38, s38, {WOFF}")
        a(f"v_add_u32 v{20+b}, s38, v6")
        a(f"v_add_u32 v{23+b}, {2*SL}, v{20+b}")
    halfrow = 4 if qkv else 8
    SEL = 64; CSA = 68; TMP = 120
    S1 = 8; S2 = 12
    a("v_cmp_eq_u32 vcc, v5, v7")
    a("v_mov_b32 v9, 0x3f803f80")
    for r in range(4): a(f"v_cndmask_b32 v{SEL+r}, 0, v9, vcc")
    for r in (8, 9, 12, 13): a(f"v_mov_b32 v{r}, 0")
    for r in range(CSA, CSA+4): a(f"v_mov_b32 v{r}, 0")
    for r in range(72, 104): a(f"v_mov_b32 v{r}, 0")
    a("s_mov_b32 s45, 0xffff0000")
    AF = [40, 44]; ACC = 72
    WF = [48, 56]
    B1 = 104
    ST, CS = 0, 4096
    a("s_lshl_b32 s40, s23, 2")
    a("s_add_u32 s40, s40, s21")
    if not qkv:
        srd(a, 48, 34, 128*1024, add=WS_ST)
        a("s_lshl_b32 s38, s40, 11")
        a("v_lshlrev_b32 v5, 9, v3")
        a("v_lshlrev_b32 v6, 4, v2")
        a("v_add_u32 v5, v5, v6")
        for j in range(2):
            a(f"buffer_load_dwordx4 v[{120+4*j}:{123+4*j}], v5, s[48:51], s38 offen offset:{1024*j}")
            issued.append("st")
    a("s_cmp_eq_u32 s22, 1")
    a(f"s_cbranch_scc1 L_{name}_roleB")
    issued0 = list(issued)

    def prefetch(role):
        L = f"L_{name}_pf{role}"
        a("s_sub_u32 s38, s20, 2")
        a("s_cmp_lt_u32 s38, 4")
        a(f"s_cbranch_scc1 {L}w")
        a("s_and_b32 s39, s24, 7")
        a("s_lshr_b32 s38, s20, 2")
        a("s_lshl_b32 s38, s38, 2")
        a("s_xor_b32 s39, s39, s38")
        a("s_lshl_b32 s39, s39, 4")
        a("s_lshl_b32 s38, s23, 7")
        a("s_add_u32 s39, s39, s38")
        a("s_and_b32 s38, s20, 1")
        a("s_lshl_b32 s38, s38, 3")
        a("s_add_u32 s39, s39, s38")
        a("s_lshl_b32 s39, s39, 10")
        a("v_lshrrev_b32 v5, 3, v1")
        a("v_lshlrev_b32 v5, 10, v5")
        a("v_and_b32 v6, 7, v1")
        a("v_lshlrev_b32 v6, 7, v6")
        a("v_add_u32 v5, v5, v6")
        a("s_mov_b32 s42, 0xf8f8f8f8")
        a("s_mov_b32 s43, 0xf8f8f8f8")
        a("s_mov_b64 exec, s[42:43]")
        a("buffer_load_dword v127, v5, s[4:7], s39 offen")
        a(f"s_branch {L}d")
        a.label(f"{L}w")
        a("s_and_b32 s39, s23, 3")
        a("s_mul_i32 s39, s39, 80")
        a("s_mul_i32 s38, s38, 20")
        a("s_add_u32 s39, s39, s38")
        a("s_add_u32 s39, s39, 192")
        a(f"s_mul_i32 s39, s39, {pitchW}")
        a("s_mul_i32 s38, s24, 192")
        a("s_add_u32 s39, s39, s38")
        a("v_lshrrev_b32 v5, 1, v1")
        a(f"v_mul_u32_u24 v5, {pitchW}, v5")
        a("v_and_b32 v6, 1, v1")
        a("v_lshlrev_b32 v6, 7, v6")
        a("v_add_u32 v5, v5, v6")
        a("s_mov_b32 s42, -1")
        a("s_mov_b32 s43, 0xff")
        a("s_mov_b64 exec, s[42:43]")
        a("buffer_load_dword v127, v5, s[8:11], s39 offen")
        a.label(f"{L}d")
        a("s_mov_b64 exec, -1")
        issued.append("pf")
    PFX = int(os.environ.get("PFX", "0")) if qkv else 0
    def body(role):
        issued[:] = issued0
        del pend[:]
        blks = [0, 1] if role == 0 else [2]
        nb = len(blks); nrd = 1 + 2*nb
        if not qkv:
            a("s_mul_i32 s38, s24, 192")
            a("v_lshlrev_b32 v5, 3, v3")
            a("v_add_u32 v5, s38, v5")
            for k, b in enumerate(blks):
                a(f"s_lshl_b32 s38, s{27+b}, 6")
                for hq in range(4):
                    r = B1 + 8*k + 2*hq
                    a(f"buffer_load_dwordx2 v[{r}:{r+1}], v5, s[16:19], s38 offen offset:{16*hq}")
                    issued.append("b1")
        def reads(c, s, buf):
            slot = c % NS
            grp = slot // 2; off = (slot % 2) * SL
            if qkv:
                a(f"ds_read_b128 {vr(AF[buf],4)}, v{VA+4*grp+s} offset:{off}")
            else:
                a(f"ds_read_b128 {vr(AF[buf],4)}, v{VA+grp} offset:{off + s*1024}")
            for k, b in enumerate(blks):
                for hf in range(2):
                    a(f"ds_read_b64_tr_b16 {vr(WF[buf]+4*k+2*hf,2)}, v{20+3*grp+b} offset:{off + (16*s + halfrow*hf)*192}")
        def stats(reg, k):
            t = TMP + 2*(k & 1)
            a(f"v_lshlrev_b32 v{t}, 16, v{reg}")
            a(f"v_and_b32 v{t+1}, s45, v{reg}")
            a(f"v_add_f32 v{S1}, v{S1}, v{t}")
            a(f"v_fmac_f32 v{S2}, v{t}, v{t}")
            a(f"v_add_f32 v{S1+1}, v{S1+1}, v{t+1}")
            a(f"v_fmac_f32 v{S2+1}, v{t+1}, v{t+1}")
        SA = os.environ.get("SA", "02")
        first = [True]
        def compute(buf, ks):
            for k in range(nb):
                a(f"v_mfma_f32_32x32x16_bf16 {vr(ACC+16*k,16)}, {vr(WF[buf]+4*k,4)}, {vr(AF[buf],4)}, {vr(ACC+16*k,16)}")
                if k == 0:
                    slot_hook(2 if first[0] else 1); first[0] = False
            if role == 0:
                a(f"v_mfma_f32_16x16x32_bf16 {vr(CSA,4)}, {vr(WF[buf],4)}, {vr(SEL,4)}, {vr(CSA,4)}")
            if qkv and ((str(ks) in SA) == (role == 0)):
                for r in range(4): stats(AF[buf] + r, r)
        a(f"s_waitcnt vmcnt({younger(0)})")
        a("s_barrier")
        tk.tick()
        reads(0, 0, 0)
        if PFX == 1: prefetch(role)
        pend.extend((2, p) for p in range(4))
        for c in range(NCH):
            for s in range(4):
                buf = s & 1
                if s < 3:
                    reads(c, s+1, buf ^ 1)
                    a(f"s_waitcnt lgkmcnt({nrd})")
                elif c < NCH - 1:
                    a(f"s_waitcnt vmcnt({younger(c+1)})")
                    a("s_barrier")
                    if c in (1, 3, 5):
                        tk.tick()
                    assert not pend
                    if c + LOOK < NCH: pend.extend((c + LOOK, p) for p in range(4))
                    reads(c + 1, 0, buf ^ 1)
                    a(f"s_waitcnt lgkmcnt({nrd})")
                else:
                    a("s_waitcnt lgkmcnt(0)")
                compute(buf, s)
                if PFX == 2 and c == 0 and s == 2: prefetch(role)
        assert not pend
        tk.tick()
        if REP:
            a("s_cmp_eq_u32 s55, 0")
            a("s_mov_b32 s55, 1")
            a("s_barrier")
            a(f"s_cbranch_scc1 L_{name}_rep")
        if role == 0:
            a("v_and_b32 v10, 15, v1")
            a("v_lshlrev_b32 v10, 6, v10")
            a("v_lshrrev_b32 v11, 4, v1")
            a("v_lshlrev_b32 v11, 4, v11")
            a("v_add_u32 v10, v10, v11")
            a("s_lshl_b32 s39, s27, 7")
            a("v_add_u32 v10, s39, v10")
            a("s_mov_b32 s46, 0x00030003")
            a("s_mov_b32 s47, 0x00030003")
            a("s_nop 3")
            a("s_mov_b64 exec, s[46:47]")
            a(f"ds_write_b128 v10, {vr(CSA,4)} offset:{CS}")
            a("s_mov_b64 exec, -1")
        def statcalc():
            a("v_mul_f32 v22, 0x3b000000, v8")
            a("v_mul_f32 v23, 0x3b000000, v9")
            a("v_fma_f32 v23, -v22, v22, v23")
            a("v_max_f32 v23, 0, v23")
            a("v_add_f32 v23, 0x3727c5ac, v23")
            a("v_rsq_f32 v23, v23")
            a("s_nop 0")
            a("v_mul_f32 v22, v22, v23")
        def hcomb():
            a("v_mov_b32 v12, v8")
            a("v_mov_b32 v13, v9")
            a("s_nop 1")
            a("v_permlane32_swap_b32 v8, v12")
            a("v_permlane32_swap_b32 v9, v13")
            a("s_nop 1")
            a("v_add_f32 v8, v8, v12")
            a("v_add_f32 v9, v9, v13")
        a("s_lshl_b32 s38, s21, 8")
        a("v_lshlrev_b32 v7, 3, v2")
        a("v_add_u32 v7, s38, v7")
        if qkv:
            a("v_add_f32 v8, v8, v9")
            a("v_add_f32 v9, v12, v13")
            hcomb()
            a(f"ds_write_b64 v7, v[8:9] offset:{ST + role*1024}")
        else:
            a("v_add_f32 v8, v120, v122")
            a("v_add_f32 v9, v121, v123")
            a("v_add_f32 v12, v124, v126")
            a("v_add_f32 v13, v125, v127")
            a("v_add_f32 v8, v8, v12")
            a("v_add_f32 v9, v9, v13")
            hcomb()
            statcalc()
        a("v_lshlrev_b32 v10, 4, v3")
        a("v_lshlrev_b32 v15, 5, v2")
        a("v_add_u32 v15, v15, v10")
        for k, b in enumerate(blks):
            a(f"s_lshl_b32 s38, s{27+b}, 7")
            a(f"v_add_u32 v{16+k}, s38, v10")
        a("s_waitcnt lgkmcnt(0)")
        a("s_barrier")
        CB = [120, 26]
        hbs = [(k, hb) for k in range(nb) for hb in range(2)]
        def csread(i):
            k, hb = hbs[i]
            for q in range(2):
                a(f"ds_read_b128 {vr(CB[i & 1]+4*q,4)}, v{16+k} offset:{CS + (2*hb+q)*32}")
        if qkv: a(f"ds_read_b64 v[12:13], v7 offset:{ST + (1-role)*1024}")
        csread(0); csread(1)
        if qkv:
            a(f"s_waitcnt lgkmcnt(4)")
            a("v_add_f32 v8, v8, v12")
            a("v_add_f32 v9, v9, v13")
            statcalc()
        tk.tick()
        PX = 40
        nst = 0
        for i, (k, hb) in enumerate(hbs):
            b = blks[k]
            if True:
                A0 = ACC + 16*k + 8*hb
                C0 = CB[i & 1]
                PK = PX + 4*(nst & 1); nst += 1
                a(f"s_waitcnt lgkmcnt({2 if i + 1 < len(hbs) else 0})")
                a("s_mul_i32 s41, s24, 6")
                a(f"s_lshl_b32 s38, s{27+b}, 1")
                a(f"s_add_u32 s41, s41, s38")
                if hb: a("s_add_u32 s41, s41, 1")
                if qkv:
                    a("s_lshl_b32 s42, s41, 16")
                    a("s_lshl_b32 s43, s40, 10")
                    a("s_add_u32 s42, s42, s43")
                    a("s_cmp_lt_u32 s41, 32")
                    a("s_cselect_b32 s44, 0x3eb8aa3b, 1.0")
                    a("v_mul_f32 v11, s44, v23")
                    a("v_mul_f32 v12, s44, v22")
                    a("s_cmp_ge_u32 s41, 64")
                    a("s_cselect_b64 vcc, -1, 0")
                    a("v_cndmask_b32 v13, v4, v15, vcc")
                    for j in range(8):
                        a(f"v_mul_f32 v{C0+j}, v12, v{C0+j}")
                    for j in range(8):
                        a(f"v_fma_f32 v{A0+j}, v11, v{A0+j}, -v{C0+j}")
                    if i + 2 < len(hbs): csread(i + 2)
                    for j in range(4):
                        a(f"v_cvt_pk_bf16_f32 v{PK+j}, v{A0+2*j}, v{A0+2*j+1}")
                    a(f"buffer_store_dwordx4 {vr(PK,4)}, v13, s[12:15], s42 offen" + STF)
                else:
                    a(f"s_mul_i32 s42, s40, {AF_KS}")
                    a("s_add_u32 s42, s42, s41")
                    a("s_lshl_b32 s42, s42, 10")
                    T = 48
                    U = 56
                    for j in range(8):
                        bsrc = B1 + 8*k + 4*hb + (j >> 1)
                        if j & 1: a(f"v_and_b32 v{T+j}, s45, v{bsrc}")
                        else:     a(f"v_lshlrev_b32 v{T+j}, 16, v{bsrc}")
                    for j in range(8):
                        a(f"v_fma_f32 v{T+j}, -v22, v{C0+j}, v{T+j}")
                    if i + 2 < len(hbs): csread(i + 2)
                    for j in range(8):
                        a(f"v_fma_f32 v{A0+j}, v23, v{A0+j}, v{T+j}")
                    for j in range(8):
                        a(f"v_mul_f32 v{T+j}, 0x3fb8aa3b, v{A0+j}")
                    for j in range(8):
                        a(f"v_exp_f32 v{T+j}, v{T+j}")
                    for j in range(8):
                        a(f"v_add_f32 v{U+j}, 2.0, v{T+j}")
                    for j in range(8):
                        a(f"v_fma_f32 v{U+j}, v{T+j}, v{U+j}, 2.0")
                    for j in range(8):
                        a(f"v_rcp_f32 v{U+j}, v{U+j}")
                    for j in range(8):
                        a(f"v_mul_f32 v{U+j}, v{A0+j}, v{U+j}")
                    for j in range(8):
                        a(f"v_fma_f32 v{A0+j}, -2.0, v{U+j}, v{A0+j}")
                    for j in range(4):
                        a(f"v_cvt_pk_bf16_f32 v{PK+j}, v{A0+2*j}, v{A0+2*j+1}")
                    a(f"buffer_store_dwordx4 {vr(PK,4)}, v4, s[12:15], s42 offen" + STF)
        tk.tick()
    n0 = tk.n
    body(0)
    n1 = tk.n
    pos1 = len(a.lines)
    a(f"s_branch L_{name}_join")
    a.label(f"L_{name}_roleB")
    tk.n = n0
    body(1)
    tk.n = n1
    pos2 = len(a.lines)
    a.label(f"L_{name}_join")
    if MG: sig(a, "c4", 23, 2048)
    if M3:
        cnt_srd(a, 34)
        sig(a, "c1", 24, 6144)
        nbar = lambda lo, hi: sum(1 for l in a.lines[lo:hi] if l.strip() == "s_barrier")
        assert nbar(pos1, pos2) * 2 == nbar(pos0, pos2) - (1 if int(os.environ.get("OB96", "1")) else 0)
        NB = nbar(pos0, pos1) + nbar(pos2, len(a.lines))
        if TICK:
            tk.tick(); tk.dump(20)
        a("s_branch L_attn_start")
        a.label("L_helper")
        a("s_load_dwordx2 s[30:31], s[0:1], %d" % KA['dbg'])
        a("s_load_dwordx2 s[34:35], s[0:1], %d" % KA['ws'])
        a("v_and_b32 v1, 63, v0")
        a("v_lshlrev_b32 v5, 7, v1")
        a("v_mov_b32 v6, 0")
        a("v_mov_b32 v7, 1")
        a("v_mov_b32 v8, 0")
        a("s_waitcnt lgkmcnt(0)")
        srd(a, 4, 30, 256)
        cnt_srd(a, 34)
        a("s_lshl_b32 s21, s2, 5")
        a("s_add_u32 s21, s21, s20")
        a("s_cmp_eq_u32 s21, 8")
        a("s_cbranch_scc0 L_hp_z")
        a("buffer_store_dword v6, v5, s[52:55], 0 offen sc1")
        a.label("L_hp_z")
        F0, F1, F2 = 3, 5, NB - 2
        for i in range(NB):
            if i == F0:
                a("s_cmp_eq_u32 s21, 8")
                a("s_cbranch_scc0 L_hp_f")
                a("s_waitcnt vmcnt(0)")
                a("s_mov_b64 exec, 1")
                a("buffer_store_dword v7, v6, s[4:7], 0 offen sc1")
                a("s_mov_b64 exec, -1")
                a.label("L_hp_f")
            if i == F1:
                a("s_cmp_eq_u32 s20, 8")
                a("s_cbranch_scc0 L_hp_l")
                a("buffer_load_dword v8, v6, s[4:7], 0 offen sc1")
                a.label("L_hp_l")
            if i == F2:
                a("s_cmp_eq_u32 s20, 8")
                a("s_cbranch_scc0 L_hp_c")
                a("s_mov_b32 s57, 0")
                a.label("L_hp_spin")
                a("s_waitcnt vmcnt(0)")
                a("v_readfirstlane_b32 s38, v8")
                a("s_add_u32 s57, s57, 1")
                a("s_cmp_ge_u32 s57, 40000")
                a("s_cbranch_scc1 L_hp_c")
                a("s_cmp_eq_u32 s38, 1")
                a("s_cbranch_scc1 L_hp_c")
                a("buffer_load_dword v8, v6, s[4:7], 0 offen sc1")
                a("s_branch L_hp_spin")
                a.label("L_hp_c")
            a("s_barrier")
        a.label("L_attn_start")
        return
    if qkv and MERGE:
        a("s_cmp_eq_u32 s2, 0")
        a(f"s_cbranch_scc0 L_{name}_nz")
        a("s_cmp_eq_u32 s20, 0")
        a(f"s_cbranch_scc0 L_{name}_nz")
        cnt_srd(a, 34)
        a("v_lshlrev_b32 v5, 7, v1")
        a("v_mov_b32 v6, 0")
        a("buffer_store_dword v6, v5, s[52:55], 0 offen" + STF)
        a.label(f"L_{name}_nz")
    if TICK: a("s_waitcnt vmcnt(0)")
    tk.tick()
    tk.dump(20)
    a.label(f"L_{name}_end")
    if MG: return
    a("s_endpgm")
    return name, kernel_wrap(name, a.text(), 128, 100 if TICK else 64), NS * SL
```

```python
import sys
from dsl import *
import k_gemm96, k_gemm64, k_attn, k_gemm96b
if int(os.environ.get('G96B', '1')): k_gemm96 = k_gemm96b
import importlib
hdr = open("sequential_preLN__mha_block__dense_activation_mish__prompt.s.ref").read().split("; Override launch")[0]
def merged():
    name = "kall_kernel" if MERGE >= 3 else "k345_kernel"
    a = Asm()
    a("s_cmp_ge_u32 s2, 256")
    a(f"s_cbranch_scc1 L_{name}_end")
    if MERGE >= 3: k_gemm96.gemm96("qkv", a)
    if MERGE >= 2: k_attn.attn(a)
    k_gemm64.gemm64("oproj", a)
    k_gemm96.gemm96("ffn1", a)
    k_gemm64.gemm64("ffn2", a)
    a.label(f"L_{name}_end")
    a("s_endpgm")
    return name, kernel_wrap(name, a.text(), 128, 100 if TICK else 64), 163840
if MERGE >= 3:
    ks = [(merged(), 1024)]
elif MERGE >= 2:
    ks = [(k_gemm96.gemm96("qkv"), 512), (merged(), 1024)]
elif MERGE:
    ks = [(k_gemm96.gemm96("qkv"), 512), (k_attn.attn(), 1024), (merged(), 512)]
else:
    ks = [(k_gemm96.gemm96("qkv"), 512), (k_attn.attn(), 1024), (k_gemm64.gemm64("oproj"), 512), (k_gemm96.gemm96("ffn1"), 512), (k_gemm64.gemm64("ffn2"), 512)]
out = hdr
for (name, text, lds), threads in ks:
    out += f"; @launch kernel={name} grid=(256,1,1) block=({threads},1,1) lds={lds}\n"
out += '.amdgcn_target "amdgcn-amd-amdhsa--gfx950"\n'
for (name, text, lds), threads in ks:
    out += text
dst = sys.argv[1] if len(sys.argv) > 1 else "sequential_preLN__mha_block__dense_activation_mish__prompt.s"
open(dst, "w").write(out)
print("wrote", dst, len(out))
```

```python
import os
class Asm:
    def __init__(self):
        self.lines = []
        self.nlabel = 0
    def __call__(self, s):
        for l in s.strip("\n").split("\n"):
            self.lines.append("  " + l.strip())
    def label(self, name):
        self.lines.append(name + ":")
    def newlabel(self, base):
        self.nlabel += 1
        return f"{base}_{self.nlabel}"
    def comment(self, s):
        self.lines.append("  ; " + s)
    def text(self):
        return "\n".join(self.lines) + "\n"

def vr(a, n):
    return f"v[{a}:{a+n-1}]" if n > 1 else f"v{a}"
def sr(a, n):
    return f"s[{a}:{a+n-1}]" if n > 1 else f"s{a}"

def kernel_wrap(name, body, nvgpr, nsgpr=100):
    nv = (nvgpr + 7) // 8 * 8
    acc = (nvgpr + 3) // 4 * 4
    return f""".text
.globl {name}
.p2align 8
.type {name},@function
{name}:
{body}
.section .rodata,"a"
.p2align 6
.amdhsa_kernel {name}
  .amdhsa_next_free_vgpr {nvgpr}
  .amdhsa_next_free_sgpr {nsgpr}
  .amdhsa_accum_offset {acc}
  .amdhsa_group_segment_fixed_size 0
  .amdhsa_kernarg_size 80
  .amdhsa_user_sgpr_count 2
  .amdhsa_user_sgpr_kernarg_segment_ptr 1
  .amdhsa_system_sgpr_workgroup_id_x 1
.end_amdhsa_kernel
"""

KA = dict(x=0, wqkv=8, wo=16, bx=24, w1=32, b1=40, w2=48, out=56, dbg=64, ws=72)
MB = 1 << 20
WS_QF, WS_KF, WS_VV, WS_OF, WS_HF, WS_AF = 0, 2*MB, 4*MB, 6*MB, 8*MB, 10*MB
WS_ST = 16*MB
MERGE = int(os.environ.get('MERGE', '3'))
KS3 = int(os.environ.get('KS3', '1'))
AF_KS = 90

def srd(a, dst, ptr, nbytes, add=0):
    if add:
        a(f"s_add_u32 s{dst}, s{ptr}, {add}")
        a(f"s_addc_u32 s{dst+1}, s{ptr+1}, 0")
    else:
        a(f"s_mov_b32 s{dst}, s{ptr}")
        a(f"s_mov_b32 s{dst+1}, s{ptr+1}")
    a(f"s_mov_b32 s{dst+2}, {nbytes}")
    a(f"s_mov_b32 s{dst+3}, 0x00020000")

import os
TICK = int(os.environ.get("TICK", "0"))
class Ticks:
    def __init__(self, a, kid):
        self.a, self.kid, self.n, self.z = a, kid, 0, 2
    def tick(self):
        if not TICK: return
        i = self.n; self.n += 1
        assert i < 16
        self.a(f"s_memtime s[{64+2*i}:{65+2*i}]")
        if i == 0: self.a("s_memrealtime s[60:61]")
    def dump(self, wave_sgpr):
        if not TICK: return
        a = self.a
        a("s_memrealtime s[58:59]")
        a("s_load_dwordx2 s[96:97], s[0:1], %d" % KA['ws'])
        a("s_waitcnt lgkmcnt(0)")
        a(f"s_add_u32 s96, s96, {64*MB}")
        a("s_addc_u32 s97, s97, 0")
        a(f"s_mov_b32 s98, {16*MB}")
        a("s_mov_b32 s99, 0x00020000")
        a(f"s_add_u32 s62, s2, {self.kid*256}")
        a("s_lshl_b32 s62, s62, 4")
        a(f"s_add_u32 s62, s62, s{wave_sgpr}")
        a("s_lshl_b32 s62, s62, 7")
        z, d = self.z, self.z + 1
        a(f"v_mov_b32 v{z}, 0")
        a(f"v_mov_b32 v{d}, s60")
        a(f"buffer_store_dword v{d}, v{z}, s[96:99], s62 offen offset:120")
        a(f"v_mov_b32 v{d}, s58")
        a(f"buffer_store_dword v{d}, v{z}, s[96:99], s62 offen offset:124")
        for i in range(self.n):
            a(f"v_mov_b32 v{d}, s{64+2*i}")
            a(f"buffer_store_dword v{d}, v{z}, s[96:99], s62 offen offset:{4*i}")

STF = os.environ.get("STF", " sc1")

SLP = int(os.environ.get('SLP', '0'))
WS_CNT = 17*MB
def cnt_srd(a, wsptr):
    srd(a, 52, wsptr, 8192, add=WS_CNT)
def sig(a, tag, idx_sgpr, base):
    a("s_waitcnt vmcnt(0)")
    a("s_barrier")
    a("s_cmp_eq_u32 s20, 0")
    a(f"s_cbranch_scc0 L_sig_{tag}")
    a(f"s_lshl_b32 s56, s{idx_sgpr}, 7")
    a(f"s_add_u32 s56, s56, {base}")
    a("v_mov_b32 v5, 0")
    a("v_mov_b32 v6, 1")
    a("s_mov_b64 exec, 1")
    a("buffer_atomic_add v6, v5, s[52:55], s56 offen sc1")
    a("s_mov_b64 exec, -1")
    a.label(f"L_sig_{tag}")
PP = int(os.environ.get('PP', '0'))
PPS = int(os.environ.get('PPS', '6'))
def waitcnt(a, tag, idx_sgpr, base, target, preg=6):
    if not PP: preg = 6
    a("s_cmp_eq_u32 s20, 0")
    a(f"s_cbranch_scc0 L_wt_{tag}")
    a(f"s_lshl_b32 s56, s{idx_sgpr}, 7")
    a(f"s_add_u32 s56, s56, {base}")
    a("v_mov_b32 v5, 0")
    a("s_mov_b32 s57, 0")
    ld = f"buffer_load_dword v{preg}, v5, s[52:55], s56 offen sc1"
    if PP:
        for _ in range(2):
            a(ld)
            a(f"s_sleep {PPS}")
    a.label(f"L_spin_{tag}")
    if SLP: a(f"s_sleep {SLP}")
    a(ld)
    a("s_add_u32 s57, s57, 1")
    a(f"s_waitcnt vmcnt({2 if PP else 0})")
    a(f"v_readfirstlane_b32 s38, v{preg}")
    a("s_cmp_ge_u32 s57, 40000")
    a(f"s_cbranch_scc1 L_wt_{tag}")
    a(f"s_cmp_lt_u32 s38, {target}")
    a(f"s_cbranch_scc1 L_spin_{tag}")
    a.label(f"L_wt_{tag}")
    a("s_barrier")
```

```python
from dsl import *

PF = int(os.environ.get("PF", "1"))
AD = 0
PRIO = os.environ.get("PRIO", "33333333333333333333333322221110")
SWP = int(os.environ.get("SWP", "1"))
OZ = int(os.environ.get("OZ", "1"))
M0 = int(os.environ.get("M0", "1"))
FB = int(os.environ.get("FB", "0"))
def attn(a=None):
    name = "k2_attn_kernel"
    MG = a is not None
    if not MG: a = Asm()
    M3 = MG and MERGE >= 3
    tk = Ticks(a, 1)
    ONES = 131072; SCR = ONES + 4608
    Q, KF, VF, P, S, O, NM = 8, [12, 16], [20, 28], [36, 44], [52, 68], 84, 100
    T0 = 116
    if not MG:
        a("s_cmp_ge_u32 s2, 256")
        a(f"s_cbranch_scc1 L_{name}_end")
    a("s_load_dwordx2 s[30:31], s[0:1], %d" % KA['ws'])
    a("s_load_dwordx2 s[44:45], s[0:1], %d" % KA['wo'])
    a("s_load_dwordx2 s[46:47], s[0:1], %d" % KA['w1'])
    a("s_load_dwordx2 s[48:49], s[0:1], %d" % KA['w2'])
    a("s_and_b32 s23, s2, 7")
    a("s_lshr_b32 s38, s2, 3")
    a("s_and_b32 s38, s38, 3")
    a("s_lshl_b32 s38, s38, 3")
    a("s_add_u32 s23, s23, s38")
    a("s_lshr_b32 s24, s2, 5")
    tk.tick()
    a("v_and_b32 v1, 63, v0")
    a("v_lshrrev_b32 v2, 6, v0")
    a("s_nop 0")
    a("v_readfirstlane_b32 s20, v2")
    a("s_nop 3")
    a("s_and_b32 s21, s20, 7")
    a("s_lshr_b32 s22, s20, 3")
    a("v_lshlrev_b32 v4, 4, v1")
    a("s_lshr_b32 s38, s20, 1")
    a("s_and_b32 s38, s38, 1")
    a("s_lshl_b32 s38, s38, 5")
    a("s_lshr_b32 s35, s20, 2")
    if AD:
        a("s_lshl_b32 s39, s35, 1")
        a("s_mul_i32 s52, s35, 4")
        a("s_add_u32 s52, s52, 8")
        a("s_lshl_b32 s52, s52, 10")
    else:
        a("s_lshl_b32 s39, s35, 3")
    a("s_add_u32 s38, s38, s39")
    a("s_lshl_b32 s38, s38, 10")
    a("s_and_b32 s39, s20, 1")
    a("s_lshl_b32 s25, s39, 16")
    a("s_add_u32 s25, s25, s38")
    a("s_lshl_b32 s26, s39, 21")
    a("s_add_u32 s26, s26, s38")
    a("s_lshl_b32 s39, s23, 16")
    a("s_add_u32 s26, s26, s39")
    a("s_lshl_b32 s27, s24, 3")
    a("s_add_u32 s27, s27, s21")
    a("s_lshl_b32 s28, s27, 10")
    a("s_add_u32 s28, s28, s39")
    a("s_waitcnt lgkmcnt(0)")
    srd(a, 4, 30, 4*MB, add=WS_KF)
    srd(a, 8, 30, 2*MB, add=WS_QF)
    srd(a, 12, 30, 2*MB, add=WS_OF)
    if not M3: a(f"buffer_load_dwordx4 {vr(Q,4)}, v4, s[8:11], s28 offen")
    srd(a, 40, 44, 512*512*2)
    a("s_lshr_b32 s51, s2, 3")
    a("s_lshl_b32 s51, s51, 4")
    a("s_add_u32 s51, s51, s20")
    a("s_lshl_b32 s51, s51, 10")
    a("s_mov_b32 s50, s51")
    def kvdma():
        for r in range(8):
            a(f"s_add_u32 m0, s25, {(r&3)*1024 + (r>>2)*4096}")
            if (r & 3) == 0: a(f"s_add_u32 s38, s26, {(r>>2)*4096}")
            a(f"buffer_load_dwordx4 v4, s[4:7], s38 offen offset:{(r&3)*1024} lds" if False else f"buffer_load_dwordx4 v4, s[4:7], s38 offen lds")
            if (r & 3) != 3: a("s_add_u32 s38, s38, 1024")
    def kvdma2(n, ls, gs):
        for r in range(n):
            a(f"s_add_u32 m0, {ls}, {r*1024}")
            a(f"s_add_u32 s38, {gs}, {r*1024}")
            a(f"buffer_load_dwordx4 v4, s[4:7], s38 offen lds")
    if AD:
        kvdma2(2, "s25", "s26")
        a("s_barrier")
        a("s_add_u32 s25, s25, s52")
        a("s_add_u32 s26, s26, s52")
        kvdma2(6, "s25", "s26")
    elif not M3:
        a("s_cmp_eq_u32 s35, 0")
        a("s_cbranch_scc0 L_attn_nodma0")
        kvdma()
        a.label("L_attn_nodma0")
    if OZ:
        a("v_and_b32 v6, 5, v0")
        a("v_cmp_eq_u32 vcc, 0, v6")
        a("v_mov_b32 v5, 0x3f80")
        a("v_cndmask_b32 v5, 0, v5, vcc")
    else:
        a("v_mov_b32 v5, 0x3f803f80")
    a("v_lshlrev_b32 v6, 2, v0")
    a(f"v_add_u32 v6, {ONES}, v6")
    a("ds_write_b32 v6, v5")
    a("ds_write_b32 v6, v5 offset:512")
    a("s_lshl_b32 s29, s22, 15")
    a("v_add_u32 v2, s29, v4")
    a("v_lshrrev_b32 v5, 5, v1")
    a("v_and_b32 v6, 15, v1")
    a("v_lshlrev_b32 v6, 3, v6")
    a("v_lshlrev_b32 v3, 7, v5")
    a("v_add_u32 v3, v3, v6")
    a("v_xor_b32 v7, 128, v3")
    a(f"v_add_u32 v7, {ONES}, v7")
    a("s_add_u32 s38, s29, 65536")
    a("v_add_u32 v3, s38, v3")
    a("v_and_b32 v6, 16, v1")
    a("v_cmp_ne_u32 vcc, 0, v6")
    a("s_nop 1")
    a("v_cndmask_b32 v3, v3, v7, vcc")
    a("v_mov_b32 v6, 4096")
    a("v_cndmask_b32 v7, v6, 0, vcc")
    a("v_mov_b32 v5, v3")
    a("v_mov_b32 v6, v2")
    a("s_mov_b32 s33, 0")
    def maxtree(dst, src, init):
        if init:
            a(f"v_max3_f32 v{dst}, v{src}, v{src+1}, v{src+2}")
            rest = list(range(src+3, src+16))
        else:
            rest = list(range(src, src+16))
        while len(rest) >= 2:
            a(f"v_max3_f32 v{dst}, v{dst}, v{rest[0]}, v{rest[1]}"); rest = rest[2:]
        if rest: a(f"v_max_f32 v{dst}, v{dst}, v{rest[0]}")
    def zero_init():
        for r in range(16): a(f"v_mov_b32 v{O+r}, 0")
        for r in range(8):
            a(f"v_mov_b32 v{P[1]+r}, 0")
            a(f"v_mov_b32 v{VF[1]+r}, 0")
    def setmax():
        a(f"v_mov_b32 v{T0+1}, v{T0}")
        a("s_nop 1")
        a(f"v_permlane32_swap_b32 v{T0}, v{T0+1}")
        a("s_nop 1")
        a(f"v_max_f32 v{T0}, v{T0}, v{T0+1}")
        for r in range(16): a(f"v_sub_f32 v{NM+r}, 0, v{T0}")
    def mainloop(first, C, tag):
        a(f"ds_read_b128 {vr(KF[0],4)}, v2")
        a(f"ds_read_b128 {vr(KF[1],4)}, v2 offset:1024")
        a("s_waitcnt lgkmcnt(1)")
        a(f"v_mfma_f32_32x32x16_bf16 {vr(S[0],16)}, {vr(KF[0],4)}, {vr(Q,4)}, {C}")
        a("s_nop 7")
        a("s_mov_b32 s32, 0")
        if PRIO: a(f"s_setprio {PRIO[0]}")
        if first: tk.tick()
        a.label(f"L_attn_loop{tag}")
        if first:
            a("s_cmp_eq_u32 s32, 1")
            a("s_cbranch_scc0 L_attn_nosync")
            tk.tick()
            a("s_waitcnt vmcnt(0)")
            a("s_barrier")
            tk.tick()
            a.label("L_attn_nosync")
            if PF:
                a("s_cmp_eq_u32 s32, 0")
                a("s_cbranch_scc1 L_attn_nopf")
                a("s_cmp_eq_u32 s32, 2")
                a("s_cselect_b32 s40, s46, s40")
                a("s_cselect_b32 s41, s47, s41")
                a(f"s_cselect_b32 s42, {512*1376*2}, s42")
                a("s_cselect_b32 s50, s51, s50")
                a("s_cmp_eq_u32 s32, 5")
                a("s_cselect_b32 s40, s48, s40")
                a("s_cselect_b32 s41, s49, s41")
                a("s_cselect_b32 s50, s51, s50")
                a("buffer_load_dwordx4 v[124:127], v4, s[40:43], s50 offen")
                a("s_add_u32 s50, s50, 0x80000")
                a.label("L_attn_nopf")
        def setprio(half):
            if not PRIO: return
            for it in range(8):
                k = 4*it + half
                if k == 0 or PRIO[k] == PRIO[k-1]: continue
                a(f"s_cmp_eq_u32 s32, {it}")
                a(f"s_cbranch_scc0 L_attn_p{tag}_{k}")
                a(f"s_setprio {PRIO[k]}")
                a.label(f"L_attn_p{tag}_{k}")
        if PRIO: a(f"s_setprio {PRIO[0]}")  if False else None
        for u in range(4):
            p = u & 1
            setprio(u)
            a("s_waitcnt lgkmcnt(0)")
            a(f"v_mfma_f32_32x32x16_bf16 {vr(S[p^1],16)}, {vr(KF[p^1],4)}, {vr(Q,4)}, {C}")
            a(f"ds_read_b128 {vr(KF[p],4)}, v2 offset:{(u+2)*1024}")
            for r in range(4):
                a(f"ds_read_b64_tr_b16 {vr(VF[p]+2*r,2)}, v3 offset:{u*1024 + r*256}")
            s = S[p]
            for i in range(8):
                a(f"v_exp_f32 v{s+2*i}, v{s+2*i}")
                a(f"v_exp_f32 v{s+2*i+1}, v{s+2*i+1}")
                if i > 0: a(f"v_cvt_pk_bf16_f32 v{P[p]+i-1}, v{s+2*i-2}, v{s+2*i-1}")
                if i == 2: a(f"v_mfma_f32_32x32x16_bf16 {vr(O,16)}, {vr(VF[p^1],4)}, {vr(P[p^1],4)}, {vr(O,16)}")
                if i == 5: a(f"v_mfma_f32_32x32x16_bf16 {vr(O,16)}, {vr(VF[p^1]+4,4)}, {vr(P[p^1]+4,4)}, {vr(O,16)}")
            a("s_nop 0")
            a(f"v_cvt_pk_bf16_f32 v{P[p]+7}, v{s+14}, v{s+15}")
        a("v_add_u32 v2, 4096, v2")
        a("v_add_u32 v3, v3, v7")
        a("s_add_u32 s32, s32, 1")
        a("s_cmp_lt_u32 s32, 8")
        a(f"s_cbranch_scc1 L_attn_loop{tag}")
        a("s_waitcnt lgkmcnt(0)")
        a(f"v_mfma_f32_32x32x16_bf16 {vr(O,16)}, {vr(VF[1],4)}, {vr(P[1],4)}, {vr(O,16)}")
        a(f"v_mfma_f32_32x32x16_bf16 {vr(O,16)}, {vr(VF[1]+4,4)}, {vr(P[1]+4,4)}, {vr(O,16)}")
        a("s_nop 15")
        a("s_nop 3")
    if M0:
        a(f"v_mov_b32 v{T0}, 0")
        zero_init()
    if M3:
        cnt_srd(a, 30)
        a("s_cmp_eq_u32 s20, 0")
        a("s_cbranch_scc0 L_wt_c1")
        a("v_lshlrev_b32 v52, 5, v1")
        a("v_add_u32 v52, s23, v52")
        a("v_mul_u32_u24 v52, 43, v52")
        a("v_lshrrev_b32 v52, 8, v52")
        a("v_lshlrev_b32 v52, 7, v52")
        a("s_movk_i32 s56, 6144")
        a("s_mov_b32 s57, 0")
        a("s_mov_b64 exec, 7")
        if PP:
            for _ in range(2):
                a("buffer_load_dword v53, v52, s[52:55], s56 offen sc1")
                a(f"s_sleep {PPS}")
        a.label("L_spin_c1")
        if SLP: a(f"s_sleep {SLP}")
        a("buffer_load_dword v53, v52, s[52:55], s56 offen sc1")
        a("s_add_u32 s57, s57, 1")
        a(f"s_waitcnt vmcnt({2 if PP else 0})")
        a("v_cmp_gt_u32 vcc, 16, v53")
        a("s_cmp_ge_u32 s57, 40000")
        a("s_cbranch_scc1 L_spun_c1")
        a("s_cmp_eq_u64 vcc, 0")
        a("s_cbranch_scc0 L_spin_c1")
        a.label("L_spun_c1")
        a("s_mov_b64 exec, -1")
        a.label("L_wt_c1")
        a("s_barrier")
        a(f"buffer_load_dwordx4 {vr(Q,4)}, v4, s[8:11], s28 offen")
        a("s_cmp_eq_u32 s35, 0")
        a("s_cbranch_scc0 L_attn_nodma0")
        kvdma()
        a.label("L_attn_nodma0")
    tk.tick()
    a("s_waitcnt vmcnt(0) lgkmcnt(0)")
    a("s_barrier")
    tk.tick()
    a("s_cmp_eq_u32 s35, 0")
    a("s_cbranch_scc1 L_attn_nodma1")
    kvdma()
    a.label("L_attn_nodma1")
    if M0:
        mainloop(True, "0", "")
    else:
        a(f"ds_read_b128 {vr(KF[0],4)}, v2")
        a("s_waitcnt lgkmcnt(0)")
        a(f"v_mfma_f32_32x32x16_bf16 {vr(S[0],16)}, {vr(KF[0],4)}, {vr(Q,4)}, 0")
        a("s_nop 15")
        a("s_nop 3")
        maxtree(T0, S[0], True)
        setmax()
        zero_init()
        mainloop(True, vr(NM,16), "")
    tk.tick()
    a(f"v_mul_f32 v{T0+1}, 0, v{O}")
    a(f"v_mul_f32 v{T0+2}, 0, v{O+1}")
    a("s_mov_b32 s34, 0x5f800000")
    a(f"v_cmp_nle_f32 s[36:37], v{O+8}, s34")
    a("s_mov_b32 s34, 0x21800000")
    a(f"v_cmp_nge_f32 s[38:39], v{O+8}, s34")
    for r in range(2, 8):
        a(f"v_fma_f32 v{T0+1+(r&1)}, v{O+r}, 0, v{T0+1+(r&1)}")
    a(f"v_add_f32 v{T0+1}, v{T0+1}, v{T0+2}")
    a("s_or_b64 s[36:37], s[36:37], s[38:39]")
    a(f"v_cmp_u_f32 vcc, v{T0+1}, v{T0+1}")
    a("s_or_b64 s[36:37], s[36:37], vcc")
    a("s_cmp_eq_u64 s[36:37], 0")
    if not FB: a("s_cbranch_scc1 L_attn_done")
    a("s_waitcnt vmcnt(0)")
    a("v_mov_b32 v2, v6")
    a(f"v_mov_b32 v{T0}, 0xff800000")
    a("s_mov_b32 s32, 0")
    a.label("L_attn_maxloop")
    a(f"ds_read_b128 {vr(KF[0],4)}, v2")
    a("s_waitcnt lgkmcnt(0)")
    a(f"v_mfma_f32_32x32x16_bf16 {vr(S[0],16)}, {vr(KF[0],4)}, {vr(Q,4)}, 0")
    a("s_nop 15")
    a("s_nop 3")
    maxtree(T0, S[0], False)
    a("v_add_u32 v2, 1024, v2")
    a("s_add_u32 s32, s32, 1")
    a("s_cmp_lt_u32 s32, 32")
    a("s_cbranch_scc1 L_attn_maxloop")
    setmax()
    zero_init()
    a("v_mov_b32 v2, v6")
    a("v_mov_b32 v3, v5")
    mainloop(False, vr(NM,16), "2")
    a.label("L_attn_done")
    a("s_mul_i32 s38, s21, 2560")
    a(f"s_add_u32 s38, s38, {SCR}")
    a("v_add_u32 v2, s38, v4")
    a("v_lshlrev_b32 v3, 3, v1")
    a("v_add_u32 v3, s38, v3")
    a(f"v_mov_b32 v{O+9}, v{T0}")
    a("s_lshl_b32 s38, s27, 5")
    a("s_add_u32 s38, s38, s23")
    a("s_lshl_b32 s38, s38, 10")
    a("s_mov_b32 s33, s22")
    a("s_cmp_eq_u32 s22, 0")
    a("s_cselect_b64 exec, 0, -1")
    a(f"ds_write_b128 v2, {vr(O,4)}")
    a(f"ds_write_b128 v2, {vr(O+4,4)} offset:1024")
    a(f"ds_write_b64 v3, {vr(O+8,2)} offset:2048")
    a("s_waitcnt lgkmcnt(0)")
    a("s_cbranch_scc1 L_attn_comb")
    a("s_barrier")
    a(f"s_branch L_attn_fin")
    a.label("L_attn_comb")
    a(f"ds_read_b64 {vr(S[0]+8,2)}, v3 offset:2048")
    a(f"ds_read_b128 {vr(S[0],4)}, v2")
    a(f"ds_read_b128 {vr(S[0]+4,4)}, v2 offset:1024")
    a("s_waitcnt lgkmcnt(2)")
    m1 = S[0] + 9
    a(f"v_max_f32 v{T0+1}, v{T0}, v{m1}")
    a(f"v_sub_f32 v{T0+2}, v{T0}, v{T0+1}")
    a(f"v_sub_f32 v{T0+3}, v{m1}, v{T0+1}")
    a(f"v_exp_f32 v{T0+2}, v{T0+2}")
    a(f"v_exp_f32 v{T0+3}, v{T0+3}")
    a("s_nop 0")
    a(f"v_mul_f32 v{O+8}, v{O+8}, v{T0+2}")
    a(f"v_fma_f32 v{O+8}, v{S[0]+8}, v{T0+3}, v{O+8}")
    a(f"v_rcp_f32 v{T0+4}, v{O+8}")
    a("s_nop 0")
    a(f"v_mul_f32 v{T0+2}, v{T0+2}, v{T0+4}")
    a(f"v_mul_f32 v{T0+3}, v{T0+3}, v{T0+4}")
    for r in range(8): a(f"v_mul_f32 v{O+r}, v{O+r}, v{T0+2}")
    a("s_waitcnt lgkmcnt(0)")
    for r in range(8):
        a(f"v_fma_f32 v{O+r}, v{S[0]+r}, v{T0+3}, v{O+r}")
    for j in range(4): a(f"v_cvt_pk_bf16_f32 v{P[0]+j}, v{O+2*j}, v{O+2*j+1}")
    a(f"buffer_store_dwordx4 {vr(P[0],4)}, v4, s[12:15], s38 offen" + STF)
    a("s_cmp_eq_u32 s33, 2")
    a("s_cbranch_scc1 L_attn_fin")
    a("s_mov_b32 s33, 2")
    a("s_mov_b64 exec, -1")
    a("s_barrier")
    a("s_branch L_attn_comb")
    a.label("L_attn_fin")
    tk.tick()
    if MG:
        a("s_cmp_eq_u32 s22, 0")
        a("s_cbranch_scc1 L_attn_cont")
        tk.z = 2
        n = tk.n
        tk.tick(); tk.dump(20)
        a("s_endpgm")
        a.label("L_attn_cont")
        tk.n = n
        cnt_srd(a, 30)
        sig(a, "c2", 24, 4096)
        tk.z = 8
        tk.tick(); tk.dump(20)
        return
    a("s_waitcnt vmcnt(0)")
    tk.tick()
    tk.dump(20)
    a.label(f"L_{name}_end")
    a("s_endpgm")
    return name, kernel_wrap(name, a.text(), 128, 100 if TICK else 64), SCR + 8*2560
```

```python
import os
from dsl import *

def gemm96(mode, a=None):
    qkv = mode == "qkv"
    name = "k1_qkv_kernel" if qkv else "k4_ffn1_kernel"
    NW = 1536 if qkv else 1376
    pitchW = NW * 2
    MG = a is not None
    if not MG: a = Asm()
    M3 = MG and qkv
    if M3:
        MG = False
        pos0 = len(a.lines)
        a("v_lshrrev_b32 v2, 6, v0")
        a("s_nop 0")
        a("v_readfirstlane_b32 s20, v2")
        a("s_nop 3")
        a("s_cmp_ge_u32 s20, 8")
        a("s_cbranch_scc1 L_helper")
    tk = Ticks(a, 0 if qkv else 3)
    if MG: tk.z = 36
    SL = 28672; NS = 4; WOFF = 16384; NCH = 8; LOOK = 3
    if not MG and not M3:
        a("s_cmp_ge_u32 s2, 256")
        a(f"s_cbranch_scc1 L_{name}_end")
    a("s_load_dwordx2 s[30:31], s[0:1], %d" % (KA['x'] if qkv else KA['ws']))
    a("s_load_dwordx2 s[32:33], s[0:1], %d" % (KA['wqkv'] if qkv else KA['w1']))
    a("s_load_dwordx2 s[34:35], s[0:1], %d" % KA['ws'])
    if not qkv: a("s_load_dwordx2 s[36:37], s[0:1], %d" % KA['b1'])
    a("s_and_b32 s3, s2, 7")
    a("s_lshr_b32 s38, s2, 3")
    a("s_lshr_b32 s23, s3, 1")
    a("s_lshl_b32 s23, s23, 2")
    a("s_and_b32 s39, s38, 3")
    a("s_add_u32 s23, s23, s39")
    a("s_and_b32 s24, s3, 1")
    a("s_lshl_b32 s24, s24, 3")
    a("s_lshr_b32 s39, s38, 2")
    a("s_add_u32 s24, s24, s39")
    if not qkv:
        a("s_cmp_ge_u32 s24, 15")
        a(f"s_cbranch_scc1 L_{name}_end")
    tk.tick()
    a("v_and_b32 v1, 63, v0")
    a("v_lshrrev_b32 v2, 6, v0")
    a("v_lshlrev_b32 v4, 4, v1")
    a("v_readfirstlane_b32 s20, v2")
    a("v_and_b32 v2, 31, v1")
    a("v_lshrrev_b32 v3, 5, v1")
    a("s_and_b32 s21, s20, 3")
    a("s_lshr_b32 s22, s20, 2")
    a("v_mul_u32_u24 v5, 43691, v1")
    a("v_lshrrev_b32 v5, 19, v5")
    a("v_mul_u32_u24 v6, 12, v5")
    a("v_sub_u32 v6, v1, v6")
    a("v_lshlrev_b32 v6, 4, v6")
    a("s_mul_i32 s39, s24, 192")
    a("v_add_u32 v6, s39, v6")
    if not qkv:
        a(f"v_min_u32 v6, {pitchW-16}, v6")
    a("s_lshl_b32 s38, s20, 3")
    a("v_add_u32 v5, s38, v5")
    a(f"v_mul_u32_u24 v5, {pitchW}, v5")
    a("v_add_u32 v14, v5, v6")
    if qkv:
        a("s_lshl_b32 s38, s23, 7")
        a("s_lshl_b32 s39, s20, 4")
        a("s_add_u32 s38, s38, s39")
        a("v_lshrrev_b32 v5, 3, v1")
        a("v_add_u32 v5, s38, v5")
        a("v_lshlrev_b32 v5, 10, v5")
        a("v_lshrrev_b32 v6, 4, v1")
        a("v_and_b32 v7, 7, v1")
        a("v_xor_b32 v6, v6, v7")
        a("v_lshlrev_b32 v7, 4, v6")
        a("v_add_u32 v10, v5, v7")
        a("v_xor_b32 v6, 4, v6")
        a("v_lshlrev_b32 v7, 4, v6")
        a("v_add_u32 v11, v5, v7")
        a("v_add_u32 v11, 8192, v11")
    else:
        a("s_lshl_b32 s38, s23, 2")
        a("s_lshr_b32 s39, s20, 1")
        a("s_add_u32 s38, s38, s39")
        a("s_lshl_b32 s38, s38, 5")
        a("s_and_b32 s39, s20, 1")
        a("s_lshl_b32 s39, s39, 1")
        a("s_add_u32 s38, s38, s39")
        a("s_lshl_b32 s38, s38, 10")
        a("v_add_u32 v10, s38, v4")
    a("s_lshl_b32 s25, s20, 11")
    a("s_mul_i32 s26, s20, 1536")
    a(f"s_add_u32 s26, s26, {WOFF}")
    a("s_mov_b32 s46, -1")
    a("s_mov_b32 s47, 0xffff")
    a("s_waitcnt lgkmcnt(0)")
    if qkv:
        srd(a, 4, 30, 2048*1024)
        srd(a, 12, 34, 6*MB)
    else:
        srd(a, 4, 30, 2*MB, add=WS_HF)
        srd(a, 12, 34, 64*AF_KS*1024, add=WS_AF)
        srd(a, 16, 36, 1376*2)
    srd(a, 8, 32, 512*pitchW)
    issued = []
    def piece(c, p):
        slot = (c % NS) * SL
        if p < 2:
            i = p
            if qkv:
                a(f"s_add_u32 m0, s25, {slot + i*1024}")
                a(f"s_movk_i32 s38, {c*128}")
                a(f"buffer_load_dwordx4 v{10+i}, s[4:7], s38 offen lds")
            else:
                a(f"s_add_u32 m0, s25, {slot}")
                a(f"s_movk_i32 s38, {c*4096}")
                a(f"buffer_load_dwordx4 v10, s[4:7], s38 offen offset:{i*1024} lds")
        else:
            i = p - 2
            a(f"s_add_u32 m0, s26, {slot + i*768}")
            a(f"s_mov_b32 s38, {(c*64 + 4*i)*pitchW}")
            a("s_mov_b64 exec, s[46:47]")
            a(f"buffer_load_dwordx4 v14, s[8:11], s38 offen lds")
            a("s_mov_b64 exec, -1")
        issued.append(c)
    def dma(c):
        for p in range(4): piece(c, p)
    def younger(c):
        last = max(i for i, x in enumerate(issued) if x == c)
        return len(issued) - 1 - last
    pend = []
    def slot_hook(n=1):
        for _ in range(n):
            if pend: piece(*pend.pop(0))
    REP = int(os.environ.get('REP', '0'))
    if REP:
        a('s_mov_b32 s55, 0')
        a.label(f'L_{name}_rep')
        a('s_mov_b32 s46, -1')
        a('s_mov_b32 s47, 0xffff')
    if MG:
        cnt_srd(a, 34)
        for c in range(2):
            for p in (2, 3): piece(c, p)
        waitcnt(a, "c3", 23, 0, 16, preg=39)
        for c in range(2):
            for p in (0, 1): piece(c, p)
    else: dma(0)
    if not qkv:
        pass
    if int(os.environ.get("OB96", "1")): a("s_barrier")
    if not MG: dma(1)
    tk.tick()
    for b in range(3):
        a(f"s_add_u32 s{27+b}, s21, {b}")
        a(f"s_cmp_ge_u32 s{27+b}, 3")
        a(f"s_cselect_b32 s38, 3, 0")
        a(f"s_sub_u32 s{27+b}, s{27+b}, s38")
    VA = 26
    if qkv:
        a("s_lshl_b32 s38, s21, 12")
        a("v_lshlrev_b32 v5, 7, v2")
        a("v_add_u32 v5, s38, v5")
        a("v_bfe_u32 v6, v2, 1, 3")
        a("v_xor_b32 v6, v6, v3")
        for s in range(4):
            a(f"v_xor_b32 v7, {2*s}, v6")
            a("v_lshlrev_b32 v7, 4, v7")
            a(f"v_add_u32 v{VA+s}, v5, v7")
            a(f"v_add_u32 v{VA+4+s}, {2*SL}, v{VA+s}")
    else:
        a("s_lshl_b32 s38, s21, 12")
        a(f"v_add_u32 v{VA}, s38, v4")
        a(f"v_add_u32 v{VA+1}, {2*SL}, v{VA}")
    a("v_and_b32 v5, 15, v1")
    a("v_lshrrev_b32 v6, 2, v5")
    a(f"v_lshlrev_b32 v7, {3 if qkv else 2}, v3")
    a("v_add_u32 v6, v6, v7")
    a("v_mul_u32_u24 v6, 192, v6")
    a("v_bfe_u32 v7, v1, 4, 1")
    a("v_lshlrev_b32 v8, 5, v7")
    a("v_add_u32 v6, v6, v8")
    a("v_and_b32 v8, 3, v5")
    a("v_lshlrev_b32 v8, 3, v8")
    a("v_add_u32 v6, v6, v8")
    for b in range(3):
        a(f"s_lshl_b32 s38, s{27+b}, 6")
        a(f"s_add_u32 s38, s38, {WOFF}")
        a(f"v_add_u32 v{20+b}, s38, v6")
        a(f"v_add_u32 v{23+b}, {2*SL}, v{20+b}")
    halfrow = 4 if qkv else 8
    SEL = 64; CSA = 68; TMP = 120
    S1 = 8; S2 = 12
    a("v_cmp_eq_u32 vcc, v5, v7")
    a("v_mov_b32 v9, 0x3f803f80")
    for r in range(4): a(f"v_cndmask_b32 v{SEL+r}, 0, v9, vcc")
    for r in (8, 9, 12, 13): a(f"v_mov_b32 v{r}, 0")
    for r in range(CSA, CSA+4): a(f"v_mov_b32 v{r}, 0")
    for r in range(72, 104): a(f"v_mov_b32 v{r}, 0")
    a("s_mov_b32 s45, 0xffff0000")
    DOT = int(os.environ.get("DOT", "1"))
    if qkv and DOT: a("s_mov_b32 s49, 0x3f803f80")
    AF = [40, 44]; ACC = 72
    WF = [48, 56]
    B1 = 104
    ST, CS = 0, 4096
    a("s_lshl_b32 s40, s23, 2")
    a("s_add_u32 s40, s40, s21")
    if not qkv:
        srd(a, 48, 34, 128*1024, add=WS_ST)
        a("s_lshl_b32 s38, s40, 11")
        a("v_lshlrev_b32 v5, 9, v3")
        a("v_lshlrev_b32 v6, 4, v2")
        a("v_add_u32 v5, v5, v6")
        for j in range(2):
            a(f"buffer_load_dwordx4 v[{120+4*j}:{123+4*j}], v5, s[48:51], s38 offen offset:{1024*j}")
            issued.append("st")
    a("s_cmp_eq_u32 s22, 1")
    a(f"s_cbranch_scc1 L_{name}_roleB")
    issued0 = list(issued)

    def prefetch(role):
        L = f"L_{name}_pf{role}"
        a("s_sub_u32 s38, s20, 2")
        a("s_cmp_lt_u32 s38, 4")
        a(f"s_cbranch_scc1 {L}w")
        a("s_and_b32 s39, s24, 7")
        a("s_lshr_b32 s38, s20, 2")
        a("s_lshl_b32 s38, s38, 2")
        a("s_xor_b32 s39, s39, s38")
        a("s_lshl_b32 s39, s39, 4")
        a("s_lshl_b32 s38, s23, 7")
        a("s_add_u32 s39, s39, s38")
        a("s_and_b32 s38, s20, 1")
        a("s_lshl_b32 s38, s38, 3")
        a("s_add_u32 s39, s39, s38")
        a("s_lshl_b32 s39, s39, 10")
        a("v_lshrrev_b32 v5, 3, v1")
        a("v_lshlrev_b32 v5, 10, v5")
        a("v_and_b32 v6, 7, v1")
        a("v_lshlrev_b32 v6, 7, v6")
        a("v_add_u32 v5, v5, v6")
        a("s_mov_b32 s42, 0xf8f8f8f8")
        a("s_mov_b32 s43, 0xf8f8f8f8")
        a("s_mov_b64 exec, s[42:43]")
        a("buffer_load_dword v127, v5, s[4:7], s39 offen")
        a(f"s_branch {L}d")
        a.label(f"{L}w")
        a("s_and_b32 s39, s23, 3")
        a("s_mul_i32 s39, s39, 80")
        a("s_mul_i32 s38, s38, 20")
        a("s_add_u32 s39, s39, s38")
        a("s_add_u32 s39, s39, 192")
        a(f"s_mul_i32 s39, s39, {pitchW}")
        a("s_mul_i32 s38, s24, 192")
        a("s_add_u32 s39, s39, s38")
        a("v_lshrrev_b32 v5, 1, v1")
        a(f"v_mul_u32_u24 v5, {pitchW}, v5")
        a("v_and_b32 v6, 1, v1")
        a("v_lshlrev_b32 v6, 7, v6")
        a("v_add_u32 v5, v5, v6")
        a("s_mov_b32 s42, -1")
        a("s_mov_b32 s43, 0xff")
        a("s_mov_b64 exec, s[42:43]")
        a("buffer_load_dword v127, v5, s[8:11], s39 offen")
        a.label(f"{L}d")
        a("s_mov_b64 exec, -1")
        issued.append("pf")
    PFX = int(os.environ.get("PFX", "0")) if qkv else 0
    def body(role):
        issued[:] = issued0
        del pend[:]
        blks = [0, 1] if role == 0 else [2]
        nb = len(blks); nrd = 1 + 2*nb
        if not qkv:
            a("s_mul_i32 s38, s24, 192")
            a("v_lshlrev_b32 v5, 3, v3")
            a("v_add_u32 v5, s38, v5")
            for k, b in enumerate(blks):
                a(f"s_lshl_b32 s38, s{27+b}, 6")
                for hq in range(4):
                    r = B1 + 8*k + 2*hq
                    a(f"buffer_load_dwordx2 v[{r}:{r+1}], v5, s[16:19], s38 offen offset:{16*hq}")
                    issued.append("b1")
        def reads(c, s, buf):
            slot = c % NS
            grp = slot // 2; off = (slot % 2) * SL
            if qkv:
                a(f"ds_read_b128 {vr(AF[buf],4)}, v{VA+4*grp+s} offset:{off}")
            else:
                a(f"ds_read_b128 {vr(AF[buf],4)}, v{VA+grp} offset:{off + s*1024}")
            for k, b in enumerate(blks):
                for hf in range(2):
                    a(f"ds_read_b64_tr_b16 {vr(WF[buf]+4*k+2*hf,2)}, v{20+3*grp+b} offset:{off + (16*s + halfrow*hf)*192}")
        def stats(reg, k):
            if DOT:
                a(f"v_dot2c_f32_bf16 v{S1 + (k & 1)}, s49, v{reg}")
                a(f"v_dot2c_f32_bf16 v{S2 + (k & 1)}, v{reg}, v{reg}")
                return
            t = TMP + 2*(k & 1)
            a(f"v_lshlrev_b32 v{t}, 16, v{reg}")
            a(f"v_and_b32 v{t+1}, s45, v{reg}")
            a(f"v_add_f32 v{S1}, v{S1}, v{t}")
            a(f"v_fmac_f32 v{S2}, v{t}, v{t}")
            a(f"v_add_f32 v{S1+1}, v{S1+1}, v{t+1}")
            a(f"v_fmac_f32 v{S2+1}, v{t+1}, v{t+1}")
        SA = os.environ.get("SA", "02")
        first = [True]
        def compute(buf, ks):
            for k in range(nb):
                a(f"v_mfma_f32_32x32x16_bf16 {vr(ACC+16*k,16)}, {vr(WF[buf]+4*k,4)}, {vr(AF[buf],4)}, {vr(ACC+16*k,16)}")
                if k == 0:
                    slot_hook(2 if first[0] else 1); first[0] = False
            if role == 0:
                a(f"v_mfma_f32_16x16x32_bf16 {vr(CSA,4)}, {vr(WF[buf],4)}, {vr(SEL,4)}, {vr(CSA,4)}")
            if qkv and ((str(ks) in SA) == (role == 0)):
                for r in range(4): stats(AF[buf] + r, r)
        a(f"s_waitcnt vmcnt({younger(0)})")
        a("s_barrier")
        tk.tick()
        reads(0, 0, 0)
        if PFX == 1: prefetch(role)
        pend.extend((2, p) for p in range(4))
        for c in range(NCH):
            for s in range(4):
                buf = s & 1
                if s < 3:
                    reads(c, s+1, buf ^ 1)
                    a(f"s_waitcnt lgkmcnt({nrd})")
                elif c < NCH - 1:
                    a(f"s_waitcnt vmcnt({younger(c+1)})")
                    a("s_barrier")
                    if c in (1, 3, 5):
                        tk.tick()
                    assert not pend
                    if c + LOOK < NCH: pend.extend((c + LOOK, p) for p in range(4))
                    reads(c + 1, 0, buf ^ 1)
                    a(f"s_waitcnt lgkmcnt({nrd})")
                else:
                    a("s_waitcnt lgkmcnt(0)")
                compute(buf, s)
                if PFX == 2 and c == 0 and s == 2: prefetch(role)
        assert not pend
        tk.tick()
        if REP:
            a("s_cmp_eq_u32 s55, 0")
            a("s_mov_b32 s55, 1")
            a("s_barrier")
            a(f"s_cbranch_scc1 L_{name}_rep")
        if role == 0:
            a("v_and_b32 v10, 15, v1")
            a("v_lshlrev_b32 v10, 6, v10")
            a("v_lshrrev_b32 v11, 4, v1")
            a("v_lshlrev_b32 v11, 4, v11")
            a("v_add_u32 v10, v10, v11")
            a("s_lshl_b32 s39, s27, 7")
            a("v_add_u32 v10, s39, v10")
            a("s_mov_b32 s46, 0x00030003")
            a("s_mov_b32 s47, 0x00030003")
            a("s_nop 3")
            a("s_mov_b64 exec, s[46:47]")
            a(f"ds_write_b128 v10, {vr(CSA,4)} offset:{CS}")
            a("s_mov_b64 exec, -1")
        def statcalc():
            a("v_mul_f32 v22, 0x3b000000, v8")
            a("v_mul_f32 v23, 0x3b000000, v9")
            a("v_fma_f32 v23, -v22, v22, v23")
            a("v_max_f32 v23, 0, v23")
            a("v_add_f32 v23, 0x3727c5ac, v23")
            a("v_rsq_f32 v23, v23")
            a("s_nop 0")
            a("v_mul_f32 v22, v22, v23")
        def hcomb():
            a("v_mov_b32 v12, v8")
            a("v_mov_b32 v13, v9")
            a("s_nop 1")
            a("v_permlane32_swap_b32 v8, v12")
            a("v_permlane32_swap_b32 v9, v13")
            a("s_nop 1")
            a("v_add_f32 v8, v8, v12")
            a("v_add_f32 v9, v9, v13")
        a("s_lshl_b32 s38, s21, 8")
        a("v_lshlrev_b32 v7, 3, v2")
        a("v_add_u32 v7, s38, v7")
        if qkv:
            if DOT: a("s_nop 2")
            a("v_add_f32 v8, v8, v9")
            a("v_add_f32 v9, v12, v13")
            hcomb()
            a(f"ds_write_b64 v7, v[8:9] offset:{ST + role*1024}")
        else:
            a("v_add_f32 v8, v120, v122")
            a("v_add_f32 v9, v121, v123")
            a("v_add_f32 v12, v124, v126")
            a("v_add_f32 v13, v125, v127")
            a("v_add_f32 v8, v8, v12")
            a("v_add_f32 v9, v9, v13")
            hcomb()
            statcalc()
        a("v_lshlrev_b32 v10, 4, v3")
        a("v_lshlrev_b32 v15, 5, v2")
        a("v_add_u32 v15, v15, v10")
        for k, b in enumerate(blks):
            a(f"s_lshl_b32 s38, s{27+b}, 7")
            a(f"v_add_u32 v{16+k}, s38, v10")
        a("s_waitcnt lgkmcnt(0)")
        a("s_barrier")
        CB = [120, 26]
        hbs = [(k, hb) for k in range(nb) for hb in range(2)]
        def csread(i):
            k, hb = hbs[i]
            for q in range(2):
                a(f"ds_read_b128 {vr(CB[i & 1]+4*q,4)}, v{16+k} offset:{CS + (2*hb+q)*32}")
        if qkv: a(f"ds_read_b64 v[12:13], v7 offset:{ST + (1-role)*1024}")
        csread(0); csread(1)
        if qkv:
            a(f"s_waitcnt lgkmcnt(4)")
            a("v_add_f32 v8, v8, v12")
            a("v_add_f32 v9, v9, v13")
            statcalc()
        tk.tick()
        PX = 40
        nst = 0
        for i, (k, hb) in enumerate(hbs):
            b = blks[k]
            if True:
                A0 = ACC + 16*k + 8*hb
                C0 = CB[i & 1]
                PK = PX + 4*(nst & 1); nst += 1
                a(f"s_waitcnt lgkmcnt({2 if i + 1 < len(hbs) else 0})")
                a("s_mul_i32 s41, s24, 6")
                a(f"s_lshl_b32 s38, s{27+b}, 1")
                a(f"s_add_u32 s41, s41, s38")
                if hb: a("s_add_u32 s41, s41, 1")
                if qkv:
                    a("s_lshl_b32 s42, s41, 16")
                    a("s_lshl_b32 s43, s40, 10")
                    a("s_add_u32 s42, s42, s43")
                    a("s_cmp_lt_u32 s41, 32")
                    a("s_cselect_b32 s44, 0x3eb8aa3b, 1.0")
                    a("v_mul_f32 v11, s44, v23")
                    a("v_mul_f32 v12, s44, v22")
                    a("s_cmp_ge_u32 s41, 64")
                    a("s_cselect_b64 vcc, -1, 0")
                    a("v_cndmask_b32 v13, v4, v15, vcc")
                    for j in range(8):
                        a(f"v_mul_f32 v{C0+j}, v12, v{C0+j}")
                    for j in range(8):
                        a(f"v_fma_f32 v{A0+j}, v11, v{A0+j}, -v{C0+j}")
                    if i + 2 < len(hbs): csread(i + 2)
                    for j in range(4):
                        a(f"v_cvt_pk_bf16_f32 v{PK+j}, v{A0+2*j}, v{A0+2*j+1}")
                    a(f"buffer_store_dwordx4 {vr(PK,4)}, v13, s[12:15], s42 offen" + STF)
                else:
                    a(f"s_mul_i32 s42, s40, {AF_KS}")
                    a("s_add_u32 s42, s42, s41")
                    a("s_lshl_b32 s42, s42, 10")
                    T = 48
                    U = 56
                    for j in range(8):
                        bsrc = B1 + 8*k + 4*hb + (j >> 1)
                        if j & 1: a(f"v_and_b32 v{T+j}, s45, v{bsrc}")
                        else:     a(f"v_lshlrev_b32 v{T+j}, 16, v{bsrc}")
                    for j in range(8):
                        a(f"v_fma_f32 v{T+j}, -v22, v{C0+j}, v{T+j}")
                    if i + 2 < len(hbs): csread(i + 2)
                    for j in range(8):
                        a(f"v_fma_f32 v{A0+j}, v23, v{A0+j}, v{T+j}")
                    for j in range(8):
                        a(f"v_mul_f32 v{T+j}, 0x3fb8aa3b, v{A0+j}")
                    for j in range(8):
                        a(f"v_exp_f32 v{T+j}, v{T+j}")
                    for j in range(8):
                        a(f"v_add_f32 v{U+j}, 2.0, v{T+j}")
                    for j in range(8):
                        a(f"v_fma_f32 v{U+j}, v{T+j}, v{U+j}, 2.0")
                    for j in range(8):
                        a(f"v_rcp_f32 v{U+j}, v{U+j}")
                    for j in range(8):
                        a(f"v_mul_f32 v{U+j}, v{A0+j}, v{U+j}")
                    for j in range(8):
                        a(f"v_fma_f32 v{A0+j}, -2.0, v{U+j}, v{A0+j}")
                    for j in range(4):
                        a(f"v_cvt_pk_bf16_f32 v{PK+j}, v{A0+2*j}, v{A0+2*j+1}")
                    a(f"buffer_store_dwordx4 {vr(PK,4)}, v4, s[12:15], s42 offen" + STF)
        tk.tick()
    n0 = tk.n
    body(0)
    n1 = tk.n
    pos1 = len(a.lines)
    a(f"s_branch L_{name}_join")
    a.label(f"L_{name}_roleB")
    tk.n = n0
    body(1)
    tk.n = n1
    pos2 = len(a.lines)
    a.label(f"L_{name}_join")
    if MG: sig(a, "c4", 23, 2048)
    if M3:
        cnt_srd(a, 34)
        sig(a, "c1", 24, 6144)
        nbar = lambda lo, hi: sum(1 for l in a.lines[lo:hi] if l.strip() == "s_barrier")
        assert nbar(pos1, pos2) * 2 == nbar(pos0, pos2) - (1 if int(os.environ.get("OB96", "1")) else 0)
        NB = nbar(pos0, pos1) + nbar(pos2, len(a.lines))
        if TICK:
            tk.tick(); tk.dump(20)
        a("s_branch L_attn_start")
        a.label("L_helper")
        a("s_load_dwordx2 s[30:31], s[0:1], %d" % KA['dbg'])
        a("s_load_dwordx2 s[34:35], s[0:1], %d" % KA['ws'])
        a("v_and_b32 v1, 63, v0")
        a("v_lshlrev_b32 v5, 7, v1")
        a("v_mov_b32 v6, 0")
        a("v_mov_b32 v7, 1")
        a("v_mov_b32 v8, 0")
        a("s_waitcnt lgkmcnt(0)")
        srd(a, 4, 30, 256)
        cnt_srd(a, 34)
        a("s_lshl_b32 s21, s2, 5")
        a("s_add_u32 s21, s21, s20")
        a("s_cmp_eq_u32 s21, 8")
        a("s_cbranch_scc0 L_hp_z")
        a("buffer_store_dword v6, v5, s[52:55], 0 offen sc1")
        a.label("L_hp_z")
        F0, F1, F2 = 3, 5, NB - 2
        for i in range(NB):
            if i == F0:
                a("s_cmp_eq_u32 s21, 8")
                a("s_cbranch_scc0 L_hp_f")
                a("s_waitcnt vmcnt(0)")
                a("s_mov_b64 exec, 1")
                a("buffer_store_dword v7, v6, s[4:7], 0 offen sc1")
                a("s_mov_b64 exec, -1")
                a.label("L_hp_f")
            if i == F1:
                a("s_cmp_eq_u32 s20, 8")
                a("s_cbranch_scc0 L_hp_l")
                a("buffer_load_dword v8, v6, s[4:7], 0 offen sc1")
                a.label("L_hp_l")
            if i == F2:
                a("s_cmp_eq_u32 s20, 8")
                a("s_cbranch_scc0 L_hp_c")
                a("s_mov_b32 s57, 0")
                a.label("L_hp_spin")
                a("s_waitcnt vmcnt(0)")
                a("v_readfirstlane_b32 s38, v8")
                a("s_add_u32 s57, s57, 1")
                a("s_cmp_ge_u32 s57, 40000")
                a("s_cbranch_scc1 L_hp_c")
                a("s_cmp_eq_u32 s38, 1")
                a("s_cbranch_scc1 L_hp_c")
                a("buffer_load_dword v8, v6, s[4:7], 0 offen sc1")
                a("s_branch L_hp_spin")
                a.label("L_hp_c")
            a("s_barrier")
        a.label("L_attn_start")
        return
    if qkv and MERGE:
        a("s_cmp_eq_u32 s2, 0")
        a(f"s_cbranch_scc0 L_{name}_nz")
        a("s_cmp_eq_u32 s20, 0")
        a(f"s_cbranch_scc0 L_{name}_nz")
        cnt_srd(a, 34)
        a("v_lshlrev_b32 v5, 7, v1")
        a("v_mov_b32 v6, 0")
        a("buffer_store_dword v6, v5, s[52:55], 0 offen" + STF)
        a.label(f"L_{name}_nz")
    if TICK: a("s_waitcnt vmcnt(0)")
    tk.tick()
    tk.dump(20)
    a.label(f"L_{name}_end")
    if MG: return
    a("s_endpgm")
    return name, kernel_wrap(name, a.text(), 128, 100 if TICK else 64), NS * SL
```

```python
import os
class Asm:
    def __init__(self):
        self.lines = []
        self.nlabel = 0
    def __call__(self, s):
        for l in s.strip("\n").split("\n"):
            self.lines.append("  " + l.strip())
    def label(self, name):
        self.lines.append(name + ":")
    def newlabel(self, base):
        self.nlabel += 1
        return f"{base}_{self.nlabel}"
    def comment(self, s):
        self.lines.append("  ; " + s)
    def text(self):
        return "\n".join(self.lines) + "\n"

def vr(a, n):
    return f"v[{a}:{a+n-1}]" if n > 1 else f"v{a}"
def sr(a, n):
    return f"s[{a}:{a+n-1}]" if n > 1 else f"s{a}"

def kernel_wrap(name, body, nvgpr, nsgpr=100):
    nv = (nvgpr + 7) // 8 * 8
    acc = (nvgpr + 3) // 4 * 4
    return f""".text
.globl {name}
.p2align 8
.type {name},@function
{name}:
{body}
.section .rodata,"a"
.p2align 6
.amdhsa_kernel {name}
  .amdhsa_next_free_vgpr {nvgpr}
  .amdhsa_next_free_sgpr {nsgpr}
  .amdhsa_accum_offset {acc}
  .amdhsa_group_segment_fixed_size 0
  .amdhsa_kernarg_size 80
  .amdhsa_user_sgpr_count 2
  .amdhsa_user_sgpr_kernarg_segment_ptr 1
  .amdhsa_system_sgpr_workgroup_id_x 1
.end_amdhsa_kernel
"""

KA = dict(x=0, wqkv=8, wo=16, bx=24, w1=32, b1=40, w2=48, out=56, dbg=64, ws=72)
MB = 1 << 20
WS_QF, WS_KF, WS_VV, WS_OF, WS_HF, WS_AF = 0, 2*MB, 4*MB, 6*MB, 8*MB, 10*MB
WS_ST = 16*MB
MERGE = int(os.environ.get('MERGE', '3'))
KS3 = int(os.environ.get('KS3', '1'))
AF_KS = 90

def srd(a, dst, ptr, nbytes, add=0):
    if add:
        a(f"s_add_u32 s{dst}, s{ptr}, {add}")
        a(f"s_addc_u32 s{dst+1}, s{ptr+1}, 0")
    else:
        a(f"s_mov_b32 s{dst}, s{ptr}")
        a(f"s_mov_b32 s{dst+1}, s{ptr+1}")
    a(f"s_mov_b32 s{dst+2}, {nbytes}")
    a(f"s_mov_b32 s{dst+3}, 0x00020000")

import os
TICK = int(os.environ.get("TICK", "0"))
class Ticks:
    def __init__(self, a, kid):
        self.a, self.kid, self.n, self.z = a, kid, 0, 2
    def tick(self):
        if not TICK: return
        i = self.n; self.n += 1
        assert i < 16
        self.a(f"s_memtime s[{64+2*i}:{65+2*i}]")
        if i == 0: self.a("s_memrealtime s[60:61]")
    def dump(self, wave_sgpr):
        if not TICK: return
        a = self.a
        a("s_memrealtime s[58:59]")
        a("s_load_dwordx2 s[96:97], s[0:1], %d" % KA['ws'])
        a("s_waitcnt lgkmcnt(0)")
        a(f"s_add_u32 s96, s96, {64*MB}")
        a("s_addc_u32 s97, s97, 0")
        a(f"s_mov_b32 s98, {16*MB}")
        a("s_mov_b32 s99, 0x00020000")
        a(f"s_add_u32 s62, s2, {self.kid*256}")
        a("s_lshl_b32 s62, s62, 4")
        a(f"s_add_u32 s62, s62, s{wave_sgpr}")
        a("s_lshl_b32 s62, s62, 7")
        z, d = self.z, self.z + 1
        a(f"v_mov_b32 v{z}, 0")
        a(f"v_mov_b32 v{d}, s60")
        a(f"buffer_store_dword v{d}, v{z}, s[96:99], s62 offen offset:120")
        a(f"v_mov_b32 v{d}, s58")
        a(f"buffer_store_dword v{d}, v{z}, s[96:99], s62 offen offset:124")
        for i in range(self.n):
            a(f"v_mov_b32 v{d}, s{64+2*i}")
            a(f"buffer_store_dword v{d}, v{z}, s[96:99], s62 offen offset:{4*i}")

STF = os.environ.get("STF", " sc1")

SLP = int(os.environ.get('SLP', '10'))
SLPA = int(os.environ.get('SLPA', '0'))
WS_CNT = 17*MB
def cnt_srd(a, wsptr):
    srd(a, 52, wsptr, 8192, add=WS_CNT)
FLG = int(os.environ.get('FLG', '0'))
def sig(a, tag, idx_sgpr, base, slot=None):
    a("s_waitcnt vmcnt(0)")
    a("s_barrier")
    a("s_cmp_eq_u32 s20, 0")
    a(f"s_cbranch_scc0 L_sig_{tag}")
    a(f"s_lshl_b32 s56, s{idx_sgpr}, 7")
    a(f"s_add_u32 s56, s56, {base}")
    a("v_mov_b32 v5, 0")
    a("v_mov_b32 v6, 1")
    if FLG:
        slot()
        a("s_lshl_b32 s57, s57, 2")
        a("s_add_u32 s56, s56, s57")
    a("s_mov_b64 exec, 1")
    if FLG: a("buffer_store_dword v6, v5, s[52:55], s56 offen sc1")
    else:   a("buffer_atomic_add v6, v5, s[52:55], s56 offen sc1")
    a("s_mov_b64 exec, -1")
    a.label(f"L_sig_{tag}")
PP = int(os.environ.get('PP', '0'))
PPS = int(os.environ.get('PPS', '6'))
def waitcnt(a, tag, idx_sgpr, base, target, preg=6):
    if not PP: preg = 6
    a("s_cmp_eq_u32 s20, 0")
    a(f"s_cbranch_scc0 L_wt_{tag}")
    a(f"s_lshl_b32 s56, s{idx_sgpr}, 7")
    a(f"s_add_u32 s56, s56, {base}")
    a("v_lshlrev_b32 v5, 2, v1" if FLG else "v_mov_b32 v5, 0")
    a("s_mov_b32 s57, 0")
    if FLG:
        a(f"s_mov_b32 exec_lo, {hex((1 << target) - 1)}")
        a("s_mov_b32 exec_hi, 0")
    ld = f"buffer_load_dword v{preg}, v5, s[52:55], s56 offen sc1"
    if PP:
        for _ in range(2):
            a(ld)
            a(f"s_sleep {PPS}")
    if SLP and SLPA: a(f"s_branch L_spin1_{tag}")
    a.label(f"L_spin_{tag}")
    if SLP: a(f"s_sleep {SLP}")
    if SLP and SLPA: a.label(f"L_spin1_{tag}")
    a(ld)
    a("s_add_u32 s57, s57, 1")
    a(f"s_waitcnt vmcnt({2 if PP else 0})")
    if FLG:
        a(f"v_cmp_ne_u32 vcc, 1, v{preg}")
        a("s_cmp_ge_u32 s57, 40000")
        a(f"s_cbranch_scc1 L_wx_{tag}")
        a("s_cmp_eq_u64 vcc, 0")
        a(f"s_cbranch_scc0 L_spin_{tag}")
        a.label(f"L_wx_{tag}")
        a("s_mov_b64 exec, -1")
    else:
        a(f"v_readfirstlane_b32 s38, v{preg}")
        a("s_cmp_ge_u32 s57, 40000")
        a(f"s_cbranch_scc1 L_wt_{tag}")
        a(f"s_cmp_lt_u32 s38, {target}")
        a(f"s_cbranch_scc1 L_spin_{tag}")
    a.label(f"L_wt_{tag}")
    a("s_barrier")
```

```python
from dsl import *

PF = int(os.environ.get("PF", "1"))
AD = 0
PRIO = os.environ.get("PRIO", "33333333333333333333333322221110")
SWP = int(os.environ.get("SWP", "1"))
OZ = int(os.environ.get("OZ", "1"))
M0 = int(os.environ.get("M0", "1"))
FB = int(os.environ.get("FB", "0"))
def attn(a=None):
    name = "k2_attn_kernel"
    MG = a is not None
    if not MG: a = Asm()
    M3 = MG and MERGE >= 3
    tk = Ticks(a, 1)
    ONES = 131072; SCR = ONES + 4608
    Q, KF, VF, P, S, O, NM = 8, [12, 16], [20, 28], [36, 44], [52, 68], 84, 100
    T0 = 116
    if not MG:
        a("s_cmp_ge_u32 s2, 256")
        a(f"s_cbranch_scc1 L_{name}_end")
    a("s_load_dwordx2 s[30:31], s[0:1], %d" % KA['ws'])
    a("s_load_dwordx2 s[44:45], s[0:1], %d" % KA['wo'])
    a("s_load_dwordx2 s[46:47], s[0:1], %d" % KA['w1'])
    a("s_load_dwordx2 s[48:49], s[0:1], %d" % KA['w2'])
    a("s_and_b32 s23, s2, 7")
    a("s_lshr_b32 s38, s2, 3")
    a("s_and_b32 s38, s38, 3")
    a("s_lshl_b32 s38, s38, 3")
    a("s_add_u32 s23, s23, s38")
    a("s_lshr_b32 s24, s2, 5")
    tk.tick()
    a("v_and_b32 v1, 63, v0")
    a("v_lshrrev_b32 v2, 6, v0")
    a("s_nop 0")
    a("v_readfirstlane_b32 s20, v2")
    a("s_nop 3")
    a("s_and_b32 s21, s20, 7")
    a("s_lshr_b32 s22, s20, 3")
    a("v_lshlrev_b32 v4, 4, v1")
    a("s_lshr_b32 s38, s20, 1")
    a("s_and_b32 s38, s38, 1")
    a("s_lshl_b32 s38, s38, 5")
    a("s_lshr_b32 s35, s20, 2")
    if AD:
        a("s_lshl_b32 s39, s35, 1")
        a("s_mul_i32 s52, s35, 4")
        a("s_add_u32 s52, s52, 8")
        a("s_lshl_b32 s52, s52, 10")
    else:
        a("s_lshl_b32 s39, s35, 3")
    a("s_add_u32 s38, s38, s39")
    a("s_lshl_b32 s38, s38, 10")
    a("s_and_b32 s39, s20, 1")
    a("s_lshl_b32 s25, s39, 16")
    a("s_add_u32 s25, s25, s38")
    a("s_lshl_b32 s26, s39, 21")
    a("s_add_u32 s26, s26, s38")
    a("s_lshl_b32 s39, s23, 16")
    a("s_add_u32 s26, s26, s39")
    a("s_lshl_b32 s27, s24, 3")
    a("s_add_u32 s27, s27, s21")
    a("s_lshl_b32 s28, s27, 10")
    a("s_add_u32 s28, s28, s39")
    a("s_waitcnt lgkmcnt(0)")
    srd(a, 4, 30, 4*MB, add=WS_KF)
    srd(a, 8, 30, 2*MB, add=WS_QF)
    srd(a, 12, 30, 2*MB, add=WS_OF)
    if not M3: a(f"buffer_load_dwordx4 {vr(Q,4)}, v4, s[8:11], s28 offen")
    srd(a, 40, 44, 512*512*2)
    a("s_lshr_b32 s51, s2, 3")
    a("s_lshl_b32 s51, s51, 4")
    a("s_add_u32 s51, s51, s20")
    a("s_lshl_b32 s51, s51, 10")
    a("s_mov_b32 s50, s51")
    def kvdma():
        for r in range(8):
            a(f"s_add_u32 m0, s25, {(r&3)*1024 + (r>>2)*4096}")
            if (r & 3) == 0: a(f"s_add_u32 s38, s26, {(r>>2)*4096}")
            a(f"buffer_load_dwordx4 v4, s[4:7], s38 offen offset:{(r&3)*1024} lds" if False else f"buffer_load_dwordx4 v4, s[4:7], s38 offen lds")
            if (r & 3) != 3: a("s_add_u32 s38, s38, 1024")
    def kvdma2(n, ls, gs):
        for r in range(n):
            a(f"s_add_u32 m0, {ls}, {r*1024}")
            a(f"s_add_u32 s38, {gs}, {r*1024}")
            a(f"buffer_load_dwordx4 v4, s[4:7], s38 offen lds")
    if AD:
        kvdma2(2, "s25", "s26")
        a("s_barrier")
        a("s_add_u32 s25, s25, s52")
        a("s_add_u32 s26, s26, s52")
        kvdma2(6, "s25", "s26")
    elif not M3:
        a("s_cmp_eq_u32 s35, 0")
        a("s_cbranch_scc0 L_attn_nodma0")
        kvdma()
        a.label("L_attn_nodma0")
    if OZ:
        a("v_and_b32 v6, 5, v0")
        a("v_cmp_eq_u32 vcc, 0, v6")
        a("v_mov_b32 v5, 0x3f80")
        a("v_cndmask_b32 v5, 0, v5, vcc")
    else:
        a("v_mov_b32 v5, 0x3f803f80")
    a("v_lshlrev_b32 v6, 2, v0")
    a(f"v_add_u32 v6, {ONES}, v6")
    a("ds_write_b32 v6, v5")
    a("ds_write_b32 v6, v5 offset:512")
    a("s_lshl_b32 s29, s22, 15")
    a("v_add_u32 v2, s29, v4")
    a("v_lshrrev_b32 v5, 5, v1")
    a("v_and_b32 v6, 15, v1")
    a("v_lshlrev_b32 v6, 3, v6")
    a("v_lshlrev_b32 v3, 7, v5")
    a("v_add_u32 v3, v3, v6")
    a("v_xor_b32 v7, 128, v3")
    a(f"v_add_u32 v7, {ONES}, v7")
    a("s_add_u32 s38, s29, 65536")
    a("v_add_u32 v3, s38, v3")
    a("v_and_b32 v6, 16, v1")
    a("v_cmp_ne_u32 vcc, 0, v6")
    a("s_nop 1")
    a("v_cndmask_b32 v3, v3, v7, vcc")
    a("v_mov_b32 v6, 4096")
    a("v_cndmask_b32 v7, v6, 0, vcc")
    a("v_mov_b32 v5, v3")
    a("v_mov_b32 v6, v2")
    a("s_mov_b32 s33, 0")
    def maxtree(dst, src, init):
        if init:
            a(f"v_max3_f32 v{dst}, v{src}, v{src+1}, v{src+2}")
            rest = list(range(src+3, src+16))
        else:
            rest = list(range(src, src+16))
        while len(rest) >= 2:
            a(f"v_max3_f32 v{dst}, v{dst}, v{rest[0]}, v{rest[1]}"); rest = rest[2:]
        if rest: a(f"v_max_f32 v{dst}, v{dst}, v{rest[0]}")
    def zero_init():
        for r in range(16): a(f"v_mov_b32 v{O+r}, 0")
        for r in range(8):
            a(f"v_mov_b32 v{P[1]+r}, 0")
            a(f"v_mov_b32 v{VF[1]+r}, 0")
    def setmax():
        a(f"v_mov_b32 v{T0+1}, v{T0}")
        a("s_nop 1")
        a(f"v_permlane32_swap_b32 v{T0}, v{T0+1}")
        a("s_nop 1")
        a(f"v_max_f32 v{T0}, v{T0}, v{T0+1}")
        for r in range(16): a(f"v_sub_f32 v{NM+r}, 0, v{T0}")
    def mainloop(first, C, tag):
        a(f"ds_read_b128 {vr(KF[0],4)}, v2")
        a(f"ds_read_b128 {vr(KF[1],4)}, v2 offset:1024")
        a("s_waitcnt lgkmcnt(1)")
        a(f"v_mfma_f32_32x32x16_bf16 {vr(S[0],16)}, {vr(KF[0],4)}, {vr(Q,4)}, {C}")
        a("s_nop 7")
        a("s_mov_b32 s32, 0")
        if PRIO: a(f"s_setprio {PRIO[0]}")
        if first: tk.tick()
        a.label(f"L_attn_loop{tag}")
        if first:
            a("s_cmp_eq_u32 s32, 1")
            a("s_cbranch_scc0 L_attn_nosync")
            tk.tick()
            a("s_waitcnt vmcnt(0)")
            a("s_barrier")
            tk.tick()
            a.label("L_attn_nosync")
            if PF:
                a("s_cmp_eq_u32 s32, 0")
                a("s_cbranch_scc1 L_attn_nopf")
                a("s_cmp_eq_u32 s32, 2")
                a("s_cselect_b32 s40, s46, s40")
                a("s_cselect_b32 s41, s47, s41")
                a(f"s_cselect_b32 s42, {512*1376*2}, s42")
                a("s_cselect_b32 s50, s51, s50")
                a("s_cmp_eq_u32 s32, 5")
                a("s_cselect_b32 s40, s48, s40")
                a("s_cselect_b32 s41, s49, s41")
                a("s_cselect_b32 s50, s51, s50")
                a("buffer_load_dwordx4 v[124:127], v4, s[40:43], s50 offen")
                a("s_add_u32 s50, s50, 0x80000")
                a.label("L_attn_nopf")
        def setprio(half):
            if not PRIO: return
            for it in range(8):
                k = 4*it + half
                if k == 0 or PRIO[k] == PRIO[k-1]: continue
                a(f"s_cmp_eq_u32 s32, {it}")
                a(f"s_cbranch_scc0 L_attn_p{tag}_{k}")
                a(f"s_setprio {PRIO[k]}")
                a.label(f"L_attn_p{tag}_{k}")
        if PRIO: a(f"s_setprio {PRIO[0]}")  if False else None
        for u in range(4):
            p = u & 1
            setprio(u)
            a("s_waitcnt lgkmcnt(0)")
            a(f"v_mfma_f32_32x32x16_bf16 {vr(S[p^1],16)}, {vr(KF[p^1],4)}, {vr(Q,4)}, {C}")
            a(f"ds_read_b128 {vr(KF[p],4)}, v2 offset:{(u+2)*1024}")
            for r in range(4):
                a(f"ds_read_b64_tr_b16 {vr(VF[p]+2*r,2)}, v3 offset:{u*1024 + r*256}")
            s = S[p]
            for i in range(8):
                a(f"v_exp_f32 v{s+2*i}, v{s+2*i}")
                a(f"v_exp_f32 v{s+2*i+1}, v{s+2*i+1}")
                if i > 0: a(f"v_cvt_pk_bf16_f32 v{P[p]+i-1}, v{s+2*i-2}, v{s+2*i-1}")
                if i == 2: a(f"v_mfma_f32_32x32x16_bf16 {vr(O,16)}, {vr(VF[p^1],4)}, {vr(P[p^1],4)}, {vr(O,16)}")
                if i == 5: a(f"v_mfma_f32_32x32x16_bf16 {vr(O,16)}, {vr(VF[p^1]+4,4)}, {vr(P[p^1]+4,4)}, {vr(O,16)}")
            a("s_nop 0")
            a(f"v_cvt_pk_bf16_f32 v{P[p]+7}, v{s+14}, v{s+15}")
        a("v_add_u32 v2, 4096, v2")
        a("v_add_u32 v3, v3, v7")
        a("s_add_u32 s32, s32, 1")
        a("s_cmp_lt_u32 s32, 8")
        a(f"s_cbranch_scc1 L_attn_loop{tag}")
        a("s_waitcnt lgkmcnt(0)")
        a(f"v_mfma_f32_32x32x16_bf16 {vr(O,16)}, {vr(VF[1],4)}, {vr(P[1],4)}, {vr(O,16)}")
        a(f"v_mfma_f32_32x32x16_bf16 {vr(O,16)}, {vr(VF[1]+4,4)}, {vr(P[1]+4,4)}, {vr(O,16)}")
        a("s_nop 15")
        a("s_nop 3")
    if M0:
        a(f"v_mov_b32 v{T0}, 0")
        zero_init()
    if M3:
        cnt_srd(a, 30)
        a("s_cmp_eq_u32 s20, 0")
        a("s_cbranch_scc0 L_wt_c1")
        if FLG:
            a("v_lshrrev_b32 v52, 4, v1")
            a("v_lshlrev_b32 v52, 5, v52")
        else:
            a("v_lshlrev_b32 v52, 5, v1")
        a("v_add_u32 v52, s23, v52")
        a("v_mul_u32_u24 v52, 43, v52")
        a("v_lshrrev_b32 v52, 8, v52")
        a("v_lshlrev_b32 v52, 7, v52")
        if FLG:
            a("v_and_b32 v53, 15, v1")
            a("v_lshlrev_b32 v53, 2, v53")
            a("v_add_u32 v52, v52, v53")
        a("s_movk_i32 s56, 6144")
        a("s_mov_b32 s57, 0")
        if FLG:
            a("s_mov_b32 exec_lo, -1")
            a("s_mov_b32 exec_hi, 0xffff")
        else:
            a("s_mov_b64 exec, 7")
        if PP:
            for _ in range(2):
                a("buffer_load_dword v53, v52, s[52:55], s56 offen sc1")
                a(f"s_sleep {PPS}")
        if SLP and SLPA: a("s_branch L_spin1_c1")
        a.label("L_spin_c1")
        if SLP: a(f"s_sleep {SLP}")
        if SLP and SLPA: a.label("L_spin1_c1")
        a("buffer_load_dword v53, v52, s[52:55], s56 offen sc1")
        a("s_add_u32 s57, s57, 1")
        a(f"s_waitcnt vmcnt({2 if PP else 0})")
        a("v_cmp_ne_u32 vcc, 1, v53" if FLG else "v_cmp_gt_u32 vcc, 16, v53")
        a("s_cmp_ge_u32 s57, 40000")
        a("s_cbranch_scc1 L_spun_c1")
        a("s_cmp_eq_u64 vcc, 0")
        a("s_cbranch_scc0 L_spin_c1")
        a.label("L_spun_c1")
        a("s_mov_b64 exec, -1")
        a.label("L_wt_c1")
        a("s_barrier")
        a(f"buffer_load_dwordx4 {vr(Q,4)}, v4, s[8:11], s28 offen")
        a("s_cmp_eq_u32 s35, 0")
        a("s_cbranch_scc0 L_attn_nodma0")
        kvdma()
        a.label("L_attn_nodma0")
    tk.tick()
    a("s_waitcnt vmcnt(0) lgkmcnt(0)")
    a("s_barrier")
    tk.tick()
    a("s_cmp_eq_u32 s35, 0")
    a("s_cbranch_scc1 L_attn_nodma1")
    kvdma()
    a.label("L_attn_nodma1")
    if M0:
        mainloop(True, "0", "")
    else:
        a(f"ds_read_b128 {vr(KF[0],4)}, v2")
        a("s_waitcnt lgkmcnt(0)")
        a(f"v_mfma_f32_32x32x16_bf16 {vr(S[0],16)}, {vr(KF[0],4)}, {vr(Q,4)}, 0")
        a("s_nop 15")
        a("s_nop 3")
        maxtree(T0, S[0], True)
        setmax()
        zero_init()
        mainloop(True, vr(NM,16), "")
    tk.tick()
    a(f"v_mul_f32 v{T0+1}, 0, v{O}")
    a(f"v_mul_f32 v{T0+2}, 0, v{O+1}")
    a("s_mov_b32 s34, 0x5f800000")
    a(f"v_cmp_nle_f32 s[36:37], v{O+8}, s34")
    a("s_mov_b32 s34, 0x21800000")
    a(f"v_cmp_nge_f32 s[38:39], v{O+8}, s34")
    for r in range(2, 8):
        a(f"v_fma_f32 v{T0+1+(r&1)}, v{O+r}, 0, v{T0+1+(r&1)}")
    a(f"v_add_f32 v{T0+1}, v{T0+1}, v{T0+2}")
    a("s_or_b64 s[36:37], s[36:37], s[38:39]")
    a(f"v_cmp_u_f32 vcc, v{T0+1}, v{T0+1}")
    a("s_or_b64 s[36:37], s[36:37], vcc")
    a("s_cmp_eq_u64 s[36:37], 0")
    if not FB: a("s_cbranch_scc1 L_attn_done")
    a("s_waitcnt vmcnt(0)")
    a("v_mov_b32 v2, v6")
    a(f"v_mov_b32 v{T0}, 0xff800000")
    a("s_mov_b32 s32, 0")
    a.label("L_attn_maxloop")
    a(f"ds_read_b128 {vr(KF[0],4)}, v2")
    a("s_waitcnt lgkmcnt(0)")
    a(f"v_mfma_f32_32x32x16_bf16 {vr(S[0],16)}, {vr(KF[0],4)}, {vr(Q,4)}, 0")
    a("s_nop 15")
    a("s_nop 3")
    maxtree(T0, S[0], False)
    a("v_add_u32 v2, 1024, v2")
    a("s_add_u32 s32, s32, 1")
    a("s_cmp_lt_u32 s32, 32")
    a("s_cbranch_scc1 L_attn_maxloop")
    setmax()
    zero_init()
    a("v_mov_b32 v2, v6")
    a("v_mov_b32 v3, v5")
    mainloop(False, vr(NM,16), "2")
    a.label("L_attn_done")
    a("s_mul_i32 s38, s21, 2560")
    a(f"s_add_u32 s38, s38, {SCR}")
    a("v_add_u32 v2, s38, v4")
    a("v_lshlrev_b32 v3, 3, v1")
    a("v_add_u32 v3, s38, v3")
    a(f"v_mov_b32 v{O+9}, v{T0}")
    a("s_lshl_b32 s38, s27, 5")
    a("s_add_u32 s38, s38, s23")
    a("s_lshl_b32 s38, s38, 10")
    a("s_mov_b32 s33, s22")
    a("s_cmp_eq_u32 s22, 0")
    a("s_cselect_b64 exec, 0, -1")
    a(f"ds_write_b128 v2, {vr(O,4)}")
    a(f"ds_write_b128 v2, {vr(O+4,4)} offset:1024")
    a(f"ds_write_b64 v3, {vr(O+8,2)} offset:2048")
    a("s_waitcnt lgkmcnt(0)")
    a("s_cbranch_scc1 L_attn_comb")
    a("s_barrier")
    a(f"s_branch L_attn_fin")
    a.label("L_attn_comb")
    a(f"ds_read_b64 {vr(S[0]+8,2)}, v3 offset:2048")
    a(f"ds_read_b128 {vr(S[0],4)}, v2")
    a(f"ds_read_b128 {vr(S[0]+4,4)}, v2 offset:1024")
    a("s_waitcnt lgkmcnt(2)")
    m1 = S[0] + 9
    a(f"v_max_f32 v{T0+1}, v{T0}, v{m1}")
    a(f"v_sub_f32 v{T0+2}, v{T0}, v{T0+1}")
    a(f"v_sub_f32 v{T0+3}, v{m1}, v{T0+1}")
    a(f"v_exp_f32 v{T0+2}, v{T0+2}")
    a(f"v_exp_f32 v{T0+3}, v{T0+3}")
    a("s_nop 0")
    a(f"v_mul_f32 v{O+8}, v{O+8}, v{T0+2}")
    a(f"v_fma_f32 v{O+8}, v{S[0]+8}, v{T0+3}, v{O+8}")
    a(f"v_rcp_f32 v{T0+4}, v{O+8}")
    a("s_nop 0")
    a(f"v_mul_f32 v{T0+2}, v{T0+2}, v{T0+4}")
    a(f"v_mul_f32 v{T0+3}, v{T0+3}, v{T0+4}")
    for r in range(8): a(f"v_mul_f32 v{O+r}, v{O+r}, v{T0+2}")
    a("s_waitcnt lgkmcnt(0)")
    for r in range(8):
        a(f"v_fma_f32 v{O+r}, v{S[0]+r}, v{T0+3}, v{O+r}")
    for j in range(4): a(f"v_cvt_pk_bf16_f32 v{P[0]+j}, v{O+2*j}, v{O+2*j+1}")
    a(f"buffer_store_dwordx4 {vr(P[0],4)}, v4, s[12:15], s38 offen" + STF)
    a("s_cmp_eq_u32 s33, 2")
    a("s_cbranch_scc1 L_attn_fin")
    a("s_mov_b32 s33, 2")
    a("s_mov_b64 exec, -1")
    a("s_barrier")
    a("s_branch L_attn_comb")
    a.label("L_attn_fin")
    tk.tick()
    if MG:
        a("s_cmp_eq_u32 s22, 0")
        a("s_cbranch_scc1 L_attn_cont")
        tk.z = 2
        n = tk.n
        tk.tick(); tk.dump(20)
        a("s_endpgm")
        a.label("L_attn_cont")
        tk.n = n
        cnt_srd(a, 30)
        sig(a, "c2", 24, 4096, lambda: a("s_mov_b32 s57, s23"))
        tk.z = 8
        tk.tick(); tk.dump(20)
        return
    a("s_waitcnt vmcnt(0)")
    tk.tick()
    tk.dump(20)
    a.label(f"L_{name}_end")
    a("s_endpgm")
    return name, kernel_wrap(name, a.text(), 128, 100 if TICK else 64), SCR + 8*2560
```

```python
import os
from dsl import *

def gemm64(mode, a=None):
    op = mode == "oproj"
    name = "k3_oproj_kernel" if op else "k5_ffn2_kernel"
    nks = 32 if op else 86
    nchunk = (nks + 7) // 8
    nslot = 4 if op else 5
    kspitch = 32 if op else AF_KS
    MG = a is not None
    if not MG: a = Asm()
    tk = Ticks(a, 2 if op else 4)
    if MG: tk.z = 26
    if not MG:
        a("s_cmp_ge_u32 s2, 256")
        a(f"s_cbranch_scc1 L_{name}_end")
    a("s_load_dwordx2 s[30:31], s[0:1], %d" % KA['ws'])
    a("s_load_dwordx2 s[32:33], s[0:1], %d" % (KA['wo'] if op else KA['w2']))
    a("s_load_dwordx2 s[34:35], s[0:1], %d" % (KA['x'] if op else KA['out']))
    a("s_and_b32 s3, s2, 7")
    a("s_lshr_b32 s38, s2, 3")
    a("s_lshl_b32 s23, s3, 2")
    a("s_and_b32 s39, s38, 3")
    a("s_add_u32 s23, s23, s39")
    a("s_lshr_b32 s24, s38, 2")
    tk.tick()
    a("v_and_b32 v1, 63, v0")
    a("v_lshrrev_b32 v2, 6, v0")
    a("s_nop 0")
    a("v_readfirstlane_b32 s20, v2")
    a("s_nop 3")
    a("s_and_b32 s21, s20, 1")
    a("s_lshr_b32 s22, s20, 2")
    a("s_lshr_b32 s25, s20, 1")
    a("s_and_b32 s25, s25, 1")
    a("v_and_b32 v2, 31, v1")
    a("v_lshrrev_b32 v3, 5, v1")
    a("s_lshl_b32 s38, s23, 1")
    a(f"s_mul_i32 s38, s38, {kspitch}")
    a("s_add_u32 s38, s38, s20")
    a("s_lshl_b32 s38, s38, 10")
    a("v_lshlrev_b32 v4, 4, v1")
    a("v_add_u32 v10, s38, v4")
    a(f"v_add_u32 v11, {kspitch*1024}, v10")
    a("v_lshrrev_b32 v5, 3, v1")
    a("s_lshl_b32 s38, s20, 4")
    a("v_add_u32 v5, s38, v5")
    a("v_lshlrev_b32 v5, 10, v5")
    a("v_lshrrev_b32 v6, 4, v1")
    a("v_and_b32 v6, 1, v6")
    a("v_lshlrev_b32 v6, 2, v6")
    a("v_and_b32 v7, 7, v1")
    a("v_xor_b32 v6, v6, v7")
    a("v_lshlrev_b32 v6, 4, v6")
    a("v_add_u32 v5, v5, v6")
    a("s_lshl_b32 s38, s24, 7")
    a("v_add_u32 v12, s38, v5")
    a("s_lshl_b32 s40, s23, 1")
    a("s_add_u32 s40, s40, s21")
    a("s_lshl_b32 s41, s24, 2")
    a("s_lshl_b32 s38, s25, 1")
    a("s_add_u32 s41, s41, s38")
    a("s_add_u32 s41, s41, s22")
    a("s_lshl_b32 s42, s40, 5")
    a("s_add_u32 s42, s42, s41")
    a("s_lshl_b32 s42, s42, 10")
    a("s_lshl_b32 s43, s40, 15")
    a("s_lshl_b32 s38, s41, 5")
    a("s_add_u32 s43, s43, s38")
    a("v_lshlrev_b32 v8, 10, v2")
    a("s_waitcnt lgkmcnt(0)")
    if op:
        srd(a, 4, 30, 2*MB, add=WS_OF)
        srd(a, 12, 30, 2*MB, add=WS_HF)
        srd(a, 16, 34, 2*MB)
    else:
        srd(a, 4, 30, 64*AF_KS*1024, add=WS_AF)
        srd(a, 12, 34, 2*MB)
        srd(a, 16, 30, 2*MB, add=WS_HF)
    srd(a, 8, 32, nks*16*1024)
    RES = 28
    if op:
        a("v_lshlrev_b32 v13, 4, v3")
        a("v_add_u32 v13, v13, v8")
    else:
        a(f"buffer_load_dwordx4 v[{RES}:{RES+3}], v4, s[16:19], s42 offen")
    a("s_lshl_b32 s26, s20, 11")
    issued = []
    def piece(c, p):
        slot = c % nslot
        i = p & 1
        if p < 2:
            a(f"s_add_u32 m0, s26, {slot*32768 + i*1024}")
            a(f"s_movk_i32 s38, {c*8192}" if c*8192 < 32768 else f"s_mov_b32 s38, {c*8192}")
            a(f"buffer_load_dwordx4 v{10+i}, s[4:7], s38 offen lds")
        else:
            a(f"s_add_u32 m0, s26, {slot*32768 + 16384 + i*1024}")
            a(f"s_mov_b32 s38, {c*131072 + i*8192}")
            a(f"buffer_load_dwordx4 v12, s[8:11], s38 offen lds")
        issued.append(c)
    def younger(c):
        last = max(i for i, x in enumerate(issued) if x == c)
        return len(issued) - 1 - last
    PRO = 4 if op else int(os.environ.get("PRO64", "3"))
    if MG: cnt_srd(a, 30)
    if MG and (not op or MERGE >= 2):
        for c in range(PRO):
            for p in (2, 3): piece(c, p)
        if op:
            a("s_lshr_b32 s39, s23, 2")
            waitcnt(a, "c2", 39, 4096, 32, preg=127)
        else:
            a("s_lshr_b32 s39, s23, 1")
            waitcnt(a, "c4", 39, 2048, 15, preg=127)
        for c in range(PRO):
            for p in (0, 1): piece(c, p)
    else:
        for c in range(PRO):
            for p in range(4): piece(c, p)
    nextc = [PRO]
    tk.tick()
    a("s_lshl_b32 s38, s22, 13")
    a("s_lshl_b32 s39, s21, 10")
    a("s_add_u32 s38, s38, s39")
    a("v_add_u32 v17, s38, v4")
    a("v_and_b32 v5, 15, v1")
    a("v_lshrrev_b32 v6, 2, v5")
    a(f"v_lshlrev_b32 v7, {3 if op else 2}, v3")
    a("v_add_u32 v6, v6, v7")
    a("s_lshl_b32 s38, s22, 6")
    a("v_add_u32 v6, s38, v6")
    a("v_lshlrev_b32 v6, 7, v6")
    a("v_lshrrev_b32 v7, 4, v1")
    a("v_and_b32 v7, 1, v7")
    a("v_xor_b32 v7, s22, v7")
    a("v_lshlrev_b32 v7, 1, v7")
    a("v_bfe_u32 v9, v5, 1, 1")
    a("v_add_u32 v7, v7, v9")
    a("s_lshl_b32 s38, s25, 2")
    a("v_add_u32 v7, s38, v7")
    a("v_lshrrev_b32 v9, 3, v5")
    a("v_lshlrev_b32 v9, 2, v9")
    a("v_xor_b32 v7, v7, v9")
    a("v_lshlrev_b32 v7, 4, v7")
    a("v_add_u32 v6, v6, v7")
    a("v_and_b32 v7, 1, v5")
    a("v_lshlrev_b32 v7, 3, v7")
    a("v_add_u32 v6, v6, v7")
    a("v_add_u32 v21, 16384, v6")
    a("v_add_u32 v18, 0x10000, v17")
    a("v_add_u32 v22, 0x10000, v21")
    a("v_add_u32 v19, 0x20000, v17")
    a("v_add_u32 v23, 0x20000, v21")
    halfrow = 4 if op else 8
    ACC = 48
    for r in range(ACC, ACC+16): a(f"v_mov_b32 v{r}, 0")
    AF = [32, 36]; WF = [40, 44]
    def reads(c, s, buf):
        slot = c % nslot
        hi = slot // 2; off = (slot % 2) * 32768
        a(f"ds_read_b128 {vr(AF[buf],4)}, v{17+hi} offset:{off + s*2048}")
        for hf in range(2):
            a(f"ds_read_b64_tr_b16 {vr(WF[buf]+2*hf,2)}, v{21+hi} offset:{off + (16*s + halfrow*hf)*128}")
    def compute(buf):
        a(f"v_mfma_f32_32x32x16_bf16 {vr(ACC,16)}, {vr(WF[buf],4)}, {vr(AF[buf],4)}, {vr(ACC,16)}")
    for c in range(nchunk):
        a(f"s_waitcnt vmcnt({younger(c)})")
        a("s_barrier")
        tk.tick()
        pend = []
        while nextc[0] < nchunk and nextc[0] <= c + nslot - 1:
            pend += [(nextc[0], p) for p in range(4)]
            nextc[0] += 1
        per = (len(pend) + 3) // 4
        last = (c == nchunk - 1) and (nks % 8 != 0)
        reads(c, 0, 0)
        for s in range(4):
            if last and s == 2:
                a("s_waitcnt lgkmcnt(0)")
                a("s_cmp_eq_u32 s22, 1")
                a(f"s_cbranch_scc1 L_{name}_kdone")
            if s < 3:
                reads(c, s+1, (s+1) & 1)
                a("s_waitcnt lgkmcnt(3)")
            else:
                a("s_waitcnt lgkmcnt(0)")
            compute(s & 1)
            for _ in range(per):
                if pend: piece(*pend.pop(0))
        assert not pend
        if op and c == 0:
            a(f"buffer_load_dwordx4 v[{RES}:{RES+3}], v13, s[16:19], s43 offen")
            issued.append("res")
    a.label(f"L_{name}_kdone")
    tk.tick()
    a("s_barrier")
    a("s_lshl_b32 s38, s20, 11")
    a("v_add_u32 v5, s38, v4")
    a("s_nop 7")
    a("s_nop 3")
    for q in range(2):
        a(f"ds_write_b128 v5, {vr(ACC+8+4*q,4)} offset:{q*1024}")
    a("s_waitcnt lgkmcnt(0)")
    a("s_barrier")
    a("s_xor_b32 s39, s20, 4")
    a("s_lshl_b32 s38, s39, 11")
    a("v_add_u32 v5, s38, v4")
    for q in range(2):
        a(f"ds_read_b128 {vr(32+4*q,4)}, v5 offset:{q*1024}")
    a("s_waitcnt vmcnt(0) lgkmcnt(0)")
    if op:
        a(f"v_permlane32_swap_b32 v{RES}, v{RES+2}")
        a(f"v_permlane32_swap_b32 v{RES+1}, v{RES+3}")
    for j in range(8):
        src = RES + (j >> 1)
        if j & 1: a(f"v_and_b32 v{40+j}, 0xffff0000, v{src}")
        else:     a(f"v_lshlrev_b32 v{40+j}, 16, v{src}")
        a(f"v_add_f32 v{ACC+j}, v{ACC+j}, v{32+j}")
        a(f"v_add_f32 v{ACC+j}, v{ACC+j}, v{40+j}")
    for j in range(4):
        a(f"v_cvt_pk_bf16_f32 v{32+j}, v{ACC+2*j}, v{ACC+2*j+1}")
    if op:
        a(f"buffer_store_dwordx4 v[32:35], v4, s[12:15], s42 offen" + STF)
        if KS3:
            STX = 16384
            a(f"v_mul_f32 v25, v{ACC}, v{ACC}")
            a(f"v_add_f32 v24, v{ACC}, v{ACC+1}")
            a(f"v_fmac_f32 v25, v{ACC+1}, v{ACC+1}")
            for j in range(2, 8):
                a(f"v_add_f32 v24, v24, v{ACC+j}")
                a(f"v_fmac_f32 v25, v{ACC+j}, v{ACC+j}")
            a("s_lshl_b32 s38, s20, 9")
            a("v_lshlrev_b32 v6, 3, v1")
            a("v_add_u32 v6, s38, v6")
            a(f"ds_write_b64 v6, v[24:25] offset:{STX}")
            srd(a, 4, 30, 128*1024, add=WS_ST)
            a("s_lshl_b32 s44, s40, 11")
            a("s_lshr_b32 s38, s24, 1")
            a("s_lshl_b32 s38, s38, 9")
            a("s_add_u32 s44, s44, s38")
            a("s_and_b32 s38, s24, 1")
            a("s_lshl_b32 s38, s38, 3")
            a("s_add_u32 s44, s44, s38")
            a("v_lshlrev_b32 v7, 4, v2")
            a("v_lshlrev_b32 v9, 2, v3")
            a("v_add_u32 v7, v7, v9")
            a("s_waitcnt lgkmcnt(0)")
            a("s_barrier")
            a("s_cmp_ge_u32 s20, 2")
            a(f"s_cbranch_scc1 L_{name}_nost")
            for q in range(4):
                a(f"ds_read_b64 v[{40+2*q}:{41+2*q}], v6 offset:{STX + q*1024}")
            a("v_cmp_eq_u32 vcc, 0, v3")
            a("s_waitcnt lgkmcnt(0)")
            a("v_add_f32 v40, v40, v42")
            a("v_add_f32 v41, v41, v43")
            a("v_add_f32 v44, v44, v46")
            a("v_add_f32 v45, v45, v47")
            a("v_add_f32 v40, v40, v44")
            a("v_add_f32 v41, v41, v45")
            a("v_mov_b32 v42, v40")
            a("v_mov_b32 v43, v41")
            a("s_nop 1")
            a("v_permlane32_swap_b32 v40, v42")
            a("v_permlane32_swap_b32 v41, v43")
            a("s_nop 1")
            a("v_add_f32 v40, v40, v42")
            a("v_add_f32 v41, v41, v43")
            a("v_cndmask_b32 v40, v41, v40, vcc")
            a("buffer_store_dword v40, v7, s[4:7], s44 offen" + STF)
            a.label(f"L_{name}_nost")
    else:
        a("v_lshlrev_b32 v9, 4, v3")
        a("v_add_u32 v9, v9, v8")
        a("v_permlane32_swap_b32 v32, v34")
        a("v_permlane32_swap_b32 v33, v35")
        a("s_nop 1")
        a(f"buffer_store_dwordx4 v[32:35], v9, s[12:15], s43 offen" + STF)
    tk.tick()
    if MG and op:
        a("s_lshr_b32 s39, s23, 1")
        def slot3():
            a("s_and_b32 s57, s23, 1")
            a("s_lshl_b32 s57, s57, 3")
            a("s_add_u32 s57, s57, s24")
        sig(a, "c3", 39, 0, slot3)
    else:
        a("s_waitcnt vmcnt(0)")
    tk.tick()
    tk.dump(20)
    a.label(f"L_{name}_end")
    if MG: return
    a("s_endpgm")
    return name, kernel_wrap(name, a.text(), 64, 100 if TICK else 64), nslot * 32768
```

```python
import os
from dsl import *

def gemm96(mode, a=None):
    qkv = mode == "qkv"
    name = "k1_qkv_kernel" if qkv else "k4_ffn1_kernel"
    NW = 1536 if qkv else 1376
    pitchW = NW * 2
    MG = a is not None
    if not MG: a = Asm()
    M3 = MG and qkv
    if M3:
        MG = False
        pos0 = len(a.lines)
        a("v_lshrrev_b32 v2, 6, v0")
        a("s_nop 0")
        a("v_readfirstlane_b32 s20, v2")
        a("s_nop 3")
        a("s_cmp_ge_u32 s20, 8")
        a("s_cbranch_scc1 L_helper")
    tk = Ticks(a, 0 if qkv else 3)
    if MG: tk.z = 36
    SL = 28672; NS = 4; WOFF = 16384; NCH = 8; LOOK = 3
    if not MG and not M3:
        a("s_cmp_ge_u32 s2, 256")
        a(f"s_cbranch_scc1 L_{name}_end")
    a("s_load_dwordx2 s[30:31], s[0:1], %d" % (KA['x'] if qkv else KA['ws']))
    a("s_load_dwordx2 s[32:33], s[0:1], %d" % (KA['wqkv'] if qkv else KA['w1']))
    a("s_load_dwordx2 s[34:35], s[0:1], %d" % KA['ws'])
    if not qkv: a("s_load_dwordx2 s[36:37], s[0:1], %d" % KA['b1'])
    a("s_and_b32 s3, s2, 7")
    a("s_lshr_b32 s38, s2, 3")
    a("s_lshr_b32 s23, s3, 1")
    a("s_lshl_b32 s23, s23, 2")
    a("s_and_b32 s39, s38, 3")
    a("s_add_u32 s23, s23, s39")
    a("s_and_b32 s24, s3, 1")
    a("s_lshl_b32 s24, s24, 3")
    a("s_lshr_b32 s39, s38, 2")
    a("s_add_u32 s24, s24, s39")
    if not qkv:
        a("s_cmp_ge_u32 s24, 15")
        a(f"s_cbranch_scc1 L_{name}_end")
    tk.tick()
    a("v_and_b32 v1, 63, v0")
    a("v_lshrrev_b32 v2, 6, v0")
    a("v_lshlrev_b32 v4, 4, v1")
    a("v_readfirstlane_b32 s20, v2")
    a("v_and_b32 v2, 31, v1")
    a("v_lshrrev_b32 v3, 5, v1")
    a("s_and_b32 s21, s20, 3")
    a("s_lshr_b32 s22, s20, 2")
    a("v_mul_u32_u24 v5, 43691, v1")
    a("v_lshrrev_b32 v5, 19, v5")
    a("v_mul_u32_u24 v6, 12, v5")
    a("v_sub_u32 v6, v1, v6")
    a("v_lshlrev_b32 v6, 4, v6")
    a("s_mul_i32 s39, s24, 192")
    a("v_add_u32 v6, s39, v6")
    if not qkv:
        a(f"v_min_u32 v6, {pitchW-16}, v6")
    a("s_lshl_b32 s38, s20, 3")
    a("v_add_u32 v5, s38, v5")
    a(f"v_mul_u32_u24 v5, {pitchW}, v5")
    a("v_add_u32 v14, v5, v6")
    if qkv:
        a("s_lshl_b32 s38, s23, 7")
        a("s_lshl_b32 s39, s20, 4")
        a("s_add_u32 s38, s38, s39")
        a("v_lshrrev_b32 v5, 3, v1")
        a("v_add_u32 v5, s38, v5")
        a("v_lshlrev_b32 v5, 10, v5")
        a("v_lshrrev_b32 v6, 4, v1")
        a("v_and_b32 v7, 7, v1")
        a("v_xor_b32 v6, v6, v7")
        a("v_lshlrev_b32 v7, 4, v6")
        a("v_add_u32 v10, v5, v7")
        a("v_xor_b32 v6, 4, v6")
        a("v_lshlrev_b32 v7, 4, v6")
        a("v_add_u32 v11, v5, v7")
        a("v_add_u32 v11, 8192, v11")
    else:
        a("s_lshl_b32 s38, s23, 2")
        a("s_lshr_b32 s39, s20, 1")
        a("s_add_u32 s38, s38, s39")
        a("s_lshl_b32 s38, s38, 5")
        a("s_and_b32 s39, s20, 1")
        a("s_lshl_b32 s39, s39, 1")
        a("s_add_u32 s38, s38, s39")
        a("s_lshl_b32 s38, s38, 10")
        a("v_add_u32 v10, s38, v4")
    a("s_lshl_b32 s25, s20, 11")
    a("s_mul_i32 s26, s20, 1536")
    a(f"s_add_u32 s26, s26, {WOFF}")
    a("s_mov_b32 s46, -1")
    a("s_mov_b32 s47, 0xffff")
    a("s_waitcnt lgkmcnt(0)")
    if qkv:
        srd(a, 4, 30, 2048*1024)
        srd(a, 12, 34, 6*MB)
    else:
        srd(a, 4, 30, 2*MB, add=WS_HF)
        srd(a, 12, 34, 64*AF_KS*1024, add=WS_AF)
        srd(a, 16, 36, 1376*2)
    srd(a, 8, 32, 512*pitchW)
    issued = []
    def piece(c, p):
        slot = (c % NS) * SL
        if p < 2:
            i = p
            if qkv:
                a(f"s_add_u32 m0, s25, {slot + i*1024}")
                a(f"s_movk_i32 s38, {c*128}")
                a(f"buffer_load_dwordx4 v{10+i}, s[4:7], s38 offen lds")
            else:
                a(f"s_add_u32 m0, s25, {slot}")
                a(f"s_movk_i32 s38, {c*4096}")
                a(f"buffer_load_dwordx4 v10, s[4:7], s38 offen offset:{i*1024} lds")
        else:
            i = p - 2
            a(f"s_add_u32 m0, s26, {slot + i*768}")
            a(f"s_mov_b32 s38, {(c*64 + 4*i)*pitchW}")
            a("s_mov_b64 exec, s[46:47]")
            a(f"buffer_load_dwordx4 v14, s[8:11], s38 offen lds")
            a("s_mov_b64 exec, -1")
        issued.append(c)
    def dma(c):
        for p in range(4): piece(c, p)
    def younger(c):
        last = max(i for i, x in enumerate(issued) if x == c)
        return len(issued) - 1 - last
    pend = []
    def slot_hook(n=1):
        for _ in range(n):
            if pend: piece(*pend.pop(0))
    REP = int(os.environ.get('REP', '0'))
    if REP:
        a('s_mov_b32 s55, 0')
        a.label(f'L_{name}_rep')
        a('s_mov_b32 s46, -1')
        a('s_mov_b32 s47, 0xffff')
    if MG:
        cnt_srd(a, 34)
        for c in range(2):
            for p in (2, 3): piece(c, p)
        waitcnt(a, "c3", 23, 0, 16, preg=39)
        for c in range(2):
            for p in (0, 1): piece(c, p)
    else: dma(0)
    if not qkv:
        pass
    if int(os.environ.get("OB96", "1")): a("s_barrier")
    if not MG: dma(1)
    tk.tick()
    for b in range(3):
        a(f"s_add_u32 s{27+b}, s21, {b}")
        a(f"s_cmp_ge_u32 s{27+b}, 3")
        a(f"s_cselect_b32 s38, 3, 0")
        a(f"s_sub_u32 s{27+b}, s{27+b}, s38")
    VA = 26
    if qkv:
        a("s_lshl_b32 s38, s21, 12")
        a("v_lshlrev_b32 v5, 7, v2")
        a("v_add_u32 v5, s38, v5")
        a("v_bfe_u32 v6, v2, 1, 3")
        a("v_xor_b32 v6, v6, v3")
        for s in range(4):
            a(f"v_xor_b32 v7, {2*s}, v6")
            a("v_lshlrev_b32 v7, 4, v7")
            a(f"v_add_u32 v{VA+s}, v5, v7")
            a(f"v_add_u32 v{VA+4+s}, {2*SL}, v{VA+s}")
    else:
        a("s_lshl_b32 s38, s21, 12")
        a(f"v_add_u32 v{VA}, s38, v4")
        a(f"v_add_u32 v{VA+1}, {2*SL}, v{VA}")
    a("v_and_b32 v5, 15, v1")
    a("v_lshrrev_b32 v6, 2, v5")
    a(f"v_lshlrev_b32 v7, {3 if qkv else 2}, v3")
    a("v_add_u32 v6, v6, v7")
    a("v_mul_u32_u24 v6, 192, v6")
    a("v_bfe_u32 v7, v1, 4, 1")
    a("v_lshlrev_b32 v8, 5, v7")
    a("v_add_u32 v6, v6, v8")
    a("v_and_b32 v8, 3, v5")
    a("v_lshlrev_b32 v8, 3, v8")
    a("v_add_u32 v6, v6, v8")
    for b in range(3):
        a(f"s_lshl_b32 s38, s{27+b}, 6")
        a(f"s_add_u32 s38, s38, {WOFF}")
        a(f"v_add_u32 v{20+b}, s38, v6")
        a(f"v_add_u32 v{23+b}, {2*SL}, v{20+b}")
    halfrow = 4 if qkv else 8
    SEL = 64; CSA = 68; TMP = 120
    S1 = 8; S2 = 12
    a("v_cmp_eq_u32 vcc, v5, v7")
    a("v_mov_b32 v9, 0x3f803f80")
    for r in range(4): a(f"v_cndmask_b32 v{SEL+r}, 0, v9, vcc")
    for r in (8, 9, 12, 13): a(f"v_mov_b32 v{r}, 0")
    for r in range(CSA, CSA+4): a(f"v_mov_b32 v{r}, 0")
    for r in range(72, 104): a(f"v_mov_b32 v{r}, 0")
    a("s_mov_b32 s45, 0xffff0000")
    DOT = int(os.environ.get("DOT", "1"))
    if qkv and DOT: a("s_mov_b32 s49, 0x3f803f80")
    AF = [40, 44]; ACC = 72
    WF = [48, 56]
    B1 = 104
    ST, CS = 0, 4096
    a("s_lshl_b32 s40, s23, 2")
    a("s_add_u32 s40, s40, s21")
    if not qkv:
        srd(a, 48, 34, 128*1024, add=WS_ST)
        a("s_lshl_b32 s38, s40, 11")
        a("v_lshlrev_b32 v5, 9, v3")
        a("v_lshlrev_b32 v6, 4, v2")
        a("v_add_u32 v5, v5, v6")
        for j in range(2):
            a(f"buffer_load_dwordx4 v[{120+4*j}:{123+4*j}], v5, s[48:51], s38 offen offset:{1024*j}")
            issued.append("st")
    a("s_cmp_eq_u32 s22, 1")
    a(f"s_cbranch_scc1 L_{name}_roleB")
    issued0 = list(issued)

    def prefetch(role):
        L = f"L_{name}_pf{role}"
        a("s_sub_u32 s38, s20, 2")
        a("s_cmp_lt_u32 s38, 4")
        a(f"s_cbranch_scc1 {L}w")
        a("s_and_b32 s39, s24, 7")
        a("s_lshr_b32 s38, s20, 2")
        a("s_lshl_b32 s38, s38, 2")
        a("s_xor_b32 s39, s39, s38")
        a("s_lshl_b32 s39, s39, 4")
        a("s_lshl_b32 s38, s23, 7")
        a("s_add_u32 s39, s39, s38")
        a("s_and_b32 s38, s20, 1")
        a("s_lshl_b32 s38, s38, 3")
        a("s_add_u32 s39, s39, s38")
        a("s_lshl_b32 s39, s39, 10")
        a("v_lshrrev_b32 v5, 3, v1")
        a("v_lshlrev_b32 v5, 10, v5")
        a("v_and_b32 v6, 7, v1")
        a("v_lshlrev_b32 v6, 7, v6")
        a("v_add_u32 v5, v5, v6")
        a("s_mov_b32 s42, 0xf8f8f8f8")
        a("s_mov_b32 s43, 0xf8f8f8f8")
        a("s_mov_b64 exec, s[42:43]")
        a("buffer_load_dword v127, v5, s[4:7], s39 offen")
        a(f"s_branch {L}d")
        a.label(f"{L}w")
        a("s_and_b32 s39, s23, 3")
        a("s_mul_i32 s39, s39, 80")
        a("s_mul_i32 s38, s38, 20")
        a("s_add_u32 s39, s39, s38")
        a("s_add_u32 s39, s39, 192")
        a(f"s_mul_i32 s39, s39, {pitchW}")
        a("s_mul_i32 s38, s24, 192")
        a("s_add_u32 s39, s39, s38")
        a("v_lshrrev_b32 v5, 1, v1")
        a(f"v_mul_u32_u24 v5, {pitchW}, v5")
        a("v_and_b32 v6, 1, v1")
        a("v_lshlrev_b32 v6, 7, v6")
        a("v_add_u32 v5, v5, v6")
        a("s_mov_b32 s42, -1")
        a("s_mov_b32 s43, 0xff")
        a("s_mov_b64 exec, s[42:43]")
        a("buffer_load_dword v127, v5, s[8:11], s39 offen")
        a.label(f"{L}d")
        a("s_mov_b64 exec, -1")
        issued.append("pf")
    PFX = int(os.environ.get("PFX", "0")) if qkv else 0
    def body(role):
        issued[:] = issued0
        del pend[:]
        blks = [0, 1] if role == 0 else [2]
        nb = len(blks); nrd = 1 + 2*nb
        if not qkv:
            a("s_mul_i32 s38, s24, 192")
            a("v_lshlrev_b32 v5, 3, v3")
            a("v_add_u32 v5, s38, v5")
            for k, b in enumerate(blks):
                a(f"s_lshl_b32 s38, s{27+b}, 6")
                for hq in range(4):
                    r = B1 + 8*k + 2*hq
                    a(f"buffer_load_dwordx2 v[{r}:{r+1}], v5, s[16:19], s38 offen offset:{16*hq}")
                    issued.append("b1")
        def reads(c, s, buf):
            slot = c % NS
            grp = slot // 2; off = (slot % 2) * SL
            if qkv:
                a(f"ds_read_b128 {vr(AF[buf],4)}, v{VA+4*grp+s} offset:{off}")
            else:
                a(f"ds_read_b128 {vr(AF[buf],4)}, v{VA+grp} offset:{off + s*1024}")
            for k, b in enumerate(blks):
                for hf in range(2):
                    a(f"ds_read_b64_tr_b16 {vr(WF[buf]+4*k+2*hf,2)}, v{20+3*grp+b} offset:{off + (16*s + halfrow*hf)*192}")
        def stats(reg, k):
            if DOT:
                a(f"v_dot2c_f32_bf16 v{S1 + (k & 1)}, s49, v{reg}")
                a(f"v_dot2c_f32_bf16 v{S2 + (k & 1)}, v{reg}, v{reg}")
                return
            t = TMP + 2*(k & 1)
            a(f"v_lshlrev_b32 v{t}, 16, v{reg}")
            a(f"v_and_b32 v{t+1}, s45, v{reg}")
            a(f"v_add_f32 v{S1}, v{S1}, v{t}")
            a(f"v_fmac_f32 v{S2}, v{t}, v{t}")
            a(f"v_add_f32 v{S1+1}, v{S1+1}, v{t+1}")
            a(f"v_fmac_f32 v{S2+1}, v{t+1}, v{t+1}")
        SA = os.environ.get("SA", "02")
        first = [True]
        def compute(buf, ks):
            for k in range(nb):
                a(f"v_mfma_f32_32x32x16_bf16 {vr(ACC+16*k,16)}, {vr(WF[buf]+4*k,4)}, {vr(AF[buf],4)}, {vr(ACC+16*k,16)}")
                if k == 0:
                    slot_hook(2 if first[0] else 1); first[0] = False
            if role == 0:
                a(f"v_mfma_f32_16x16x32_bf16 {vr(CSA,4)}, {vr(WF[buf],4)}, {vr(SEL,4)}, {vr(CSA,4)}")
            if qkv and ((str(ks) in SA) == (role == 0)):
                for r in range(4): stats(AF[buf] + r, r)
        a(f"s_waitcnt vmcnt({younger(0)})")
        a("s_barrier")
        tk.tick()
        reads(0, 0, 0)
        if PFX == 1: prefetch(role)
        pend.extend((2, p) for p in range(4))
        for c in range(NCH):
            for s in range(4):
                buf = s & 1
                if s < 3:
                    reads(c, s+1, buf ^ 1)
                    a(f"s_waitcnt lgkmcnt({nrd})")
                elif c < NCH - 1:
                    a(f"s_waitcnt vmcnt({younger(c+1)})")
                    a("s_barrier")
                    if c in (1, 3, 5):
                        tk.tick()
                    assert not pend
                    if c + LOOK < NCH: pend.extend((c + LOOK, p) for p in range(4))
                    reads(c + 1, 0, buf ^ 1)
                    a(f"s_waitcnt lgkmcnt({nrd})")
                else:
                    a("s_waitcnt lgkmcnt(0)")
                compute(buf, s)
                if PFX == 2 and c == 0 and s == 2: prefetch(role)
        assert not pend
        tk.tick()
        if REP:
            a("s_cmp_eq_u32 s55, 0")
            a("s_mov_b32 s55, 1")
            a("s_barrier")
            a(f"s_cbranch_scc1 L_{name}_rep")
        if role == 0:
            a("v_and_b32 v10, 15, v1")
            a("v_lshlrev_b32 v10, 6, v10")
            a("v_lshrrev_b32 v11, 4, v1")
            a("v_lshlrev_b32 v11, 4, v11")
            a("v_add_u32 v10, v10, v11")
            a("s_lshl_b32 s39, s27, 7")
            a("v_add_u32 v10, s39, v10")
            a("s_mov_b32 s46, 0x00030003")
            a("s_mov_b32 s47, 0x00030003")
            a("s_nop 3")
            a("s_mov_b64 exec, s[46:47]")
            a(f"ds_write_b128 v10, {vr(CSA,4)} offset:{CS}")
            a("s_mov_b64 exec, -1")
        def statcalc():
            a("v_mul_f32 v22, 0x3b000000, v8")
            a("v_mul_f32 v23, 0x3b000000, v9")
            a("v_fma_f32 v23, -v22, v22, v23")
            a("v_max_f32 v23, 0, v23")
            a("v_add_f32 v23, 0x3727c5ac, v23")
            a("v_rsq_f32 v23, v23")
            a("s_nop 0")
            a("v_mul_f32 v22, v22, v23")
        def hcomb():
            a("v_mov_b32 v12, v8")
            a("v_mov_b32 v13, v9")
            a("s_nop 1")
            a("v_permlane32_swap_b32 v8, v12")
            a("v_permlane32_swap_b32 v9, v13")
            a("s_nop 1")
            a("v_add_f32 v8, v8, v12")
            a("v_add_f32 v9, v9, v13")
        a("s_lshl_b32 s38, s21, 8")
        a("v_lshlrev_b32 v7, 3, v2")
        a("v_add_u32 v7, s38, v7")
        if qkv:
            if DOT: a("s_nop 2")
            a("v_add_f32 v8, v8, v9")
            a("v_add_f32 v9, v12, v13")
            hcomb()
            a(f"ds_write_b64 v7, v[8:9] offset:{ST + role*1024}")
        else:
            a("v_add_f32 v8, v120, v122")
            a("v_add_f32 v9, v121, v123")
            a("v_add_f32 v12, v124, v126")
            a("v_add_f32 v13, v125, v127")
            a("v_add_f32 v8, v8, v12")
            a("v_add_f32 v9, v9, v13")
            hcomb()
            statcalc()
        a("v_lshlrev_b32 v10, 4, v3")
        a("v_lshlrev_b32 v15, 5, v2")
        a("v_add_u32 v15, v15, v10")
        for k, b in enumerate(blks):
            a(f"s_lshl_b32 s38, s{27+b}, 7")
            a(f"v_add_u32 v{16+k}, s38, v10")
        a("s_waitcnt lgkmcnt(0)")
        a("s_barrier")
        CB = [120, 26]
        hbs = [(k, hb) for k in range(nb) for hb in range(2)]
        def csread(i):
            k, hb = hbs[i]
            for q in range(2):
                a(f"ds_read_b128 {vr(CB[i & 1]+4*q,4)}, v{16+k} offset:{CS + (2*hb+q)*32}")
        if qkv: a(f"ds_read_b64 v[12:13], v7 offset:{ST + (1-role)*1024}")
        csread(0); csread(1)
        if qkv:
            a(f"s_waitcnt lgkmcnt(4)")
            a("v_add_f32 v8, v8, v12")
            a("v_add_f32 v9, v9, v13")
            statcalc()
        tk.tick()
        PX = 40
        nst = 0
        for i, (k, hb) in enumerate(hbs):
            b = blks[k]
            if True:
                A0 = ACC + 16*k + 8*hb
                C0 = CB[i & 1]
                PK = PX + 4*(nst & 1); nst += 1
                a(f"s_waitcnt lgkmcnt({2 if i + 1 < len(hbs) else 0})")
                a("s_mul_i32 s41, s24, 6")
                a(f"s_lshl_b32 s38, s{27+b}, 1")
                a(f"s_add_u32 s41, s41, s38")
                if hb: a("s_add_u32 s41, s41, 1")
                if qkv:
                    a("s_lshl_b32 s42, s41, 16")
                    a("s_lshl_b32 s43, s40, 10")
                    a("s_add_u32 s42, s42, s43")
                    a("s_cmp_lt_u32 s41, 32")
                    a("s_cselect_b32 s44, 0x3eb8aa3b, 1.0")
                    a("v_mul_f32 v11, s44, v23")
                    a("v_mul_f32 v12, s44, v22")
                    a("s_cmp_ge_u32 s41, 64")
                    a("s_cselect_b64 vcc, -1, 0")
                    a("v_cndmask_b32 v13, v4, v15, vcc")
                    for j in range(8):
                        a(f"v_mul_f32 v{C0+j}, v12, v{C0+j}")
                    for j in range(8):
                        a(f"v_fma_f32 v{A0+j}, v11, v{A0+j}, -v{C0+j}")
                    if i + 2 < len(hbs): csread(i + 2)
                    for j in range(4):
                        a(f"v_cvt_pk_bf16_f32 v{PK+j}, v{A0+2*j}, v{A0+2*j+1}")
                    a(f"buffer_store_dwordx4 {vr(PK,4)}, v13, s[12:15], s42 offen" + STF)
                else:
                    a(f"s_mul_i32 s42, s40, {AF_KS}")
                    a("s_add_u32 s42, s42, s41")
                    a("s_lshl_b32 s42, s42, 10")
                    T = 48
                    U = 56
                    for j in range(8):
                        bsrc = B1 + 8*k + 4*hb + (j >> 1)
                        if j & 1: a(f"v_and_b32 v{T+j}, s45, v{bsrc}")
                        else:     a(f"v_lshlrev_b32 v{T+j}, 16, v{bsrc}")
                    for j in range(8):
                        a(f"v_fma_f32 v{T+j}, -v22, v{C0+j}, v{T+j}")
                    if i + 2 < len(hbs): csread(i + 2)
                    for j in range(8):
                        a(f"v_fma_f32 v{A0+j}, v23, v{A0+j}, v{T+j}")
                    for j in range(8):
                        a(f"v_mul_f32 v{T+j}, 0x3fb8aa3b, v{A0+j}")
                    for j in range(8):
                        a(f"v_exp_f32 v{T+j}, v{T+j}")
                    for j in range(8):
                        a(f"v_add_f32 v{U+j}, 2.0, v{T+j}")
                    for j in range(8):
                        a(f"v_fma_f32 v{U+j}, v{T+j}, v{U+j}, 2.0")
                    for j in range(8):
                        a(f"v_rcp_f32 v{U+j}, v{U+j}")
                    for j in range(8):
                        a(f"v_mul_f32 v{U+j}, v{A0+j}, v{U+j}")
                    for j in range(8):
                        a(f"v_fma_f32 v{A0+j}, -2.0, v{U+j}, v{A0+j}")
                    for j in range(4):
                        a(f"v_cvt_pk_bf16_f32 v{PK+j}, v{A0+2*j}, v{A0+2*j+1}")
                    a(f"buffer_store_dwordx4 {vr(PK,4)}, v4, s[12:15], s42 offen" + STF)
        tk.tick()
    n0 = tk.n
    body(0)
    n1 = tk.n
    pos1 = len(a.lines)
    a(f"s_branch L_{name}_join")
    a.label(f"L_{name}_roleB")
    tk.n = n0
    body(1)
    tk.n = n1
    pos2 = len(a.lines)
    a.label(f"L_{name}_join")
    if MG: sig(a, "c4", 23, 2048, lambda: a("s_mov_b32 s57, s24"))
    if M3:
        cnt_srd(a, 34)
        sig(a, "c1", 24, 6144, lambda: a("s_mov_b32 s57, s23"))
        nbar = lambda lo, hi: sum(1 for l in a.lines[lo:hi] if l.strip() == "s_barrier")
        assert nbar(pos1, pos2) * 2 == nbar(pos0, pos2) - (1 if int(os.environ.get("OB96", "1")) else 0)
        NB = nbar(pos0, pos1) + nbar(pos2, len(a.lines))
        if TICK:
            tk.tick(); tk.dump(20)
        a("s_branch L_attn_start")
        a.label("L_helper")
        a("s_load_dwordx2 s[30:31], s[0:1], %d" % KA['dbg'])
        a("s_load_dwordx2 s[34:35], s[0:1], %d" % KA['ws'])
        a("v_and_b32 v1, 63, v0")
        a("v_lshlrev_b32 v5, 7, v1")
        a("v_mov_b32 v6, 0")
        a("v_mov_b32 v7, 1")
        a("v_mov_b32 v8, 0")
        a("s_waitcnt lgkmcnt(0)")
        srd(a, 4, 30, 256)
        cnt_srd(a, 34)
        a("s_lshl_b32 s21, s2, 5")
        a("s_add_u32 s21, s21, s20")
        a("s_cmp_eq_u32 s21, 8")
        a("s_cbranch_scc0 L_hp_z")
        if FLG:
            a("v_lshlrev_b32 v5, 4, v1")
            for r in range(12, 16): a(f"v_mov_b32 v{r}, 0")
            for i in range(8):
                a(f"s_movk_i32 s38, {i*1024}")
                a("buffer_store_dwordx4 v[12:15], v5, s[52:55], s38 offen sc1")
        else:
            a("buffer_store_dword v6, v5, s[52:55], 0 offen sc1")
        a.label("L_hp_z")
        F0, F1, F2 = 3, 5, NB - 2
        for i in range(NB):
            if i == F0:
                a("s_cmp_eq_u32 s21, 8")
                a("s_cbranch_scc0 L_hp_f")
                a("s_waitcnt vmcnt(0)")
                a("s_mov_b64 exec, 1")
                a("buffer_store_dword v7, v6, s[4:7], 0 offen sc1")
                a("s_mov_b64 exec, -1")
                a.label("L_hp_f")
            if i == F1:
                a("s_cmp_eq_u32 s20, 8")
                a("s_cbranch_scc0 L_hp_l")
                a("buffer_load_dword v8, v6, s[4:7], 0 offen sc1")
                a.label("L_hp_l")
            if i == F2:
                a("s_cmp_eq_u32 s20, 8")
                a("s_cbranch_scc0 L_hp_c")
                a("s_mov_b32 s57, 0")
                a.label("L_hp_spin")
                a("s_waitcnt vmcnt(0)")
                a("v_readfirstlane_b32 s38, v8")
                a("s_add_u32 s57, s57, 1")
                a("s_cmp_ge_u32 s57, 40000")
                a("s_cbranch_scc1 L_hp_c")
                a("s_cmp_eq_u32 s38, 1")
                a("s_cbranch_scc1 L_hp_c")
                a("buffer_load_dword v8, v6, s[4:7], 0 offen sc1")
                a("s_branch L_hp_spin")
                a.label("L_hp_c")
            a("s_barrier")
        a.label("L_attn_start")
        return
    if qkv and MERGE:
        a("s_cmp_eq_u32 s2, 0")
        a(f"s_cbranch_scc0 L_{name}_nz")
        a("s_cmp_eq_u32 s20, 0")
        a(f"s_cbranch_scc0 L_{name}_nz")
        cnt_srd(a, 34)
        a("v_lshlrev_b32 v5, 7, v1")
        a("v_mov_b32 v6, 0")
        a("buffer_store_dword v6, v5, s[52:55], 0 offen" + STF)
        a.label(f"L_{name}_nz")
    if TICK: a("s_waitcnt vmcnt(0)")
    tk.tick()
    tk.dump(20)
    a.label(f"L_{name}_end")
    if MG: return
    a("s_endpgm")
    return name, kernel_wrap(name, a.text(), 128, 100 if TICK else 64), NS * SL
```

```python
import os
class Asm:
    def __init__(self):
        self.lines = []
        self.nlabel = 0
    def __call__(self, s):
        for l in s.strip("\n").split("\n"):
            self.lines.append("  " + l.strip())
    def label(self, name):
        self.lines.append(name + ":")
    def newlabel(self, base):
        self.nlabel += 1
        return f"{base}_{self.nlabel}"
    def comment(self, s):
        self.lines.append("  ; " + s)
    def text(self):
        return "\n".join(self.lines) + "\n"

def vr(a, n):
    return f"v[{a}:{a+n-1}]" if n > 1 else f"v{a}"
def sr(a, n):
    return f"s[{a}:{a+n-1}]" if n > 1 else f"s{a}"

def kernel_wrap(name, body, nvgpr, nsgpr=100):
    nv = (nvgpr + 7) // 8 * 8
    acc = (nvgpr + 3) // 4 * 4
    return f""".text
.globl {name}
.p2align 8
.type {name},@function
{name}:
{body}
.section .rodata,"a"
.p2align 6
.amdhsa_kernel {name}
  .amdhsa_next_free_vgpr {nvgpr}
  .amdhsa_next_free_sgpr {nsgpr}
  .amdhsa_accum_offset {acc}
  .amdhsa_group_segment_fixed_size 0
  .amdhsa_kernarg_size 80
  .amdhsa_user_sgpr_count 2
  .amdhsa_user_sgpr_kernarg_segment_ptr 1
  .amdhsa_system_sgpr_workgroup_id_x 1
.end_amdhsa_kernel
"""

KA = dict(x=0, wqkv=8, wo=16, bx=24, w1=32, b1=40, w2=48, out=56, dbg=64, ws=72)
MB = 1 << 20
WS_QF, WS_KF, WS_VV, WS_OF, WS_HF, WS_AF = 0, 2*MB, 4*MB, 6*MB, 8*MB, 10*MB
WS_ST = 16*MB
MERGE = int(os.environ.get('MERGE', '3'))
KS3 = int(os.environ.get('KS3', '1'))
AF_KS = 90

def srd(a, dst, ptr, nbytes, add=0):
    if add:
        a(f"s_add_u32 s{dst}, s{ptr}, {add}")
        a(f"s_addc_u32 s{dst+1}, s{ptr+1}, 0")
    else:
        a(f"s_mov_b32 s{dst}, s{ptr}")
        a(f"s_mov_b32 s{dst+1}, s{ptr+1}")
    a(f"s_mov_b32 s{dst+2}, {nbytes}")
    a(f"s_mov_b32 s{dst+3}, 0x00020000")

import os
TICK = int(os.environ.get("TICK", "0"))
class Ticks:
    def __init__(self, a, kid):
        self.a, self.kid, self.n, self.z = a, kid, 0, 2
    def tick(self):
        if not TICK: return
        i = self.n; self.n += 1
        assert i < 16
        self.a(f"s_memtime s[{64+2*i}:{65+2*i}]")
        if i == 0: self.a("s_memrealtime s[60:61]")
    def dump(self, wave_sgpr):
        if not TICK: return
        a = self.a
        a("s_memrealtime s[58:59]")
        a("s_load_dwordx2 s[96:97], s[0:1], %d" % KA['ws'])
        a("s_waitcnt lgkmcnt(0)")
        a(f"s_add_u32 s96, s96, {64*MB}")
        a("s_addc_u32 s97, s97, 0")
        a(f"s_mov_b32 s98, {16*MB}")
        a("s_mov_b32 s99, 0x00020000")
        a(f"s_add_u32 s62, s2, {self.kid*256}")
        a("s_lshl_b32 s62, s62, 4")
        a(f"s_add_u32 s62, s62, s{wave_sgpr}")
        a("s_lshl_b32 s62, s62, 7")
        z, d = self.z, self.z + 1
        a(f"v_mov_b32 v{z}, 0")
        a(f"v_mov_b32 v{d}, s60")
        a(f"buffer_store_dword v{d}, v{z}, s[96:99], s62 offen offset:120")
        a(f"v_mov_b32 v{d}, s58")
        a(f"buffer_store_dword v{d}, v{z}, s[96:99], s62 offen offset:124")
        for i in range(self.n):
            a(f"v_mov_b32 v{d}, s{64+2*i}")
            a(f"buffer_store_dword v{d}, v{z}, s[96:99], s62 offen offset:{4*i}")

STF = os.environ.get("STF", " sc1")

SLP = int(os.environ.get('SLP', '10'))
SLPA = int(os.environ.get('SLPA', '0'))
WS_CNT = 17*MB
def cnt_srd(a, wsptr):
    srd(a, 52, wsptr, 8192, add=WS_CNT)
def sig(a, tag, idx_sgpr, base):
    a("s_waitcnt vmcnt(0)")
    a("s_barrier")
    a("s_cmp_eq_u32 s20, 0")
    a(f"s_cbranch_scc0 L_sig_{tag}")
    a(f"s_lshl_b32 s56, s{idx_sgpr}, 7")
    a(f"s_add_u32 s56, s56, {base}")
    a("v_mov_b32 v5, 0")
    a("v_mov_b32 v6, 1")
    a("s_mov_b64 exec, 1")
    a("buffer_atomic_add v6, v5, s[52:55], s56 offen sc1")
    a("s_mov_b64 exec, -1")
    a.label(f"L_sig_{tag}")
PP = int(os.environ.get('PP', '0'))
PPS = int(os.environ.get('PPS', '6'))
def waitcnt(a, tag, idx_sgpr, base, target, preg=6):
    if not PP: preg = 6
    a("s_cmp_eq_u32 s20, 0")
    a(f"s_cbranch_scc0 L_wt_{tag}")
    a(f"s_lshl_b32 s56, s{idx_sgpr}, 7")
    a(f"s_add_u32 s56, s56, {base}")
    a("v_mov_b32 v5, 0")
    a("s_mov_b32 s57, 0")
    ld = f"buffer_load_dword v{preg}, v5, s[52:55], s56 offen sc1"
    if PP:
        for _ in range(2):
            a(ld)
            a(f"s_sleep {PPS}")
    if SLP and SLPA: a(f"s_branch L_spin1_{tag}")
    a.label(f"L_spin_{tag}")
    if SLP: a(f"s_sleep {SLP}")
    if SLP and SLPA: a.label(f"L_spin1_{tag}")
    a(ld)
    a("s_add_u32 s57, s57, 1")
    a(f"s_waitcnt vmcnt({2 if PP else 0})")
    a(f"v_readfirstlane_b32 s38, v{preg}")
    a("s_cmp_ge_u32 s57, 40000")
    a(f"s_cbranch_scc1 L_wt_{tag}")
    a(f"s_cmp_lt_u32 s38, {target}")
    a(f"s_cbranch_scc1 L_spin_{tag}")
    a.label(f"L_wt_{tag}")
    a("s_barrier")
```

```python
from dsl import *

PF = int(os.environ.get("PF", "1"))
AD = 0
PRIO = os.environ.get("PRIO", "33333333333333333333333322221110")
SWP = int(os.environ.get("SWP", "1"))
OZ = int(os.environ.get("OZ", "1"))
M0 = int(os.environ.get("M0", "1"))
FB = int(os.environ.get("FB", "0"))
def attn(a=None):
    name = "k2_attn_kernel"
    MG = a is not None
    if not MG: a = Asm()
    M3 = MG and MERGE >= 3
    tk = Ticks(a, 1)
    ONES = 131072; SCR = ONES + 4608
    Q, KF, VF, P, S, O, NM = 8, [12, 16], [20, 28], [36, 44], [52, 68], 84, 100
    T0 = 116
    if not MG:
        a("s_cmp_ge_u32 s2, 256")
        a(f"s_cbranch_scc1 L_{name}_end")
    a("s_load_dwordx2 s[30:31], s[0:1], %d" % KA['ws'])
    a("s_load_dwordx2 s[44:45], s[0:1], %d" % KA['wo'])
    a("s_load_dwordx2 s[46:47], s[0:1], %d" % KA['w1'])
    a("s_load_dwordx2 s[48:49], s[0:1], %d" % KA['w2'])
    a("s_and_b32 s23, s2, 7")
    a("s_lshr_b32 s38, s2, 3")
    a("s_and_b32 s38, s38, 3")
    a("s_lshl_b32 s38, s38, 3")
    a("s_add_u32 s23, s23, s38")
    a("s_lshr_b32 s24, s2, 5")
    tk.tick()
    a("v_and_b32 v1, 63, v0")
    a("v_lshrrev_b32 v2, 6, v0")
    a("s_nop 0")
    a("v_readfirstlane_b32 s20, v2")
    a("s_nop 3")
    a("s_and_b32 s21, s20, 7")
    a("s_lshr_b32 s22, s20, 3")
    a("v_lshlrev_b32 v4, 4, v1")
    a("s_lshr_b32 s38, s20, 1")
    a("s_and_b32 s38, s38, 1")
    a("s_lshl_b32 s38, s38, 5")
    a("s_lshr_b32 s35, s20, 2")
    if AD:
        a("s_lshl_b32 s39, s35, 1")
        a("s_mul_i32 s52, s35, 4")
        a("s_add_u32 s52, s52, 8")
        a("s_lshl_b32 s52, s52, 10")
    else:
        a("s_lshl_b32 s39, s35, 3")
    a("s_add_u32 s38, s38, s39")
    a("s_lshl_b32 s38, s38, 10")
    a("s_and_b32 s39, s20, 1")
    a("s_lshl_b32 s25, s39, 16")
    a("s_add_u32 s25, s25, s38")
    a("s_lshl_b32 s26, s39, 21")
    a("s_add_u32 s26, s26, s38")
    a("s_lshl_b32 s39, s23, 16")
    a("s_add_u32 s26, s26, s39")
    a("s_lshl_b32 s27, s24, 3")
    a("s_add_u32 s27, s27, s21")
    a("s_lshl_b32 s28, s27, 10")
    a("s_add_u32 s28, s28, s39")
    a("s_waitcnt lgkmcnt(0)")
    srd(a, 4, 30, 4*MB, add=WS_KF)
    srd(a, 8, 30, 2*MB, add=WS_QF)
    srd(a, 12, 30, 2*MB, add=WS_OF)
    if not M3: a(f"buffer_load_dwordx4 {vr(Q,4)}, v4, s[8:11], s28 offen")
    srd(a, 40, 44, 512*512*2)
    a("s_lshr_b32 s51, s2, 3")
    a("s_lshl_b32 s51, s51, 4")
    a("s_add_u32 s51, s51, s20")
    a("s_lshl_b32 s51, s51, 10")
    a("s_mov_b32 s50, s51")
    def kvdma():
        for r in range(8):
            a(f"s_add_u32 m0, s25, {(r&3)*1024 + (r>>2)*4096}")
            if (r & 3) == 0: a(f"s_add_u32 s38, s26, {(r>>2)*4096}")
            a(f"buffer_load_dwordx4 v4, s[4:7], s38 offen offset:{(r&3)*1024} lds" if False else f"buffer_load_dwordx4 v4, s[4:7], s38 offen lds")
            if (r & 3) != 3: a("s_add_u32 s38, s38, 1024")
    def kvdma2(n, ls, gs):
        for r in range(n):
            a(f"s_add_u32 m0, {ls}, {r*1024}")
            a(f"s_add_u32 s38, {gs}, {r*1024}")
            a(f"buffer_load_dwordx4 v4, s[4:7], s38 offen lds")
    if AD:
        kvdma2(2, "s25", "s26")
        a("s_barrier")
        a("s_add_u32 s25, s25, s52")
        a("s_add_u32 s26, s26, s52")
        kvdma2(6, "s25", "s26")
    elif not M3:
        a("s_cmp_eq_u32 s35, 0")
        a("s_cbranch_scc0 L_attn_nodma0")
        kvdma()
        a.label("L_attn_nodma0")
    if OZ:
        a("v_and_b32 v6, 5, v0")
        a("v_cmp_eq_u32 vcc, 0, v6")
        a("v_mov_b32 v5, 0x3f80")
        a("v_cndmask_b32 v5, 0, v5, vcc")
    else:
        a("v_mov_b32 v5, 0x3f803f80")
    a("v_lshlrev_b32 v6, 2, v0")
    a(f"v_add_u32 v6, {ONES}, v6")
    a("ds_write_b32 v6, v5")
    a("ds_write_b32 v6, v5 offset:512")
    a("s_lshl_b32 s29, s22, 15")
    a("v_add_u32 v2, s29, v4")
    a("v_lshrrev_b32 v5, 5, v1")
    a("v_and_b32 v6, 15, v1")
    a("v_lshlrev_b32 v6, 3, v6")
    a("v_lshlrev_b32 v3, 7, v5")
    a("v_add_u32 v3, v3, v6")
    a("v_xor_b32 v7, 128, v3")
    a(f"v_add_u32 v7, {ONES}, v7")
    a("s_add_u32 s38, s29, 65536")
    a("v_add_u32 v3, s38, v3")
    a("v_and_b32 v6, 16, v1")
    a("v_cmp_ne_u32 vcc, 0, v6")
    a("s_nop 1")
    a("v_cndmask_b32 v3, v3, v7, vcc")
    a("v_mov_b32 v6, 4096")
    a("v_cndmask_b32 v7, v6, 0, vcc")
    a("v_mov_b32 v5, v3")
    a("v_mov_b32 v6, v2")
    a("s_mov_b32 s33, 0")
    def maxtree(dst, src, init):
        if init:
            a(f"v_max3_f32 v{dst}, v{src}, v{src+1}, v{src+2}")
            rest = list(range(src+3, src+16))
        else:
            rest = list(range(src, src+16))
        while len(rest) >= 2:
            a(f"v_max3_f32 v{dst}, v{dst}, v{rest[0]}, v{rest[1]}"); rest = rest[2:]
        if rest: a(f"v_max_f32 v{dst}, v{dst}, v{rest[0]}")
    def zero_init():
        for r in range(16): a(f"v_mov_b32 v{O+r}, 0")
        for r in range(8):
            a(f"v_mov_b32 v{P[1]+r}, 0")
            a(f"v_mov_b32 v{VF[1]+r}, 0")
    def setmax():
        a(f"v_mov_b32 v{T0+1}, v{T0}")
        a("s_nop 1")
        a(f"v_permlane32_swap_b32 v{T0}, v{T0+1}")
        a("s_nop 1")
        a(f"v_max_f32 v{T0}, v{T0}, v{T0+1}")
        for r in range(16): a(f"v_sub_f32 v{NM+r}, 0, v{T0}")
    def mainloop(first, C, tag):
        a(f"ds_read_b128 {vr(KF[0],4)}, v2")
        a(f"ds_read_b128 {vr(KF[1],4)}, v2 offset:1024")
        a("s_waitcnt lgkmcnt(1)")
        a(f"v_mfma_f32_32x32x16_bf16 {vr(S[0],16)}, {vr(KF[0],4)}, {vr(Q,4)}, {C}")
        a("s_nop 7")
        a("s_mov_b32 s32, 0")
        if PRIO: a(f"s_setprio {PRIO[0]}")
        if first: tk.tick()
        a.label(f"L_attn_loop{tag}")
        if first:
            a("s_cmp_eq_u32 s32, 1")
            a("s_cbranch_scc0 L_attn_nosync")
            tk.tick()
            a("s_waitcnt vmcnt(0)")
            a("s_barrier")
            tk.tick()
            a.label("L_attn_nosync")
            if PF:
                a("s_cmp_eq_u32 s32, 0")
                a("s_cbranch_scc1 L_attn_nopf")
                a("s_cmp_eq_u32 s32, 2")
                a("s_cselect_b32 s40, s46, s40")
                a("s_cselect_b32 s41, s47, s41")
                a(f"s_cselect_b32 s42, {512*1376*2}, s42")
                a("s_cselect_b32 s50, s51, s50")
                a("s_cmp_eq_u32 s32, 5")
                a("s_cselect_b32 s40, s48, s40")
                a("s_cselect_b32 s41, s49, s41")
                a("s_cselect_b32 s50, s51, s50")
                a("buffer_load_dwordx4 v[124:127], v4, s[40:43], s50 offen")
                a("s_add_u32 s50, s50, 0x80000")
                a.label("L_attn_nopf")
        def setprio(half):
            if not PRIO: return
            for it in range(8):
                k = 4*it + half
                if k == 0 or PRIO[k] == PRIO[k-1]: continue
                a(f"s_cmp_eq_u32 s32, {it}")
                a(f"s_cbranch_scc0 L_attn_p{tag}_{k}")
                a(f"s_setprio {PRIO[k]}")
                a.label(f"L_attn_p{tag}_{k}")
        if PRIO: a(f"s_setprio {PRIO[0]}")  if False else None
        for u in range(4):
            p = u & 1
            setprio(u)
            a("s_waitcnt lgkmcnt(0)")
            a(f"v_mfma_f32_32x32x16_bf16 {vr(S[p^1],16)}, {vr(KF[p^1],4)}, {vr(Q,4)}, {C}")
            a(f"ds_read_b128 {vr(KF[p],4)}, v2 offset:{(u+2)*1024}")
            for r in range(4):
                a(f"ds_read_b64_tr_b16 {vr(VF[p]+2*r,2)}, v3 offset:{u*1024 + r*256}")
            s = S[p]
            for i in range(8):
                a(f"v_exp_f32 v{s+2*i}, v{s+2*i}")
                a(f"v_exp_f32 v{s+2*i+1}, v{s+2*i+1}")
                if i > 0: a(f"v_cvt_pk_bf16_f32 v{P[p]+i-1}, v{s+2*i-2}, v{s+2*i-1}")
                if i == 2: a(f"v_mfma_f32_32x32x16_bf16 {vr(O,16)}, {vr(VF[p^1],4)}, {vr(P[p^1],4)}, {vr(O,16)}")
                if i == 5: a(f"v_mfma_f32_32x32x16_bf16 {vr(O,16)}, {vr(VF[p^1]+4,4)}, {vr(P[p^1]+4,4)}, {vr(O,16)}")
            a("s_nop 0")
            a(f"v_cvt_pk_bf16_f32 v{P[p]+7}, v{s+14}, v{s+15}")
        a("v_add_u32 v2, 4096, v2")
        a("v_add_u32 v3, v3, v7")
        a("s_add_u32 s32, s32, 1")
        a("s_cmp_lt_u32 s32, 8")
        a(f"s_cbranch_scc1 L_attn_loop{tag}")
        a("s_waitcnt lgkmcnt(0)")
        a(f"v_mfma_f32_32x32x16_bf16 {vr(O,16)}, {vr(VF[1],4)}, {vr(P[1],4)}, {vr(O,16)}")
        a(f"v_mfma_f32_32x32x16_bf16 {vr(O,16)}, {vr(VF[1]+4,4)}, {vr(P[1]+4,4)}, {vr(O,16)}")
        a("s_nop 15")
        a("s_nop 3")
    if M0:
        a(f"v_mov_b32 v{T0}, 0")
        zero_init()
    if M3:
        cnt_srd(a, 30)
        a("s_cmp_eq_u32 s20, 0")
        a("s_cbranch_scc0 L_wt_c1")
        a("v_lshlrev_b32 v52, 5, v1")
        a("v_add_u32 v52, s23, v52")
        a("v_mul_u32_u24 v52, 43, v52")
        a("v_lshrrev_b32 v52, 8, v52")
        a("v_lshlrev_b32 v52, 7, v52")
        a("s_movk_i32 s56, 6144")
        a("s_mov_b32 s57, 0")
        a("s_mov_b64 exec, 7")
        if PP:
            for _ in range(2):
                a("buffer_load_dword v53, v52, s[52:55], s56 offen sc1")
                a(f"s_sleep {PPS}")
        if SLP and SLPA: a("s_branch L_spin1_c1")
        a.label("L_spin_c1")
        if SLP: a(f"s_sleep {SLP}")
        if SLP and SLPA: a.label("L_spin1_c1")
        a("buffer_load_dword v53, v52, s[52:55], s56 offen sc1")
        a("s_add_u32 s57, s57, 1")
        a(f"s_waitcnt vmcnt({2 if PP else 0})")
        a("v_cmp_gt_u32 vcc, 16, v53")
        a("s_cmp_ge_u32 s57, 40000")
        a("s_cbranch_scc1 L_spun_c1")
        a("s_cmp_eq_u64 vcc, 0")
        a("s_cbranch_scc0 L_spin_c1")
        a.label("L_spun_c1")
        a("s_mov_b64 exec, -1")
        a.label("L_wt_c1")
        a("s_barrier")
        a(f"buffer_load_dwordx4 {vr(Q,4)}, v4, s[8:11], s28 offen")
        a("s_cmp_eq_u32 s35, 0")
        a("s_cbranch_scc0 L_attn_nodma0")
        kvdma()
        a.label("L_attn_nodma0")
    tk.tick()
    a("s_waitcnt vmcnt(0) lgkmcnt(0)")
    a("s_barrier")
    tk.tick()
    a("s_cmp_eq_u32 s35, 0")
    a("s_cbranch_scc1 L_attn_nodma1")
    kvdma()
    a.label("L_attn_nodma1")
    if M0:
        mainloop(True, "0", "")
    else:
        a(f"ds_read_b128 {vr(KF[0],4)}, v2")
        a("s_waitcnt lgkmcnt(0)")
        a(f"v_mfma_f32_32x32x16_bf16 {vr(S[0],16)}, {vr(KF[0],4)}, {vr(Q,4)}, 0")
        a("s_nop 15")
        a("s_nop 3")
        maxtree(T0, S[0], True)
        setmax()
        zero_init()
        mainloop(True, vr(NM,16), "")
    tk.tick()
    a(f"v_mul_f32 v{T0+1}, 0, v{O}")
    a(f"v_mul_f32 v{T0+2}, 0, v{O+1}")
    a("s_mov_b32 s34, 0x5f800000")
    a(f"v_cmp_nle_f32 s[36:37], v{O+8}, s34")
    a("s_mov_b32 s34, 0x21800000")
    a(f"v_cmp_nge_f32 s[38:39], v{O+8}, s34")
    for r in range(2, 8):
        a(f"v_fma_f32 v{T0+1+(r&1)}, v{O+r}, 0, v{T0+1+(r&1)}")
    a(f"v_add_f32 v{T0+1}, v{T0+1}, v{T0+2}")
    a("s_or_b64 s[36:37], s[36:37], s[38:39]")
    a(f"v_cmp_u_f32 vcc, v{T0+1}, v{T0+1}")
    a("s_or_b64 s[36:37], s[36:37], vcc")
    a("s_cmp_eq_u64 s[36:37], 0")
    if not FB: a("s_cbranch_scc1 L_attn_done")
    a("s_waitcnt vmcnt(0)")
    a("v_mov_b32 v2, v6")
    a(f"v_mov_b32 v{T0}, 0xff800000")
    a("s_mov_b32 s32, 0")
    a.label("L_attn_maxloop")
    a(f"ds_read_b128 {vr(KF[0],4)}, v2")
    a("s_waitcnt lgkmcnt(0)")
    a(f"v_mfma_f32_32x32x16_bf16 {vr(S[0],16)}, {vr(KF[0],4)}, {vr(Q,4)}, 0")
    a("s_nop 15")
    a("s_nop 3")
    maxtree(T0, S[0], False)
    a("v_add_u32 v2, 1024, v2")
    a("s_add_u32 s32, s32, 1")
    a("s_cmp_lt_u32 s32, 32")
    a("s_cbranch_scc1 L_attn_maxloop")
    setmax()
    zero_init()
    a("v_mov_b32 v2, v6")
    a("v_mov_b32 v3, v5")
    mainloop(False, vr(NM,16), "2")
    a.label("L_attn_done")
    a("s_mul_i32 s38, s21, 2560")
    a(f"s_add_u32 s38, s38, {SCR}")
    a("v_add_u32 v2, s38, v4")
    a("v_lshlrev_b32 v3, 3, v1")
    a("v_add_u32 v3, s38, v3")
    a(f"v_mov_b32 v{O+9}, v{T0}")
    a("s_lshl_b32 s38, s27, 5")
    a("s_add_u32 s38, s38, s23")
    a("s_lshl_b32 s38, s38, 10")
    a("s_mov_b32 s33, s22")
    a("s_cmp_eq_u32 s22, 0")
    a("s_cselect_b64 exec, 0, -1")
    a(f"ds_write_b128 v2, {vr(O,4)}")
    a(f"ds_write_b128 v2, {vr(O+4,4)} offset:1024")
    a(f"ds_write_b64 v3, {vr(O+8,2)} offset:2048")
    a("s_waitcnt lgkmcnt(0)")
    a("s_cbranch_scc1 L_attn_comb")
    a("s_barrier")
    a(f"s_branch L_attn_fin")
    a.label("L_attn_comb")
    a(f"ds_read_b64 {vr(S[0]+8,2)}, v3 offset:2048")
    a(f"ds_read_b128 {vr(S[0],4)}, v2")
    a(f"ds_read_b128 {vr(S[0]+4,4)}, v2 offset:1024")
    a("s_waitcnt lgkmcnt(2)")
    m1 = S[0] + 9
    a(f"v_max_f32 v{T0+1}, v{T0}, v{m1}")
    a(f"v_sub_f32 v{T0+2}, v{T0}, v{T0+1}")
    a(f"v_sub_f32 v{T0+3}, v{m1}, v{T0+1}")
    a(f"v_exp_f32 v{T0+2}, v{T0+2}")
    a(f"v_exp_f32 v{T0+3}, v{T0+3}")
    a("s_nop 0")
    a(f"v_mul_f32 v{O+8}, v{O+8}, v{T0+2}")
    a(f"v_fma_f32 v{O+8}, v{S[0]+8}, v{T0+3}, v{O+8}")
    a(f"v_rcp_f32 v{T0+4}, v{O+8}")
    a("s_nop 0")
    a(f"v_mul_f32 v{T0+2}, v{T0+2}, v{T0+4}")
    a(f"v_mul_f32 v{T0+3}, v{T0+3}, v{T0+4}")
    for r in range(8): a(f"v_mul_f32 v{O+r}, v{O+r}, v{T0+2}")
    a("s_waitcnt lgkmcnt(0)")
    for r in range(8):
        a(f"v_fma_f32 v{O+r}, v{S[0]+r}, v{T0+3}, v{O+r}")
    for j in range(4): a(f"v_cvt_pk_bf16_f32 v{P[0]+j}, v{O+2*j}, v{O+2*j+1}")
    a(f"buffer_store_dwordx4 {vr(P[0],4)}, v4, s[12:15], s38 offen" + STF)
    a("s_cmp_eq_u32 s33, 2")
    a("s_cbranch_scc1 L_attn_fin")
    a("s_mov_b32 s33, 2")
    a("s_mov_b64 exec, -1")
    a("s_barrier")
    a("s_branch L_attn_comb")
    a.label("L_attn_fin")
    tk.tick()
    if MG:
        a("s_cmp_eq_u32 s22, 0")
        a("s_cbranch_scc1 L_attn_cont")
        tk.z = 2
        n = tk.n
        tk.tick(); tk.dump(20)
        a("s_endpgm")
        a.label("L_attn_cont")
        tk.n = n
        cnt_srd(a, 30)
        sig(a, "c2", 24, 4096)
        tk.z = 8
        tk.tick(); tk.dump(20)
        return
    a("s_waitcnt vmcnt(0)")
    tk.tick()
    tk.dump(20)
    a.label(f"L_{name}_end")
    a("s_endpgm")
    return name, kernel_wrap(name, a.text(), 128, 100 if TICK else 64), SCR + 8*2560
```
